```python
import torch

def _softmax(x, axis=-1):
    return torch.softmax(x, dim=axis)
def _gelu(x):
    return torch.nn.functional.gelu(x, approximate="tanh")
def _silu(x):
    return torch.nn.functional.silu(x)
def _sigmoid(x):
    return torch.sigmoid(x)
def _layernorm(x, axis=-1, eps=1e-5):
    m = x.mean(dim=axis, keepdim=True)
    v = x.var(dim=axis, keepdim=True, unbiased=False)
    return (x - m) / torch.sqrt(v + eps)
def _scatter_add(tgt, idx, src, axis=0):
    return tgt.clone().index_add_(axis, idx, src)
def _segment_sum(src, seg, n):
    out = torch.zeros((n,) + src.shape[1:], dtype=src.dtype)
    return out.index_add_(0, seg, src)
def _pad(x, pw):
    flat = tuple(v for pair in reversed(pw) for v in pair)
    return torch.nn.functional.pad(x, flat)

kernel_name = 'sequential_preLN__ssm_conv_s4__mixer_s_mlp__prompt'

def setup_inputs():

    _w = (lambda a: (lambda t: t.to(torch.bfloat16) if t.is_floating_point() else t)(torch.as_tensor(a)))
    def _A_setup():
        B, L, D, N = 1, 2048, 640, 192
        A_re = -(lambda _x: torch.exp(torch.as_tensor(_x)))((lambda *s: torch.randn(*s, dtype=torch.bfloat16) * 6.4)(D, N))
        A_im = torch.pi * (lambda *s: torch.randn(*s, dtype=torch.bfloat16) * 0.05)(D, N)
        B_re = (lambda *s: torch.randn(*s, dtype=torch.bfloat16) * 0.05)(D, N)
        B_im = (lambda *s: torch.randn(*s, dtype=torch.bfloat16) * 0.05)(D, N)
        C_re = (lambda *s: torch.randn(*s, dtype=torch.bfloat16) * 0.05)(D, N)
        C_im = (lambda *s: torch.randn(*s, dtype=torch.bfloat16) * 0.05)(D, N)
        log_dt = (lambda *s: torch.randn(*s, dtype=torch.bfloat16) * 0.05)(D) * 0.5 - 4.0
        Dskip = (lambda *s: torch.randn(*s, dtype=torch.bfloat16) * 0.05)(D)
        return {
            "u": _w((lambda *s: torch.randn(*s, dtype=torch.bfloat16) * 0.05)(B, L, D)),
            "A_re": _w(A_re),
            "A_im": _w(A_im),
            "B_re": _w(B_re),
            "B_im": _w(B_im),
            "C_re": _w(C_re),
            "C_im": _w(C_im),
            "log_dt": _w(log_dt),
            "Dskip": _w(Dskip),
        }
    _A_in = _A_setup()

    def _B_setup():
        B, S, D, F = 1, 2048, 640, 1536
        return {
            "x":  _w((lambda *s: torch.randn(*s, dtype=torch.bfloat16) * 0.05)(B, S, D)),
            "w1": _w((lambda *s: torch.randn(*s, dtype=torch.bfloat16) * 6.4)(D, D) * (D ** -0.5)),
            "w2": _w((lambda *s: torch.randn(*s, dtype=torch.bfloat16) * 6.4)(D, D) * (D ** -0.5)),
            "w3": _w((lambda *s: torch.randn(*s, dtype=torch.bfloat16) * 6.4)(D, F) * (D ** -0.5)),
            "w4": _w((lambda *s: torch.randn(*s, dtype=torch.bfloat16) * 6.4)(F, D) * (F ** -0.5)),
        }
    _B_in = _B_setup()

    return {
        "A_u": _A_in["u"],
        "A_A_re": _A_in["A_re"],
        "A_A_im": _A_in["A_im"],
        "A_B_re": _A_in["B_re"],
        "A_B_im": _A_in["B_im"],
        "A_C_re": _A_in["C_re"],
        "A_C_im": _A_in["C_im"],
        "A_log_dt": _A_in["log_dt"],
        "A_Dskip": _A_in["Dskip"],
        "B_x": _B_in["x"],
        "B_w1": _B_in["w1"],
        "B_w2": _B_in["w2"],
        "B_w3": _B_in["w3"],
        "B_w4": _B_in["w4"],
    }

def reference(A_u, A_A_re, A_A_im, A_B_re, A_B_im, A_C_re, A_C_im, A_log_dt, A_Dskip, B_x, B_w1, B_w2, B_w3, B_w4):
    def _A_ref(u, A_re, A_im, B_re, B_im, C_re, C_im, log_dt, Dskip):
        Bsz, L, D = u.shape
        dt = torch.exp(log_dt)[:, None]
        A = A_re + 1j * A_im
        Bc = B_re + 1j * B_im
        Cc = C_re + 1j * C_im
        logdA = dt * A
        dB = dt * Bc
        l = (lambda x, dt: x.to(dt))(torch.arange(L), A_re.dtype)
        P = torch.exp(logdA[:, :, None] * l[None, None, :])
        K = torch.einsum("dn,dnl,dn->dl", Cc, P, dB).real
        L2 = 2 * L
        Kp = _pad(K, ((0, 0), (0, L)))
        up = (lambda x, *d: x.permute(*d))(u, 0, 2, 1)
        up = _pad(up, ((0, 0), (0, 0), (0, L)))
        Kf = (lambda x, axes=(-2,-1): torch.fft.rfft2(x.float(), dim=axes))(Kp[:, None, :], axes=(-2, -1))
        Uf = (lambda x, axes=(-2,-1): torch.fft.rfft2(x.float(), dim=axes))(up[:, :, None, :], axes=(-2, -1))
        Yf = Uf * Kf[None, :, :, :]
        y = (lambda x, s, axes=(-2,-1): torch.fft.irfft2(x, s=s, dim=axes).to(torch.bfloat16))(Yf, (1, L2), axes=(-2, -1))[:, :, 0, :L]
        y = (lambda x, *d: x.permute(*d))(y, 0, 2, 1) + u * Dskip[None, None, :]
        return y

    def _B_ref(x, w1, w2, w3, w4):
        B, S, D = x.shape
        h = _gelu(_layernorm(x, axis=-1) @ w1)
        c = D // 4
        g0 = _pad(h[:, :, 0*c:1*c], ((0, 0), (1, 0), (0, 0)))[:, :S, :]
        g1 = _pad(h[:, :, 1*c:2*c], ((0, 0), (0, 1), (0, 0)))[:, 1:, :]
        g2 = _pad(h[:, :, 2*c:3*c], ((0, 0), (2, 0), (0, 0)))[:, :S, :]
        g3 = _pad(h[:, :, 3*c:   ], ((0, 0), (0, 2), (0, 0)))[:, 2:, :]
        hs = torch.concatenate([g0, g1, g2, g3], axis=-1) @ w2
        x1 = x + hs
        h2 = _gelu(_layernorm(x1, axis=-1) @ w3) @ w4
        return x1 + h2

    x = A_u
    h = x + _A_ref(_layernorm(x, axis=-1), A_A_re, A_A_im, A_B_re, A_B_im, A_C_re, A_C_im, A_log_dt, A_Dskip)
    h2 = h + _B_ref(_layernorm(h, axis=-1), B_w1, B_w2, B_w3, B_w4)
    return h2
```

```python
import re

TRANS = ("v_exp_f32", "v_log_f32", "v_rcp_f32", "v_rsq_f32", "v_sqrt_f32", "v_sin_f32", "v_cos_f32", "v_rcp_iflag_f32")
REG_RE = re.compile(r"(?<![\w.])(-?\|?)(abs\()?([vas])(\d+|\[(\d+):(\d+)\])")

def regs_of(op):
    out = []
    op = op.strip()
    if op in ("vcc", "vcc_lo", "vcc_hi"): return [("s", "vcc")]
    if op in ("exec", "exec_lo", "exec_hi"): return [("s", "exec")]
    if op == "m0": return [("s", "m0")]
    m = re.match(r"^-?(?:abs\()?\|?([vas])(?:(\d+)|\[(\d+):(\d+)\])\)?\|?$", op)
    if m:
        k = m.group(1)
        if m.group(2) is not None: out.append((k, int(m.group(2))))
        else: out += [(k, i) for i in range(int(m.group(3)), int(m.group(4)) + 1)]
    return out

def split_ops(s):
    ops, depth, cur = [], 0, ""
    for ch in s:
        if ch == "[": depth += 1
        if ch == "]": depth -= 1
        if ch == "," and depth == 0: ops.append(cur.strip()); cur = ""
        else: cur += ch
    if cur.strip(): ops.append(cur.strip())
    return ops

class Ins:
    def __init__(self, text):
        self.text = text
        t = text.split(";")[0].strip()
        self.is_label = t.endswith(":")
        self.is_dir = t.startswith(".") and not self.is_label
        self.empty = (t == "")
        self.mn = ""; self.wr = []; self.rd = []; self.cls = "none"; self.passes = 0; self.srcc = []; self.data = []
        self.dpp = False; self.lds_dma = False
        if self.is_label or self.is_dir or self.empty: return
        parts = t.split(None, 1)
        mn = parts[0]; self.mn = mn
        rest = parts[1] if len(parts) > 1 else ""
        ops = split_ops(rest)
        mods = ""
        if ops:
            last = ops[-1].split(None, 1)
            if len(last) > 1 and not last[0].endswith(":"):
                ops[-1] = last[0]; mods = last[1]
        self.mods = mods
        R = [regs_of(o) for o in ops]
        base = re.sub(r"_(e32|e64|dpp|sdwa)$", "", mn)
        self.base = base
        if mn.startswith("v_mfma"):
            self.cls = "mfma"; self.passes = 8 if "32x32x16" in mn else 4
            assert "32x32x16_bf16" in mn or "16x16x32_bf16" in mn, mn
            self.wr = R[0]; self.rd = R[1] + R[2] + R[3]; self.srcc = R[3]; self.srcab = R[1] + R[2]
        elif mn.startswith("v_"):
            self.cls = "valu"
            if base in TRANS: self.cls = "trans"
            if "_dpp" in mn or "row_" in mods or "quad_perm" in mods: self.dpp = True
            if base.startswith("v_cmp"):
                self.wr = R[0]; self.rd = sum(R[1:], [])
                if base.startswith("v_cmpx"): self.wr = self.wr + [("s", "exec")]
            elif base in ("v_readfirstlane_b32", "v_readlane_b32"):
                self.wr = R[0]; self.rd = sum(R[1:], [])
            elif base.startswith("v_permlane"):
                self.wr = R[0] + R[1]; self.rd = R[0] + R[1]
            elif base in ("v_add_co_u32", "v_sub_co_u32", "v_addc_co_u32", "v_subb_co_u32", "v_mad_u64_u32"):
                self.wr = R[0] + R[1]; self.rd = sum(R[2:], [])
            else:
                self.wr = R[0]; self.rd = sum(R[1:], [])
                if base in ("v_fmac_f32", "v_dot2c_f32_bf16", "v_pk_fmac_f16") or self.dpp or "_sdwa" in mn: self.rd = self.rd + R[0]
                if base == "v_cndmask_b32" and len(ops) == 3: self.rd = self.rd + [("s", "vcc")]
        elif mn.startswith("buffer_") or mn.startswith("global_"):
            self.cls = "vmem"
            if mn in ("buffer_wbl2", "buffer_inv"): pass
            elif " lds" in (" " + mods) or mn.startswith("global_load_lds"):
                self.lds_dma = True; self.rd = sum(R, []) + [("s", "m0")]
            elif "_load" in mn:
                self.wr = R[0]; self.rd = sum(R[1:], [])
                if "d16" in mn: self.rd = self.rd + R[0]
            elif "atomic" in mn:
                self.rd = sum(R, [])
                if "sc0" in mods: self.wr = R[0]
            else:
                self.rd = sum(R, [])
                self.data = R[0] if mn.startswith("buffer_") else R[1]
        elif mn.startswith("ds_"):
            self.cls = "ds"
            if "read" in mn or "permute" in mn or "swizzle" in mn:
                self.wr = R[0]; self.rd = sum(R[1:], [])
                if "d16" in mn: self.rd = self.rd + R[0]
            else: self.rd = sum(R, [])
        elif mn.startswith("s_"):
            self.cls = "salu"
            if mn.startswith("s_load") or mn.startswith("s_memtime") or mn.startswith("s_memrealtime") or mn.startswith("s_buffer_load"):
                self.cls = "smem"; self.wr = R[0]; self.rd = sum(R[1:], [])
            elif mn.startswith("s_cmp") or mn.startswith("s_cbranch") or mn in ("s_branch", "s_barrier", "s_waitcnt", "s_nop", "s_endpgm", "s_sleep", "s_setprio"):
                self.rd = sum(R, [])
            else:
                self.wr = R[0] if R else []; self.rd = sum(R[1:], [])
                if "saveexec" in mn: self.wr = self.wr + [("s", "exec")]
        else:
            raise ValueError("unknown instr " + text)
    def states(self):
        if self.is_label or self.is_dir or self.empty: return 0
        if self.mn == "s_nop": return int(self.text.split()[1], 0) + 1
        return 1

def need(prod, cons):
    n = 0
    pw = set(prod.wr); cr = set(cons.rd); cw = set(cons.wr)
    pv = {r for r in pw if r[0] in "va"}; ps = {r for r in pw if r[0] == "s"}
    isv = lambda i: i.cls in ("valu", "trans")
    if isv(prod):
        if cons.cls == "mfma" and pv & cr: n = max(n, 2)
        if cons.cls == "mfma" and ("s", "exec") in pw: n = max(n, 4)
        if isv(cons) and cons.dpp and pv & cr: n = max(n, 2)
        if isv(cons) and cons.dpp and ("s", "exec") in pw: n = max(n, 5)
        if cons.base.startswith("v_permlane") and pv & cr: n = max(n, 2)
        if cons.base in ("v_readfirstlane_b32", "v_readlane_b32") and pv & cr: n = max(n, 1)
        if cons.base in ("v_readfirstlane_b32", "v_readlane_b32", "v_writelane_b32") and (ps & cr or ("s", "exec") in pw): n = max(n, 4)
        if cons.cls == "vmem" and ps & cr: n = max(n, 5)
        if isv(cons) and ps & cr: n = max(n, 2)
        if cons.cls == "salu" and ps & cr: n = max(n, 1)
        if cons.cls == "smem" and ps & cr: n = max(n, 5)
        if prod.cls == "trans" and cons.cls != "trans" and cons.cls in ("valu", "mfma", "vmem", "ds") and pv & cr: n = max(n, 1 if cons.cls != "mfma" else 2)
        if ("_sdwa" in prod.mn or ("op_sel" in getattr(prod, "mods", "") and not prod.mn.startswith("v_pk_"))) and isv(cons) and pv & (cr | cw): n = max(n, 1)
        if prod.base.startswith("v_dot2") and pv & (cr | cw):
            same = cons.base == prod.base
            if not same: n = max(n, 3)
            else:
                ops = split_ops(cons.text.split(";")[0].split(None, 1)[1])
                ab = regs_of(ops[1]) + regs_of(ops[2].split()[0])
                if pv & set(ab): n = max(n, 3)
    if prod.cls == "mfma":
        P = prod.passes
        tab_ab = {4: 8, 8: 12}[P]; tab_part = {4: 6, 8: 10}[P]; war = {4: 3, 8: 7}[P]
        if cons.cls == "mfma":
            if pv & set(cons.srcab): n = max(n, tab_ab)
            if pv & set(cons.srcc):
                if not (cons.srcc == prod.wr and cons.passes == P): n = max(n, tab_part)
            elif pv & cw: n = max(n, tab_part)
        elif cons.cls in ("valu", "trans", "vmem", "ds"):
            if pv & (cr | cw): n = max(n, tab_ab)
            if isv(cons) and set(prod.srcc) & cw: n = max(n, war)
    if prod.cls == "vmem" and prod.data and len(prod.data) >= 3:
        if set(prod.data) & cw: n = max(n, 2 if isv(cons) else 1)
    if prod.cls == "salu" and ("s", "m0") in pw and (cons.lds_dma or "addtid" in cons.mn): n = max(n, 1)
    return n

MAXD = 20
def hazard_pass(lines):
    out = []; hist = []
    for ln in lines:
        for text in ln.split("\n"):
            ins = Ins(text)
            if ins.cls != "none":
                req = 0; dist = 0
                for p in reversed(hist):
                    if dist >= MAXD: break
                    r = need(p, ins) - dist
                    req = max(req, r)
                    dist += p.states()
                while req > 0:
                    k = min(req, 16)
                    nop = Ins(f"  s_nop {k-1}"); out.append(nop.text); hist.append(nop); req -= k
                hist.append(ins)
                if len(hist) > 40: hist = hist[-40:]
            out.append(text)
    return out

class K:
    def __init__(self, name, grid, block, lds, vgpr=256, agpr=0, sgpr=96):
        self.name = name; self.grid = grid; self.block = block; self.lds = lds
        self.vgpr = vgpr; self.agpr = agpr; self.sgpr = sgpr
        self.lines = []; self.tail = []
    def __call__(self, s): self.lines.append(s)
    def label(self, l): self.lines.append(f"{l}:")
    def body(self):
        hdr = [f".globl {self.name}", ".p2align 8", f".type {self.name},@function", f"{self.name}:"]
        return "\n".join(hdr + hazard_pass(self.lines) + self.tail)
    def kd(self):
        acc = (self.vgpr + 3) // 4 * 4
        nfv = acc + self.agpr if self.agpr else self.vgpr
        return f""".amdhsa_kernel {self.name}
  .amdhsa_next_free_vgpr {nfv}
  .amdhsa_next_free_sgpr {self.sgpr}
  .amdhsa_accum_offset {acc}
  .amdhsa_group_segment_fixed_size 0
  .amdhsa_kernarg_size 136
  .amdhsa_user_sgpr_count 2
  .amdhsa_user_sgpr_kernarg_segment_ptr 1
  .amdhsa_system_sgpr_workgroup_id_x 1
.end_amdhsa_kernel"""
    def launch(self):
        return f"; @launch kernel={self.name} grid=({self.grid},1,1) block=({self.block},1,1) lds={self.lds}"

def emit_file(kernels, header, launches=None):
    out = [header.rstrip("\n")]
    for k in (launches or kernels): out.append(k.launch())
    out.append('.amdgcn_target "amdgcn-amd-amdhsa--gfx950"')
    out.append(".text")
    for k in kernels: out.append(k.body())
    out.append('.section .rodata,"a"')
    for k in kernels:
        out.append(".p2align 6"); out.append(k.kd())
    return "\n".join(out) + "\n"
```

```python
from asmfw import K
from layout import *

CST = 4160
UOFF = 4 * CST
DREG = UOFF + 4608
CONV_LDS = 4 * DREG

def gen_conv():
    k = K("conv_kernel", 256, 256, CONV_LDS, vgpr=256, sgpr=80)
    k("  s_cmp_ge_u32 s2, 234\n  s_cbranch_scc1 C_done")
    k(f"  s_load_dwordx2 s[32:33], s[0:1], {KA_WS}")
    k(f"  s_load_dwordx2 s[16:17], s[0:1], {KA_X}\n  s_load_dwordx2 s[18:19], s[0:1], {KA_DSK}")
    k(f"  s_load_dwordx8 s[20:27], s[0:1], {KA_W1}")
    k("  v_lshrrev_b32 v1, 6, v0\n  v_and_b32 v2, 63, v0")
    k("  v_readfirstlane_b32 s3, v1")
    k("  s_mov_b32 s40, 0xffff0000")
    k("  s_cmp_ge_u32 s2, 160\n  s_cbranch_scc1 C_aux")
    k("  s_and_b32 s4, s2, 7\n  s_mul_i32 s4, s4, 20\n  s_lshr_b32 s5, s2, 3\n  s_add_u32 s4, s4, s5\n  s_lshl_b32 s4, s4, 2")
    k("  s_add_u32 s5, s4, s3")
    k(f"  s_mul_i32 s6, s3, {DREG}")
    k("  v_lshlrev_b32 v3, 4, v2")
    k(f"  s_mul_i32 s7, s5, {UT_STRIDE}\n  s_mul_i32 s8, s5, {KG_STRIDE}")
    k("  s_lshr_b32 s9, s5, 1\n  s_lshl_b32 s9, s9, 2\n  s_and_b32 s10, s5, 1\n  s_lshl_b32 s10, s10, 4")
    k(f"  v_add_u32 v4, {UOFF}, v3")
    k(f"  v_bfe_u32 v5, v2, 1, 2\n  v_mul_u32_u24 v5, {CST}, v5\n  v_and_b32 v6, 1, v2\n  v_lshl_add_u32 v5, v6, 4, v5\n  v_add_u32 v5, 4096, v5")
    k("  v_cmp_gt_u32 vcc, 32, v2\n  v_cndmask_b32 v4, v5, v4, vcc\n  v_add_u32 v4, s6, v4")
    k("  v_mov_b32 v8, 0\n  v_mov_b32 v9, 0\n  v_mov_b32 v10, 0\n  v_mov_b32 v11, 0")
    k("  ds_write_b128 v4, v[8:11]")
    k("  s_waitcnt lgkmcnt(0)")
    k("  s_mov_b32 s36, s32\n  s_mov_b32 s37, s33\n  s_mov_b32 s38, 0x2000000\n  s_mov_b32 s39, 0x00020000")
    k("  s_load_dword s11, s[18:19], s9")
    k(f"  s_add_u32 m0, s6, {UOFF+512}\n  s_add_u32 s12, s7, {WS_UT}")
    for i in range(4): k(f"  buffer_load_dwordx4 v3, s[36:39], s12 offen offset:{1024*i} lds")
    for sg in (3, 2, 1, 0):
        src = (WS_KG1 if sg & 1 else WS_KG0) + (4 if sg < 2 else 0)
        k(f"  s_add_u32 m0, s6, {sg*CST}\n  s_add_u32 s12, s8, {src}")
        for i in range(4): k(f"  buffer_load_dwordx4 v3, s[36:39], s12 offen offset:{1024*i} lds")
    k("  s_movk_i32 s13, 5120\n  v_mul_lo_u32 v4, s13, v0\n  s_lshl_b32 s14, s4, 1\n  v_add_u32 v4, s14, v4\n  v_add_u32 v5, 0x140000, v4")
    for i, a in enumerate((4, 5)):
        for r in range(4): k(f"  global_load_dwordx2 v[{208+8*i+2*r}:{209+8*i+2*r}], v{a}, s[16:17] offset:{1280*r}")
    k("  v_and_b32 v6, 15, v2\n  v_lshrrev_b32 v7, 4, v2")
    k(f"  v_and_b32 v8, 3, v6\n  v_mul_u32_u24 v8, {CST}, v8\n  v_lshrrev_b32 v9, 2, v6\n  v_lshlrev_b32 v9, 3, v9\n  v_sub_u32 v8, v8, v9\n  v_lshl_add_u32 v8, v7, 4, v8\n  v_add_u32 v8, {24+384}, v8\n  v_add_u32 v12, s6, v8")
    k(f"  v_lshlrev_b32 v8, 5, v6\n  v_lshl_add_u32 v8, v7, 4, v8\n  v_add_u32 v8, {UOFF+32+384}, v8\n  v_add_u32 v13, s6, v8")
    k(f"  v_lshlrev_b32 v8, 5, v6\n  v_lshl_add_u32 v8, v7, 3, v8\n  v_add_u32 v14, s6, v8")
    k("  s_waitcnt lgkmcnt(0)")
    k("  s_lshr_b32 s11, s11, s10\n  s_lshl_b32 s11, s11, 16\n  v_mov_b32 v10, s11\n  v_mov_b32 v11, s11")
    k("  s_waitcnt vmcnt(24)")
    for J in range(8): k(f"  ds_read_b64 v[{48+2*J}:{49+2*J}], v14 offset:{UOFF+512+512*J}")
    for J in range(8):
        k(f"  s_waitcnt lgkmcnt({7-J})")
        for h in range(2):
            r = 48 + 2*J + h; o = 176 + 4*J + 2*h
            k(f"  v_lshlrev_b32 v{o}, 16, v{r}\n  v_and_b32 v{o+1}, s40, v{r}\n  v_pk_mul_f32 v[{o}:{o+1}], v[{o}:{o+1}], v[10:11]")
            k(f"  v_cvt_pk_bf16_f32 v8, v{o}, v{o+1}\n  v_lshlrev_b32 v{o}, 16, v8\n  v_and_b32 v{o+1}, s40, v8")
    for i in range(32): k(f"  v_mov_b32 v{16+i}, 0")
    k("  s_waitcnt vmcnt(8)")
    SETS = ((48, 80), (112, 144))
    def reads(st, extra):
        A, B = SETS[st]; out = []
        for n in range(8):
            off = 512 * (7 - n) + 64 - extra
            out.append(f"  ds_read_b64 v[{A+4*n}:{A+4*n+1}], v12 offset:{off}")
            out.append(f"  ds_read_b64 v[{A+4*n+2}:{A+4*n+3}], v12 offset:{off+8}")
            out.append(f"  ds_read_b128 v[{B+4*n}:{B+4*n+3}], v13 offset:{512*n + 64 - extra}")
        return out
    def mfmas(st):
        A, B = SETS[st]; out = []
        for J in range(8):
            for n in range(J + 1):
                m = J - n
                out.append(f"  v_mfma_f32_16x16x32_bf16 v[{16+4*J}:{19+4*J}], v[{A+4*n}:{A+4*n+3}], v[{B+4*m}:{B+4*m+3}], v[{16+4*J}:{19+4*J}]")
        return out
    def inter(mf, rd):
        out = []
        for i, m in enumerate(mf):
            out.append(m)
            if i < len(rd): out.append(rd[i])
        return out
    for l in reads(0, 0): k(l)
    k("  s_mov_b32 s15, 0")
    k("C_loop:")
    k("  s_waitcnt lgkmcnt(0)")
    for l in inter(mfmas(0), reads(1, 64)): k(l)
    k("  v_subrev_u32 v12, 128, v12\n  v_subrev_u32 v13, 128, v13")
    k("  s_waitcnt lgkmcnt(0)")
    k("  s_cmp_eq_u32 s15, 3\n  s_cbranch_scc1 C_last")
    for l in inter(mfmas(1), reads(0, 0)): k(l)
    k("  s_add_u32 s15, s15, 1\n  s_branch C_loop")
    k("C_last:")
    for l in mfmas(1): k(l)
    k("  s_waitcnt vmcnt(0)")
    for i in range(16): k(f"  v_lshlrev_b32 v{48+2*i}, 16, v{208+i}\n  v_and_b32 v{49+2*i}, s40, v{208+i}")
    for J in range(8):
        for h in range(2):
            a = 16 + 4*J + 2*h; o = 176 + 4*J + 2*h
            k(f"  v_cvt_pk_bf16_f32 v8, v{a}, v{a+1}\n  v_lshlrev_b32 v{a}, 16, v8\n  v_and_b32 v{a+1}, s40, v8")
            k(f"  v_pk_add_f32 v[{a}:{a+1}], v[{a}:{a+1}], v[{o}:{o+1}]\n  v_cvt_pk_bf16_f32 v{112+2*J+h}, v{a}, v{a+1}")
        k(f"  ds_write_b64 v14, v[{112+2*J}:{113+2*J}] offset:{512*J}")
    k("  v_lshrrev_b32 v4, 2, v0\n  s_movk_i32 s13, 20480\n  v_mul_lo_u32 v4, s13, v4\n  v_and_b32 v5, 3, v0\n  v_lshl_add_u32 v4, v5, 6, v4")
    k("  s_lshr_b32 s13, s4, 3\n  s_lshl_b32 s13, s13, 8\n  s_and_b32 s14, s4, 4\n  s_lshl_b32 s14, s14, 1\n  s_add_u32 s13, s13, s14")
    k(f"  s_add_u32 s13, s13, {WS_HF}\n  s_add_u32 s14, s13, {64*20480}")
    k("  v_lshlrev_b32 v5, 3, v0\n  v_add_u32 v6, 2048, v5")
    k("  s_waitcnt lgkmcnt(0)\n  s_barrier")
    for i in range(2):
        for w in range(4): k(f"  ds_read_b64 v[{80+8*i+2*w}:{81+8*i+2*w}], v{5+i} offset:{w*DREG}")
    for i in range(2):
        k(f"  s_waitcnt lgkmcnt({4-4*i})")
        for r in range(4):
            o = 112 + 16*i + 4*r
            for w in range(4):
                src = 80 + 8*i + 2*w + (r >> 1)
                k(f"  v_and_b32 v{o+w}, s40, v{src}" if r & 1 else f"  v_lshlrev_b32 v{o+w}, 16, v{src}")
            x = 48 + 16*i + 4*r
            k(f"  v_pk_add_f32 v[{o}:{o+1}], v[{o}:{o+1}], v[{x}:{x+1}]\n  v_pk_add_f32 v[{o+2}:{o+3}], v[{o+2}:{o+3}], v[{x+2}:{x+3}]")
            d = 144 + 8*i + 2*r
            k(f"  v_cvt_pk_bf16_f32 v{d}, v{o}, v{o+1}\n  v_cvt_pk_bf16_f32 v{d+1}, v{o+2}, v{o+3}")
            k(f"  buffer_store_dwordx2 v[{d}:{d+1}], v4, s[36:39], s{13+i} offen offset:{16*r}")
    k("  s_branch C_done")
    k("C_aux:")
    k("  s_sub_u32 s4, s2, 160")
    k("  s_waitcnt lgkmcnt(0)")
    k(f"  s_mov_b32 s44, s20\n  s_mov_b32 s45, s21\n  s_mov_b32 s46, {640*640*2}\n  s_mov_b32 s47, 0x00020000")
    k(f"  s_mov_b32 s5, s4\n  s_movk_i32 s6, 1280\n  s_movk_i32 s7, 20\n  s_mov_b32 s8, {WS_W1P}\n  s_mov_b32 s9, 0\n  s_mov_b32 s10, 10\n  s_mov_b32 s11, {WS_CS1}")
    k("  s_cmp_lt_u32 s4, 10\n  s_cbranch_scc1 C_go")
    k(f"  s_mov_b32 s44, s22\n  s_mov_b32 s45, s23\n  s_sub_u32 s5, s4, 10\n  s_mov_b32 s8, {WS_W2P}\n  s_mov_b32 s11, 0")
    k("  s_cmp_lt_u32 s4, 20\n  s_cbranch_scc1 C_go")
    k(f"  s_mov_b32 s44, s24\n  s_mov_b32 s45, s25\n  s_mov_b32 s46, {640*1536*2}\n  s_sub_u32 s5, s4, 20\n  s_movk_i32 s6, 3072\n  s_mov_b32 s8, {WS_W3P}\n  s_mov_b32 s11, {WS_CS3}")
    k("  s_cmp_lt_u32 s4, 44\n  s_cbranch_scc1 C_go")
    k(f"  s_mov_b32 s44, s26\n  s_mov_b32 s45, s27\n  s_movk_i32 s6, 1280\n  s_movk_i32 s7, 48\n  s_mov_b32 s8, {WS_W4P}\n  s_mov_b32 s10, 8\n  s_mov_b32 s11, 0")
    k("  s_sub_u32 s5, s4, 44\n  s_mov_b32 s9, 0")
    k("  s_cmp_lt_u32 s5, 10\n  s_cbranch_scc1 C_go\n  s_sub_u32 s5, s5, 10\n  s_mov_b32 s9, 64")
    k("  s_cmp_lt_u32 s5, 10\n  s_cbranch_scc1 C_go\n  s_sub_u32 s5, s5, 10\n  s_mov_b32 s9, 128")
    k("C_go:")
    k("  s_mov_b32 s36, s32\n  s_mov_b32 s37, s33\n  s_mov_b32 s38, 0x2000000\n  s_mov_b32 s39, 0x00020000")
    k("  v_lshrrev_b32 v3, 3, v2\n  v_and_b32 v4, 7, v2")
    k("  s_lshl_b32 s12, s3, 3\n  s_add_u32 s12, s12, s9\n  v_add_u32 v3, s12, v3")
    k("  s_lshl_b32 s13, s6, 3\n  v_mul_lo_u32 v5, s13, v3\n  s_lshl_b32 s14, s5, 7\n  v_lshl_add_u32 v5, v4, 4, v5\n  v_add_u32 v5, s14, v5")
    k("  s_lshl_b32 s15, s6, 8")
    k("  s_add_u32 s28, s3, 8")
    k("  s_mov_b32 s29, 0")
    for i in range(3):
        if i == 2: k("  s_cmp_ge_u32 s28, s10\n  s_cbranch_scc1 C_ld_done")
        for e in range(8):
            k(f"  buffer_load_dwordx4 v[{32+32*i+4*e}:{35+32*i+4*e}], v5, s[44:47], s29 offen")
            k("  s_add_u32 s29, s29, s6")
        k("  s_sub_u32 s29, s29, s13\n  s_add_u32 s29, s29, s15")
    k("C_ld_done:")
    k("  s_lshl_b32 s14, s5, 3\n  v_add_u32 v6, s14, v4\n  v_lshrrev_b32 v7, 2, v6\n  v_and_b32 v6, 3, v6")
    k("  s_lshl_b32 s30, s7, 1\n  v_mul_lo_u32 v7, s30, v7\n  v_lshrrev_b32 v8, 2, v3\n  v_add_u32 v7, v7, v8\n  v_lshlrev_b32 v7, 10, v7")
    k("  v_and_b32 v8, 3, v3\n  v_lshl_add_u32 v7, v8, 8, v7\n  v_lshl_add_u32 v7, v6, 6, v7")
    k("  s_lshl_b32 s30, s7, 10\n  v_add_u32 v8, s30, v7")
    k("  s_mov_b32 s41, 0x05040100\n  s_mov_b32 s42, 0x07060302\n  s_mov_b32 s43, 0x3f803f80")
    for n in range(8): k(f"  v_mov_b32 v{16+n}, 0")
    k("  s_mov_b32 s31, s8")
    for i in range(3):
        if i == 2: k("  s_cmp_ge_u32 s28, s10\n  s_cbranch_scc1 C_st_done")
        k("  s_waitcnt vmcnt(0)" if i == 2 else "  s_waitcnt vmcnt(8)")
        R = 32 + 32*i
        for n in range(8):
            O = 128 + 32*(i & 1) + 4*n
            for j in range(4):
                k(f"  v_perm_b32 v{O+j}, v{R+4*(2*j+1)+(n>>1)}, v{R+4*(2*j)+(n>>1)}, s{42 if n & 1 else 41}")
            for j in range(4): k(f"  v_dot2_f32_bf16 v{16+n}, v{O+j}, s43, v{16+n}")
            k(f"  buffer_store_dwordx4 v[{O}:{O+3}], v{7 + (n >> 2)}, s[36:39], s31 offen offset:{16*(n&3)}")
        k("  s_add_u32 s31, s31, 8192")
    k("C_st_done:")
    k("  s_cmp_eq_u32 s11, 0\n  s_cbranch_scc1 C_done")
    for n in range(8):
        r = 16 + n
        k(f"  v_add_f32_dpp v{r}, v{r}, v{r} row_ror:8 row_mask:0xf bank_mask:0xf")
        k(f"  v_mov_b32 v24, v{r}\n  v_permlane16_swap_b32 v{r}, v24\n  v_add_f32 v{r}, v{r}, v24")
        k(f"  v_mov_b32 v24, v{r}\n  v_permlane32_swap_b32 v{r}, v24\n  v_add_f32 v{r}, v{r}, v24")
    k("  s_lshl_b32 s12, s3, 8\n  v_lshlrev_b32 v9, 5, v4\n  v_add_u32 v9, s12, v9")
    k("  ds_write_b128 v9, v[16:19]\n  ds_write_b128 v9, v[20:23] offset:16")
    k("  s_waitcnt lgkmcnt(0)\n  s_barrier")
    k("  s_cmp_lg_u32 s3, 0\n  s_cbranch_scc1 C_done")
    k("  v_lshlrev_b32 v9, 2, v2")
    for w in range(4): k(f"  ds_read_b32 v{16+w}, v9 offset:{256*w}")
    k("  s_lshl_b32 s12, s5, 8\n  s_add_u32 s12, s12, s11")
    k("  s_waitcnt lgkmcnt(0)")
    k("  v_add_f32 v16, v16, v17\n  v_add_f32 v18, v18, v19\n  v_add_f32 v16, v16, v18")
    k("  buffer_store_dword v16, v9, s[36:39], s12 offen")
    k("C_done:\n  s_endpgm")
    return k
```

```python
from asmfw import K
from layout import *
import struct
def f32(x): return "0x%08x" % struct.unpack("<I", struct.pack("<f", x))[0]
K1 = -2.0 * 0.7978845608028654 * 1.4426950408889634
K2 = K1 * 0.044715
INV640 = f32(1.0 / 640.0)
EPS = f32(1e-5)

class VM:
    def __init__(self, k): self.k = k; self.ops = []
    def issue(self, text, tag): self.k(text); self.ops.append(tag)
    def count_after(self, tag):
        idx = max(i for i, t in enumerate(self.ops) if t == tag)
        return len(self.ops) - 1 - idx
    def wait_text(self, tag): return f"  s_waitcnt vmcnt({min(63, self.count_after(tag))})"

def rnd_bf16(k, r):
    k(f"  v_cvt_pk_bf16_f32 v{r}, v{r}, v{r}\n  v_lshlrev_b32 v{r}, 16, v{r}")

def red_q(out, r, t):
    out += [f"  v_mov_b32 v{t}, v{r}", f"  v_permlane16_swap_b32 v{r}, v{t}", f"  v_add_f32 v{r}, v{r}, v{t}",
            f"  v_mov_b32 v{t}, v{r}", f"  v_permlane32_swap_b32 v{r}, v{t}", f"  v_add_f32 v{r}, v{r}, v{t}"]

def ln_scalars(out, s1, s2, m, rs, t):
    out += [f"  v_mul_f32 v{s1}, {INV640}, v{s1}", f"  v_mul_f32 v{s2}, {INV640}, v{s2}",
            f"  v_fma_f32 v{s2}, -v{s1}, v{s1}, v{s2}", f"  v_max_f32 v{s2}, 0, v{s2}"]
    ln_from_mv(out, s1, s2, m, rs, t)

def ln_from_mv(out, mean, var, m, rs, t):
    out += [f"  v_cvt_pk_bf16_f32 v{t}, v{mean}, v{var}", f"  v_lshlrev_b32 v{m}, 16, v{t}", f"  v_and_b32 v{rs}, s40, v{t}",
            f"  v_add_f32 v{rs}, {EPS}, v{rs}", f"  v_cvt_pk_bf16_f32 v{rs}, v{rs}, v{rs}", f"  v_lshlrev_b32 v{rs}, 16, v{rs}",
            f"  v_sqrt_f32 v{rs}, v{rs}", f"  v_cvt_pk_bf16_f32 v{rs}, v{rs}, v{rs}", f"  v_lshlrev_b32 v{rs}, 16, v{rs}",
            f"  v_rcp_f32 v{rs}, v{rs}"]

def gelu_pair(out, a, cs, al, be, t, dst, CK1, CONE):
    out += [f"  v_pk_mul_f32 v[{t}:{t+1}], v[{cs}:{cs+1}], v[{be}:{be+1}]",
            f"  v_pk_fma_f32 v[{t}:{t+1}], v[{a}:{a+1}], v[{al}:{al+1}], v[{t}:{t+1}] neg_lo:[0,0,1] neg_hi:[0,0,1]",
            f"  v_cvt_pk_bf16_f32 v{t+2}, v{t}, v{t+1}",
            f"  v_lshlrev_b32 v{t}, 16, v{t+2}", f"  v_and_b32 v{t+1}, s40, v{t+2}",
            f"  v_pk_mul_f32 v[{t+2}:{t+3}], v[{t}:{t+1}], v[{t}:{t+1}]",
            f"  v_pk_fma_f32 v[{t+2}:{t+3}], v[{t+2}:{t+3}], s[42:43], v[{CK1}:{CK1+1}]",
            f"  v_pk_mul_f32 v[{t+2}:{t+3}], v[{t+2}:{t+3}], v[{t}:{t+1}]",
            f"  v_exp_f32 v{t+2}, v{t+2}", f"  v_exp_f32 v{t+3}, v{t+3}",
            f"  v_pk_add_f32 v[{t+2}:{t+3}], v[{t+2}:{t+3}], v[{CONE}:{CONE+1}]",
            f"  v_rcp_f32 v{t+2}, v{t+2}", f"  v_rcp_f32 v{t+3}, v{t+3}",
            f"  v_pk_mul_f32 v[{t}:{t+1}], v[{t}:{t+1}], v[{t+2}:{t+3}]",
            f"  v_cvt_pk_bf16_f32 v{dst}, v{t}, v{t+1}"]

def prologue(k, pfx, big):
    k(f"  s_cmp_ge_u32 s2, 256\n  s_cbranch_scc1 {pfx}_done")
    k(f"  s_load_dwordx2 s[32:33], s[0:1], {KA_WS}\n  s_load_dwordx2 s[34:35], s[0:1], {KA_OUT}")
    k("  v_lshrrev_b32 v1, 6, v0\n  v_and_b32 v2, 63, v0\n  v_readfirstlane_b32 s3, v1")
    k("  v_lshlrev_b32 v3, 4, v2\n  v_and_b32 v6, 15, v2\n  v_lshrrev_b32 v7, 4, v2")
    k("  s_mov_b32 s40, 0xffff0000\n  s_mov_b32 s41, 0x3f803f80")
    k(f"  s_mov_b32 s42, {f32(K2)}\n  s_mov_b32 s43, {f32(K2)}")
    if big:
        k("  s_and_b32 s4, s2, 7\n  s_lshl_b32 s4, s4, 1\n  s_bfe_u32 s5, s2, 0x10003\n  s_add_u32 s4, s4, s5\n  s_lshr_b32 s5, s2, 4")
    else:
        k("  s_and_b32 s4, s2, 7\n  s_lshl_b32 s4, s4, 2\n  s_bfe_u32 s5, s2, 0x20003\n  s_add_u32 s4, s4, s5\n  s_lshr_b32 s5, s2, 5")
    k("  s_waitcnt lgkmcnt(0)")
    k("  s_mov_b32 s36, s32\n  s_mov_b32 s37, s33\n  s_mov_b32 s38, 0x2000000\n  s_mov_b32 s39, 0x00020000")

def merge(stream, fillers, per=2, start=0):
    out = []; fi = 0; nm = 0
    for s in stream:
        out.append(s)
        if "v_mfma" in s:
            nm += 1
            if nm > start:
                for _ in range(per):
                    if fi < len(fillers): out.append(fillers[fi]); fi += 1
    out += fillers[fi:]
    return out

PD = 6
WR = 8

def gen_g123(which):
    big = which == 3
    NT = 6 if big else 5; RT = 2 if big else 1; KS = 20
    pfx = f"G{which}"
    k = K(f"g{which}_kernel", 256, 256, NT * KS * 1024, vgpr=128 if big else 200, agpr=160 if big else 0, sgpr=80)
    vm = VM(k)
    prologue(k, pfx, big)
    XSRC = {1: WS_HF, 2: WS_ZF, 3: WS_X1F}[which]; WSRC = {1: WS_W1P, 2: WS_W2P, 3: WS_W3P}[which]
    k(f"  s_lshl_b32 s6, s4, {3 if big else 2}\n  s_mul_i32 s7, s3, {RT}\n  s_add_u32 s6, s6, s7")
    k(f"  s_mul_i32 s7, s6, 20480\n  s_add_u32 s7, s7, {XSRC}")
    k(f"  s_mul_i32 s9, s3, 5120\n  s_mul_i32 s8, s5, {NT*20480}\n  s_add_u32 s8, s8, s9\n  s_add_u32 s8, s8, {WSRC}")
    XR = (lambda rt, ks: f"a[{(rt*KS+ks)*4}:{(rt*KS+ks)*4+3}]") if big else (lambda rt, ks: f"v[{120+4*ks}:{123+4*ks}]")
    WB = 16
    ACC = 48
    def dma_w(nt):
        k(f"  s_add_u32 m0, s9, {nt*20480}\n  s_add_u32 s10, s8, {nt*20480}")
        for i in range(4): vm.issue(f"  buffer_load_dwordx4 v3, s[36:39], s10 offen offset:{1024*i} lds", f"W{nt}")
        k(f"  s_add_u32 m0, s9, {nt*20480+4096}\n  s_add_u32 s10, s10, 4096")
        vm.issue(f"  buffer_load_dwordx4 v3, s[36:39], s10 offen lds", f"W{nt}")
    dma_w(0)
    for ks in range(KS):
        for rt in range(RT):
            off = rt * 20480 + ks * 1024
            if off % 4096 == 0 or True:
                k(f"  s_add_u32 s10, s7, {off & ~4095}")
            vm.issue(f"  buffer_load_dwordx4 {XR(rt, ks)}, v3, s[36:39], s10 offen offset:{off & 4095}", f"X{ks}")
    early = 2 if big else NT - 1
    for nt in range(1, early + 1): dma_w(nt)
    k(f"  s_mul_i32 s11, s5, {NT}")
    CS = 64
    HR = 64
    CK1, CONE = 8, 10
    k(f"  v_mov_b32 v{CK1}, {f32(K1)}\n  v_mov_b32 v{CK1+1}, {f32(K1)}\n  v_mov_b32 v{CONE}, 1.0\n  v_mov_b32 v{CONE+1}, 1.0")
    def tile_off(nt, sreg, scale_s, scale_p):
        k(f"  s_add_u32 s12, s11, {nt}\n  s_lshr_b32 s13, s12, 1\n  s_mul_i32 s13, s13, {scale_s}\n  s_and_b32 s12, s12, 1\n  s_mul_i32 s12, s12, {scale_p}\n  s_add_u32 s{sreg}, s12, s13")
    if which in (1, 3):
        k("  v_lshlrev_b32 v4, 5, v7")
        for nt in range(NT):
            tile_off(nt, 14, 128, 16)
            k(f"  s_add_u32 s14, s14, {WS_CS1 if which == 1 else WS_CS3}")
            vm.issue(f"  buffer_load_dwordx4 v[{CS+4*nt}:{CS+4*nt+3}], v4, s[36:39], s14 offen", "CS")
    for nt in range(NT): tile_off(nt, 48 + nt, 1024, 8)
    AL = 12; BE = 14
    ALS = [12, 92]; BES = [14, 94]
    if which == 2:
        k(f"  s_mul_i32 s15, s6, 20480\n  s_add_u32 s16, s15, {WS_HF}\n  s_add_u32 s17, s15, {WS_X1F}")
        for nt in range(NT):
            k(f"  s_add_u32 s14, s16, s{48+nt}")
            vm.issue(f"  buffer_load_dwordx2 v[{HR+2*nt}:{HR+2*nt+1}], v3, s[36:39], s14 offen", "H")
        k(f"  s_lshl_b32 s14, s6, 7\n  s_add_u32 s14, s14, {WS_ST1}\n  v_lshlrev_b32 v4, 3, v6")
        vm.issue("  buffer_load_dwordx2 v[96:97], v4, s[36:39], s14 offen", "ST")
    if which == 3:
        k("  v_lshlrev_b32 v4, 6, v6\n  v_lshl_add_u32 v4, v7, 4, v4")
        k(f"  s_lshl_b32 s14, s6, 10\n  s_add_u32 s14, s14, {WS_ST2}")
        for rt in range(RT): vm.issue(f"  buffer_load_dwordx4 v[{96+4*rt}:{99+4*rt}], v4, s[36:39], s14 offen offset:{1024*rt}", "ST")
        k(f"  s_mul_i32 s17, s6, {48*1024}\n  s_add_u32 s17, s17, {WS_GF}")
    if which == 1:
        k("  s_lshr_b32 s12, s5, 1\n  s_lshr_b32 s13, s12, 1\n  s_add_u32 s13, s13, 1\n  s_sub_u32 s14, 0, s13\n  s_and_b32 s12, s12, 1\n  s_cmp_eq_u32 s12, 0\n  s_cselect_b32 s13, s13, s14")
        k("  s_lshl_b32 s12, s6, 4\n  s_add_u32 s12, s12, s13\n  v_add_u32 v4, s12, v6")
        k("  v_cmp_gt_u32 s[60:61], 0x800, v4" if False else "  s_movk_i32 s12, 0x800\n  v_cmp_gt_u32 s[60:61], s12, v4")
        k("  v_and_b32 v4, 0x7ff, v4\n  v_lshrrev_b32 v5, 4, v4\n  s_movk_i32 s12, 20480\n  v_mul_lo_u32 v5, s12, v5\n  v_and_b32 v4, 15, v4\n  v_lshl_add_u32 v5, v4, 4, v5\n  v_lshl_add_u32 v5, v7, 8, v5")
        k("  v_mov_b32 v96, 0\n  v_mov_b32 v97, 0")
    pre = []
    if which == 2:
        pre.append(vm.wait_text("ST"))
        pre += ["  v_mov_b32 v98, v97", "  v_mov_b32 v99, v97", "  v_mov_b32 v97, v96", "  v_mov_b32 v100, 0", "  v_mov_b32 v101, 0"]
        for nt in range(NT):
            for h in range(2):
                o = 74 + 4*nt + 2*h; r = HR + 2*nt + h
                pre += [f"  v_lshlrev_b32 v{o}, 16, v{r}", f"  v_and_b32 v{o+1}, s40, v{r}",
                        f"  v_pk_add_f32 v[{o}:{o+1}], v[{o}:{o+1}], v[96:97] neg_lo:[0,1] neg_hi:[0,1]",
                        f"  v_cvt_pk_bf16_f32 v{r}, v{o}, v{o+1}", f"  v_lshlrev_b32 v{o}, 16, v{r}", f"  v_and_b32 v{o+1}, s40, v{r}",
                        f"  v_pk_mul_f32 v[{o}:{o+1}], v[{o}:{o+1}], v[98:99]",
                        f"  v_cvt_pk_bf16_f32 v{r}, v{o}, v{o+1}", f"  v_lshlrev_b32 v{o}, 16, v{r}", f"  v_and_b32 v{o+1}, s40, v{r}"]
    if which == 3:
        pre.append(vm.wait_text("ST"))
        for rt in range(RT):
            b = 96 + 4*rt
            pre += [f"  v_add_f32 v{b}, v{b}, v{b+2}", f"  v_add_f32 v{b+1}, v{b+1}, v{b+3}"]
            red_q(pre, b, b+2); red_q(pre, b+1, b+2)
            ln_scalars(pre, b, b+1, b+2, ALS[rt], b+3)
            pre += [f"  v_mov_b32 v{ALS[rt]+1}, v{ALS[rt]}", f"  v_mul_f32 v{BES[rt]}, v{b+2}, v{ALS[rt]}", f"  v_mov_b32 v{BES[rt]+1}, v{BES[rt]}"]
    def stats1():
        o = []
        red_q(o, 96, 98); red_q(o, 97, 98)
        ln_scalars(o, 96, 97, 98, 99, 100)
        o += ["  v_sub_f32 v96, v96, v98", "  v_mul_f32 v96, v96, v99", "  v_mul_f32 v97, v97, v99", "  v_mul_f32 v97, v97, v99"]
        ln_from_mv(o, 96, 97, 101, 102, 100)
        o += ["  v_mul_f32 v12, v99, v102", "  v_mov_b32 v13, v12", "  v_fma_f32 v14, v98, v99, v101", "  v_mul_f32 v14, v14, v102", "  v_mov_b32 v15, v14"]
        return o
    def epi(nt):
        o = []
        for rt in range(RT):
            a = ACC + (nt & 1) * 4 * RT + 4 * rt
            T = 104 + 4 * rt; D = 112 + 2 * rt + 4 * (nt & 1)
            if which in (1, 3):
                gelu_pair(o, a, CS + 4*nt, ALS[rt], BES[rt], T, D, CK1, CONE)
                gelu_pair(o, a + 2, CS + 4*nt + 2, ALS[rt], BES[rt], T + 4 if RT == 1 else T, D + 1, CK1, CONE)
                if which == 1:
                    o += [f"  v_cndmask_b32 v{D}, 0, v{D}, s[60:61]", f"  v_cndmask_b32 v{D+1}, 0, v{D+1}, s[60:61]"]
                    o += [f"  s_add_u32 s14, s{48+nt}, {WS_ZF}", f"@ST  buffer_store_dwordx2 v[{D}:{D+1}], v5, s[36:39], s14 offen"]
                else:
                    o += [f"  s_add_u32 s14, s{48+nt}, s17", f"  s_add_u32 s14, s14, {rt*48*1024}", f"@ST  buffer_store_dwordx2 v[{D}:{D+1}], v3, s[36:39], s14 offen"]
            else:
                for h in range(2):
                    t = T + 2*h; x = 74 + 4*nt + 2*h
                    o += [f"  v_cvt_pk_bf16_f32 v{D+h}, v{a+2*h}, v{a+2*h+1}", f"  v_lshlrev_b32 v{t}, 16, v{D+h}", f"  v_and_b32 v{t+1}, s40, v{D+h}",
                          f"  v_pk_add_f32 v[{t}:{t+1}], v[{t}:{t+1}], v[{x}:{x+1}]", f"  v_cvt_pk_bf16_f32 v{D+h}, v{t}, v{t+1}",
                          f"  v_dot2_f32_bf16 v100, v{D+h}, s41, v100", f"  v_dot2_f32_bf16 v101, v{D+h}, v{D+h}, v101"]
                o += [f"  s_add_u32 s14, s{48+nt}, s17", f"@ST  buffer_store_dwordx2 v[{D}:{D+1}], v3, s[36:39], s14 offen"]
        return o
    steps = [(nt, ks) for nt in range(NT) for ks in range(KS)]
    NSTEP = len(steps)
    def rd(i):
        nt, ks = steps[i]; r = WB + 4 * (i % WR); off = (nt * KS + ks) * 1024
        return f"@RD{off}:{r}"
    def emit(lst):
        for s in lst:
            if s.startswith("@ST"): vm.issue(s[3:], "S")
            elif s.startswith("@RD"):
                off, r = map(int, s[3:].split(":"))
                base = "v3" if off < 65536 else "v1"
                k(f"  ds_read_b128 v[{r}:{r+3}], {base} offset:{off & 65535}")
            elif s.startswith("@BAR"):
                nt = int(s[4:]); k(vm.wait_text(f"W{nt}")); k("  s_barrier")
            elif s.startswith("@XW"): k(vm.wait_text(f"X{int(s[3:])}"))
            elif s.startswith("@VW"): k(vm.wait_text(s[3:]))
            elif s.startswith("@DMA"): dma_w(int(s[4:]))
            else: k(s)
    k("  v_add_u32 v1, 0x10000, v3")
    emit(["@BAR0"] + [rd(i) for i in range(PD)])
    for nt in range(NT):
        st = []
        for ks in range(KS):
            i = nt * KS + ks
            j = i + PD
            if j < NSTEP:
                if j % KS == 0: st.append(f"@BAR{j // KS}")
                st.append(rd(j))
            st.append(f"  s_waitcnt lgkmcnt({min(PD, NSTEP - 1 - i)})")
            if nt == 0: st.append(f"@XW{ks}")
            for rt in range(RT):
                a = ACC + (nt & 1) * 4 * RT + 4 * rt; w = WB + 4 * (i % WR)
                c = "0" if ks == 0 else f"v[{a}:{a+3}]"
                st.append(f"  v_mfma_f32_16x16x32_bf16 v[{a}:{a+3}], v[{w}:{w+3}], {XR(rt, ks)}, {c}")
            if nt == 0 and which == 1:
                x = 120 + 4*ks
                for j2 in range(4): st.append(f"  v_dot2_f32_bf16 v96, v{x+j2}, s41, v96")
                for j2 in range(4): st.append(f"  v_dot2_f32_bf16 v97, v{x+j2}, v{x+j2}, v97")
            if big and nt == 0 and ks in (8, 12, 16): st.append(f"@DMA{3 + (ks - 8) // 4}")
        fill = []
        if nt == 0: fill = list(pre)
        else:
            if nt == 1:
                if which == 1: fill += stats1()
                if which in (1, 3): fill.append("@VWCS")
            fill += epi(nt - 1)
        if nt == 0 and fill:
            fill = ["@VWST"] + fill[1:]
            if which == 2: fill = ["@VWST"] + fill[1:]
            st = merge(st, fill, per=4, start=KS * RT - 10)
        else:
            st = merge(st, fill, per=3 if not big else 2, start=3)
        emit(st)
    emit(epi(NT - 1))
    if which == 1:
        k("  s_cmp_lg_u32 s5, 0\n  s_cbranch_scc1 G1_done")
        k(f"  s_lshl_b32 s14, s6, 7\n  s_add_u32 s14, s14, {WS_ST1}\n  v_lshlrev_b32 v4, 3, v6")
        k("  buffer_store_dwordx2 v[98:99], v4, s[36:39], s14 offen")
    if which == 2:
        o = []; red_q(o, 100, 102); red_q(o, 101, 102); emit(o)
        k(f"  s_lshl_b32 s14, s6, 10\n  s_lshl_b32 s12, s5, 3\n  s_add_u32 s14, s14, s12\n  s_add_u32 s14, s14, {WS_ST2}\n  v_lshlrev_b32 v4, 6, v6")
        k("  buffer_store_dwordx2 v[100:101], v4, s[36:39], s14 offen")
    k(f"{pfx}_done:\n  s_endpgm")
    return k

def gen_g4():
    NT = 5; KS = 48; CH = 8; NCH = KS // CH; SL = 3; SLOT = NT * CH * 1024
    k = K("g4_kernel", 256, 256, SL * SLOT, vgpr=232, sgpr=80)
    vm = VM(k)
    prologue(k, "G4", False)
    k("  s_mov_b32 s44, s34\n  s_mov_b32 s45, s35\n  s_mov_b32 s46, %d\n  s_mov_b32 s47, 0x00020000" % ACT_BYTES)
    k("  s_lshl_b32 s6, s4, 2\n  s_add_u32 s6, s6, s3")
    k(f"  s_mul_i32 s7, s6, {48*1024}\n  s_add_u32 s7, s7, {WS_GF}")
    k(f"  s_lshl_b32 s9, s3, 11\n  s_mul_i32 s8, s5, {NT*KS*1024}\n  s_add_u32 s8, s8, s9\n  s_add_u32 s8, s8, {WS_W4P}")
    XB = 120
    WB = 16; ACC = 48
    def load_chunk(c):
        sl = c % SL
        for nt in range(NT):
            k(f"  s_add_u32 m0, s9, {sl*SLOT + nt*CH*1024}\n  s_add_u32 s10, s8, {(nt*KS + c*CH)*1024}")
            for i in range(2): vm.issue(f"  buffer_load_dwordx4 v3, s[36:39], s10 offen offset:{1024*i} lds", f"C{c}")
        for ks in range(CH):
            if ks % 4 == 0: k(f"  s_add_u32 s10, s7, {(c*CH+ks)*1024}")
            r = XB + (sl*CH + ks) * 4
            vm.issue(f"  buffer_load_dwordx4 v[{r}:{r+3}], v3, s[36:39], s10 offen offset:{(ks%4)*1024}", f"C{c}")
    load_chunk(0); load_chunk(1)
    k(f"  s_mul_i32 s11, s5, {NT}")
    for nt in range(NT):
        k(f"  s_add_u32 s12, s11, {nt}\n  s_lshr_b32 s13, s12, 1\n  s_and_b32 s12, s12, 1\n  s_lshl_b32 s12, s12, 3")
        k(f"  s_lshl_b32 s14, s13, 10\n  s_add_u32 s{48+nt}, s14, s12\n  s_lshl_b32 s14, s13, 6\n  s_add_u32 s{56+nt}, s14, s12")
    k(f"  s_mul_i32 s15, s6, 20480\n  s_add_u32 s16, s15, {WS_HF}\n  s_add_u32 s17, s15, {WS_X1F}")
    for nt in range(NT):
        k(f"  s_add_u32 s14, s16, s{48+nt}")
        vm.issue(f"  buffer_load_dwordx2 v[{68+2*nt}:{69+2*nt}], v3, s[36:39], s14 offen", "H")
        k(f"  s_add_u32 s14, s17, s{48+nt}")
        vm.issue(f"  buffer_load_dwordx2 v[{78+2*nt}:{79+2*nt}], v3, s[36:39], s14 offen", "H")
    k("  s_lshl_b32 s12, s6, 4\n  v_add_u32 v4, s12, v6\n  s_movk_i32 s12, 1280\n  v_mul_lo_u32 v4, s12, v4\n  v_lshl_add_u32 v4, v7, 4, v4")
    k("  v_add_u32 v1, 0x10000, v3")
    steps = [(c, ks, nt) for c in range(NCH) for ks in range(CH) for nt in range(NT)]
    NSTEP = len(steps); PER = CH * NT
    def rd(i):
        c, ks, nt = steps[i]; off = (c % SL) * SLOT + (nt * CH + ks) * 1024; r = WB + 4 * (i % WR)
        k(f"  ds_read_b128 v[{r}:{r+3}], {'v3' if off < 65536 else 'v1'} offset:{off & 65535}")
    def bar(c):
        k(vm.wait_text(f"C{c}")); k("  s_barrier")
    bar(0)
    for i in range(PD): rd(i)
    for i, (c, ks, nt) in enumerate(steps):
        j = i + PD
        if j < NSTEP:
            if j % PER == 0: bar(j // PER)
            rd(j)
        k(f"  s_waitcnt lgkmcnt({min(PD, NSTEP - 1 - i)})")
        a = ACC + 4 * nt; w = WB + 4 * (i % WR); x = XB + ((c % SL) * CH + ks) * 4
        cc = "0" if (c == 0 and ks == 0) else f"v[{a}:{a+3}]"
        k(f"  v_mfma_f32_16x16x32_bf16 v[{a}:{a+3}], v[{w}:{w+3}], v[{x}:{x+3}], {cc}")
        if ks == 0 and nt == 0 and c + 2 < NCH:
            if c >= 1: k("  s_barrier")
            load_chunk(c + 2)
    k(vm.wait_text("H"))
    for nt in range(NT):
        a = ACC + 4 * nt
        for h in range(2):
            t = 88 + 4*h; D = 96 + 2*nt + h; hr = 68 + 2*nt + h; xr = 78 + 2*nt + h
            k(f"  v_cvt_pk_bf16_f32 v{D}, v{a+2*h}, v{a+2*h+1}\n  v_lshlrev_b32 v{t}, 16, v{D}\n  v_and_b32 v{t+1}, s40, v{D}")
            k(f"  v_lshlrev_b32 v{t+2}, 16, v{xr}\n  v_and_b32 v{t+3}, s40, v{xr}\n  v_pk_add_f32 v[{t}:{t+1}], v[{t}:{t+1}], v[{t+2}:{t+3}]")
            k(f"  v_cvt_pk_bf16_f32 v{D}, v{t}, v{t+1}\n  v_lshlrev_b32 v{t}, 16, v{D}\n  v_and_b32 v{t+1}, s40, v{D}")
            k(f"  v_lshlrev_b32 v{t+2}, 16, v{hr}\n  v_and_b32 v{t+3}, s40, v{hr}\n  v_pk_add_f32 v[{t}:{t+1}], v[{t}:{t+1}], v[{t+2}:{t+3}]")
            k(f"  v_cvt_pk_bf16_f32 v{D}, v{t}, v{t+1}")
        k(f"  buffer_store_dwordx2 v[{96+2*nt}:{97+2*nt}], v4, s[44:47], s{56+nt} offen")
    k("G4_done:\n  s_endpgm")
    return k

def gen_all():
    return [gen_g123(1), gen_g123(2), gen_g123(3), gen_g4()]
```

```python
from asmfw import K
from layout import *

LOG2E = "0x3fb8aa3b"

def cmul(k, d, x, w):
    k(f"  v_pk_mul_f32 v[{d}:{d+1}], v[{x}:{x+1}], v[{w}:{w+1}] op_sel:[0,0] op_sel_hi:[1,0]")
    k(f"  v_pk_fma_f32 v[{d}:{d+1}], v[{x}:{x+1}], v[{w}:{w+1}], v[{d}:{d+1}] op_sel:[1,1,0] op_sel_hi:[0,1,1] neg_lo:[1,0,0]")

WREG = 8704
TB = 3 * WREG
PREP_LDS = TB + 1536 + 16

def gen_prep():
    k = K("prep_kernel", 896, 256, PREP_LDS, vgpr=96, sgpr=64)
    k("  s_cmp_ge_u32 s2, 896\n  s_cbranch_scc1 P_done")
    k("  s_load_dwordx16 s[16:31], s[0:1], 0")
    k(f"  s_load_dwordx2 s[32:33], s[0:1], {KA_WS}")
    k("  v_lshrrev_b32 v1, 6, v0\n  v_and_b32 v2, 63, v0")
    k("  v_readfirstlane_b32 s3, v1")
    k("  s_mov_b32 s40, 0xffff0000")
    k("  s_cmp_ge_u32 s2, 640\n  s_cbranch_scc1 P_ln")
    k("  s_and_b32 s4, s2, 7\n  s_mul_i32 s4, s4, 80\n  s_lshr_b32 s5, s2, 3\n  s_add_u32 s4, s4, s5")
    k("  s_getpc_b64 s[6:7]\nP_pc:\n  s_add_u32 s6, s6, P_tab-P_pc\n  s_addc_u32 s7, s7, 0")
    k("  v_lshlrev_b32 v3, 4, v0")
    k("  global_load_dwordx4 v[80:83], v3, s[6:7]\n  global_load_dword v84, v3, s[6:7] offset:16")
    k("  s_waitcnt lgkmcnt(0)")
    k("  s_cmp_eq_u32 s3, 3\n  s_cbranch_scc1 P_k_wait")
    k("  s_mul_i32 s5, s4, 384\n  v_lshl_add_u32 v4, v0, 1, s5")
    for i, sb in enumerate((18, 20, 22, 24, 26, 28)):
        k(f"  global_load_ushort v{10+i}, v4, s[{sb}:{sb+1}]")
    k("  s_lshr_b32 s8, s4, 1\n  s_lshl_b32 s8, s8, 2\n  s_load_dword s9, s[30:31], s8")
    k("  s_and_b32 s10, s4, 1\n  s_lshl_b32 s10, s10, 4")
    k(f"  s_mul_i32 s11, s3, {WREG}")
    k("  v_lshl_add_u32 v5, v2, 2, s11")
    k("  v_and_b32 v6, 31, v2\n  v_mul_u32_u24 v6, 272, v6\n  v_lshrrev_b32 v7, 5, v2\n  v_lshl_add_u32 v6, v7, 4, v6\n  v_add_u32 v6, s11, v6")
    k("  s_waitcnt lgkmcnt(0)")
    k("  s_lshr_b32 s9, s9, s10\n  s_lshl_b32 s9, s9, 16")
    k(f"  v_mov_b32 v8, {LOG2E}\n  v_mul_f32 v8, s9, v8\n  v_exp_f32 v8, v8\n  v_cvt_pk_bf16_f32 v8, v8, v8\n  v_lshlrev_b32 v8, 16, v8")
    k("  s_waitcnt vmcnt(0)")
    for i in range(6): k(f"  v_lshlrev_b32 v{10+i}, 16, v{10+i}")
    k("  v_mul_f32 v10, v8, v10\n  v_mul_f32 v11, v8, v11\n  v_mul_f32 v12, v8, v12\n  v_mul_f32 v13, v8, v13")
    k(f"  v_mul_f32 v10, {LOG2E}, v10\n  v_mul_f32 v11, 0.15915494, v11")
    for dst, e in ((16, None), (18, "0x41000000"), (20, "0x43800000")):
        if e is None:
            k(f"  v_exp_f32 v22, v10\n  v_fract_f32 v23, v11")
        else:
            k(f"  v_mul_f32 v22, {e}, v10\n  v_mul_f32 v23, {e}, v11\n  v_exp_f32 v22, v22\n  v_fract_f32 v23, v23")
        k(f"  v_cos_f32 v{dst}, v23\n  v_sin_f32 v{dst+1}, v23")
        k(f"  v_mul_f32 v{dst}, v22, v{dst}\n  v_mul_f32 v{dst+1}, v22, v{dst+1}")
    cmul(k, 24, 14, 12)
    def put(reg, row, neg):
        k(f"  v_cvt_pk_bf16_f32 v9, v{reg}, {'-' if neg else ''}v{reg+1}\n  ds_write_b32 v5, v9 offset:{row*272}")
    put(24, 0, True)
    for r in range(1, 8):
        cmul(k, 24 + 2*r, 24 + 2*(r-1), 16); put(24 + 2*r, r, True)
    for i, r in enumerate((0, 2, 4, 6)):
        cmul(k, 40 + 2*i, 24 + 2*r, 20); put(40 + 2*i, 8 + i, True)
    cmul(k, 48, 40, 20); put(48, 12, True)
    cmul(k, 50, 44, 20); put(50, 13, True)
    cmul(k, 52, 48, 20); put(52, 14, True)
    cmul(k, 54, 50, 20); put(54, 15, True)
    prev = 52
    for i in range(5):
        dst = 24 + 2*i
        cmul(k, dst, prev, 20); put(dst, 16 + i, True); prev = dst
    k("  s_waitcnt lgkmcnt(0)")
    for s in range(8): k(f"  ds_read_b128 v[{40+4*s}:{43+4*s}], v6 offset:{32*s}")
    k("  v_mov_b32 v9, 0x3f80\n  ds_write_b32 v5, v9 offset:0")
    put(18, 1, False)
    prev = 18
    for j in range(2, 32):
        dst = 24 + 2*(j & 1)
        cmul(k, dst, prev, 18); put(dst, j, False); prev = dst
    k("  s_waitcnt lgkmcnt(0)")
    for s in range(4): k(f"  ds_read_b128 v[{8+4*s}:{11+4*s}], v6 offset:{32*s}")
    for s in range(4, 8): k(f"  ds_read_b128 v[{72+4*(s-4) if s < 6 else 88+4*(s-6)}:{75+4*(s-4) if s < 6 else 91+4*(s-6)}], v6 offset:{32*s}")
    breg = [8, 12, 16, 20, 72, 76, 88, 92]
    for s in range(8):
        k(f"  s_waitcnt lgkmcnt({7-s})")
        c = "0" if s == 0 else "v[24:39]"
        k(f"  v_mfma_f32_32x32x16_bf16 v[24:39], v[{40+4*s}:{43+4*s}], v[{breg[s]}:{breg[s]+3}], {c}")
    k("  v_and_b32 v6, 31, v2\n  v_mul_u32_u24 v6, 96, v6\n  v_lshl_add_u32 v6, v7, 4, v6\n  v_add_u32 v6, s11, v6")
    for g in range(3): k(f"  ds_write_b128 v6, v[{24+4*g}:{27+4*g}] offset:{32*g}")
    k("P_k_wait:")
    k("  s_waitcnt lgkmcnt(0)\n  s_barrier")
    k("  s_cmp_eq_u32 s3, 3\n  s_cbranch_scc1 P_k_zero")
    for w in range(3): k(f"  ds_read_b128 v[{8+4*w}:{11+4*w}], v3 offset:{w*WREG}")
    k("  v_lshlrev_b32 v4, 3, v0")
    k("  s_waitcnt lgkmcnt(0)")
    for i in range(4): k(f"  v_add_f32 v{8+i}, v{8+i}, v{12+i}\n  v_add_f32 v{8+i}, v{8+i}, v{16+i}")
    k("  v_cvt_pk_bf16_f32 v8, v8, v9\n  v_cvt_pk_bf16_f32 v9, v10, v11")
    k(f"  ds_write_b64 v4, v[8:9] offset:{TB}")
    k("  s_branch P_k_gather")
    k("P_k_zero:")
    k(f"  v_mov_b32 v8, 0\n  v_mov_b32 v4, {TB+1536}\n  ds_write_b32 v4, v8")
    k("P_k_gather:")
    k("  s_waitcnt vmcnt(0)")
    for i in range(4):
        k(f"  v_and_b32 v{20+2*i}, 0xffff, v{80+i}\n  v_lshrrev_b32 v{21+2*i}, 16, v{80+i}")
    k("  v_and_b32 v28, 0xffff, v84")
    k(f"  s_mul_i32 s8, s4, {KG_STRIDE}\n  v_add_u32 v4, s8, v3")
    k(f"  s_add_u32 s34, s32, {WS_KG1}\n  s_addc_u32 s35, s33, 0\n  s_add_u32 s36, s32, {WS_KG0}\n  s_addc_u32 s37, s33, 0")
    k("  s_waitcnt lgkmcnt(0)\n  s_barrier")
    for i in range(9): k(f"  ds_read_u16 v{30+i}, v{20+i} offset:{TB}")
    k("  s_waitcnt lgkmcnt(0)")
    for i in range(4):
        k(f"  v_lshl_or_b32 v{40+i}, v{31+2*i}, 16, v{30+2*i}\n  v_lshl_or_b32 v{44+i}, v{32+2*i}, 16, v{31+2*i}")
    k("  global_store_dwordx4 v4, v[40:43], s[34:35]\n  global_store_dwordx4 v4, v[44:47], s[36:37]")
    k("  v_mov_b32 v48, 0\n  v_mov_b32 v49, 0\n  v_mov_b32 v50, 0\n  v_mov_b32 v51, 0\n  v_add_u32 v4, 4096, v4")
    k("  s_cmp_lg_u32 s3, 0\n  s_cbranch_scc1 P_done")
    k("  v_cmp_eq_u32 vcc, 0, v0\n  s_and_saveexec_b64 s[38:39], vcc")
    k("  global_store_dwordx4 v4, v[48:51], s[34:35]\n  global_store_dwordx4 v4, v[48:51], s[36:37]")
    k("  s_branch P_done")
    k("P_ln:")
    k("  s_sub_u32 s4, s2, 640\n  s_and_b32 s5, s4, 7\n  s_lshl_b32 s5, s5, 5\n  s_lshr_b32 s4, s4, 3\n  s_add_u32 s4, s4, s5")
    k("  v_lshrrev_b32 v3, 5, v0\n  v_and_b32 v4, 31, v0")
    k("  v_mul_u32_u24 v5, 1280, v3\n  v_lshl_add_u32 v5, v4, 3, v5\n  s_mul_i32 s5, s4, 10240\n  v_add_u32 v5, s5, v5")
    k("  v_mul_u32_u24 v6, 1344, v3\n  v_lshl_add_u32 v6, v4, 3, v6")
    k("  s_waitcnt lgkmcnt(0)")
    for i in range(5): k(f"  global_load_dwordx2 v[{10+2*i}:{11+2*i}], v5, s[16:17] offset:{256*i}")
    for i in range(5):
        k(f"  s_waitcnt vmcnt({4-i})")
        for h in range(2):
            r = 10 + 2*i + h; o = 20 + 4*i + 2*h
            k(f"  v_lshlrev_b32 v{o}, 16, v{r}\n  v_and_b32 v{o+1}, s40, v{r}")
    def reduce32(r, t):
        for sh in (8, 4, 2, 1): k(f"  v_add_f32_dpp v{r}, v{r}, v{r} row_ror:{sh} row_mask:0xf bank_mask:0xf")
        k(f"  v_mov_b32 v{t}, v{r}\n  v_permlane16_swap_b32 v{r}, v{t}\n  v_add_f32 v{r}, v{r}, v{t}")
    k("  v_pk_add_f32 v[40:41], v[20:21], v[22:23]")
    for i in range(2, 10): k(f"  v_pk_add_f32 v[40:41], v[40:41], v[{20+2*i}:{21+2*i}]")
    k("  v_add_f32 v40, v40, v41")
    reduce32(40, 41)
    k("  v_mul_f32 v40, 0x3acccccd, v40")
    k("  v_mov_b32 v41, v40\n  v_mov_b32 v42, 0\n  v_mov_b32 v43, 0")
    for i in range(10):
        k(f"  v_pk_add_f32 v[44:45], v[{20+2*i}:{21+2*i}], v[40:41] neg_lo:[0,1] neg_hi:[0,1]\n  v_pk_fma_f32 v[42:43], v[44:45], v[44:45], v[42:43]")
    k("  v_add_f32 v42, v42, v43")
    reduce32(42, 43)
    k("  v_mul_f32 v42, 0x3acccccd, v42")
    k("  v_cvt_pk_bf16_f32 v44, v40, v42\n  v_lshlrev_b32 v40, 16, v44\n  v_and_b32 v42, s40, v44\n  v_mov_b32 v41, v40")
    k("  v_add_f32 v42, 0x3727c5ac, v42\n  v_cvt_pk_bf16_f32 v42, v42, v42\n  v_lshlrev_b32 v42, 16, v42")
    k("  v_sqrt_f32 v42, v42\n  v_cvt_pk_bf16_f32 v42, v42, v42\n  v_lshlrev_b32 v42, 16, v42\n  v_rcp_f32 v42, v42\n  v_mov_b32 v43, v42")
    for i in range(10):
        o = 20 + 2*i
        k(f"  v_pk_add_f32 v[{o}:{o+1}], v[{o}:{o+1}], v[40:41] neg_lo:[0,1] neg_hi:[0,1]")
        k(f"  v_cvt_pk_bf16_f32 v44, v{o}, v{o+1}\n  v_lshlrev_b32 v{o}, 16, v44\n  v_and_b32 v{o+1}, s40, v44")
        k(f"  v_pk_mul_f32 v[{o}:{o+1}], v[{o}:{o+1}], v[42:43]")
        k(f"  v_cvt_pk_bf16_f32 v{10+i}, v{o}, v{o+1}")
    for i in range(5): k(f"  ds_write_b64 v6, v[{10+2*i}:{11+2*i}] offset:{256*i}")
    k("  v_bfe_u32 v7, v2, 2, 2\n  v_mul_u32_u24 v7, 1344, v7\n  v_lshrrev_b32 v8, 4, v2\n  v_lshl_add_u32 v7, v8, 5, v7\n  v_and_b32 v8, 3, v2\n  v_lshl_add_u32 v7, v8, 3, v7")
    k("  s_lshl_b32 s6, s3, 7\n  v_add_u32 v7, s6, v7")
    k(f"  s_movk_i32 s7, {UT_STRIDE}\n  v_mul_lo_u32 v8, s7, v0\n  s_lshl_b32 s5, s4, 4\n  v_add_u32 v8, s5, v8")
    k(f"  s_add_u32 s34, s32, {WS_UT}\n  s_addc_u32 s35, s33, 0")
    k("  s_waitcnt lgkmcnt(0)\n  s_barrier")
    for i in range(3):
        if i == 2: k("  s_cmp_ge_u32 s3, 2\n  s_cbranch_scc1 P_done")
        k(f"  ds_read_b64_tr_b16 v[{20+4*i}:{21+4*i}], v7 offset:{512*i}\n  ds_read_b64_tr_b16 v[{22+4*i}:{23+4*i}], v7 offset:{512*i+4*1344}")
        k("  s_waitcnt lgkmcnt(0)")
        k(f"  global_store_dwordx4 v8, v[{20+4*i}:{23+4*i}], s[34:35]")
        k(f"  v_add_u32 v8, {256*UT_STRIDE}, v8")
    k("P_done:\n  s_endpgm")
    tab = ktab_offsets()
    k.tail.append(".p2align 6\nP_tab:")
    for i in range(0, len(tab), 16):
        k.tail.append("  .short " + ", ".join(str(x) for x in tab[i:i+16]))
    return k
```

```python
MB = 1 << 20
L = 2048; D = 640; NS = 192; F = 1536
UT_STRIDE = 4352
KG_STRIDE = 4112
WS_UT = 0
WS_KG1 = 3 * MB
WS_KG0 = 6 * MB
WS_HF = 9 * MB
WS_ZF = 12 * MB
WS_X1F = 15 * MB
WS_GF = 18 * MB
WS_W1P = 25 * MB
WS_W2P = 26 * MB
WS_W3P = 27 * MB
WS_W4P = 29 * MB
WS_CS1 = 31 * MB
WS_CS3 = 31 * MB + 65536
WS_ST1 = 31 * MB + 2 * 65536
WS_ST2 = 31 * MB + 4 * 65536
ACT_BYTES = L * D * 2
GF_BYTES = L * F * 2
KA_X = 0; KA_ARE = 8; KA_AIM = 16; KA_BRE = 24; KA_BIM = 32; KA_CRE = 40; KA_CIM = 48; KA_LDT = 56; KA_DSK = 64
KA_BX = 72; KA_W1 = 80; KA_W2 = 88; KA_W3 = 96; KA_W4 = 104; KA_OUT = 112; KA_DBG = 120; KA_WS = 128

import struct
def bf16_round_int(l):
    u = struct.unpack("<I", struct.pack("<f", float(l)))[0]
    u = (u + 0x7FFF + ((u >> 16) & 1)) & 0xFFFF0000
    return int(struct.unpack("<f", struct.pack("<I", u))[0])

ROWS = list(range(8)) + [256, 258, 260, 262, 512, 516, 768, 772, 1024, 1280, 1536, 1792, 2048]
def k_lut():
    lut = {}
    for ri, rv in enumerate(ROWS):
        for c in range(32):
            lut.setdefault(rv + 8 * c, (ri, c))
    return lut
def ktab_offsets():
    lut = k_lut(); out = []
    for p in range(2064):
        lag = 2047 - p
        if lag < 0: out.append(1536)
        else:
            ri, c = lut[bf16_round_int(lag)]
            out.append(2 * (24 * c + ri))
    return out
```

```python
import sys
from asmfw import emit_file
import k_prep
hdr = "".join(l for l in open("sequential_preLN__ssm_conv_s4__mixer_s_mlp__prompt.s.ref").readlines() if l.startswith(";") and "@launch" not in l)
ks = [k_prep.gen_prep()]
try:
    import k_conv; ks.append(k_conv.gen_conv())
    import k_gemm; ks += k_gemm.gen_all()
except ImportError as e:
    print("missing", e, file=sys.stderr)
out = sys.argv[1] if len(sys.argv) > 1 else "sequential_preLN__ssm_conv_s4__mixer_s_mlp__prompt.s"
open(out, "w").write(emit_file(ks, hdr))
```

```python
import re

TRANS = ("v_exp_f32", "v_log_f32", "v_rcp_f32", "v_rsq_f32", "v_sqrt_f32", "v_sin_f32", "v_cos_f32", "v_rcp_iflag_f32")
REG_RE = re.compile(r"(?<![\w.])(-?\|?)(abs\()?([vas])(\d+|\[(\d+):(\d+)\])")

def regs_of(op):
    out = []
    op = op.strip()
    if op in ("vcc", "vcc_lo", "vcc_hi"): return [("s", "vcc")]
    if op in ("exec", "exec_lo", "exec_hi"): return [("s", "exec")]
    if op == "m0": return [("s", "m0")]
    m = re.match(r"^-?(?:abs\()?\|?([vas])(?:(\d+)|\[(\d+):(\d+)\])\)?\|?$", op)
    if m:
        k = m.group(1)
        if m.group(2) is not None: out.append((k, int(m.group(2))))
        else: out += [(k, i) for i in range(int(m.group(3)), int(m.group(4)) + 1)]
    return out

def split_ops(s):
    ops, depth, cur = [], 0, ""
    for ch in s:
        if ch == "[": depth += 1
        if ch == "]": depth -= 1
        if ch == "," and depth == 0: ops.append(cur.strip()); cur = ""
        else: cur += ch
    if cur.strip(): ops.append(cur.strip())
    return ops

class Ins:
    def __init__(self, text):
        self.text = text
        t = text.split(";")[0].strip()
        self.is_label = t.endswith(":")
        self.is_dir = t.startswith(".") and not self.is_label
        self.empty = (t == "")
        self.mn = ""; self.wr = []; self.rd = []; self.cls = "none"; self.passes = 0; self.srcc = []; self.data = []
        self.dpp = False; self.lds_dma = False
        if self.is_label or self.is_dir or self.empty: return
        parts = t.split(None, 1)
        mn = parts[0]; self.mn = mn
        rest = parts[1] if len(parts) > 1 else ""
        ops = split_ops(rest)
        mods = ""
        if ops:
            last = ops[-1].split(None, 1)
            if len(last) > 1 and not last[0].endswith(":"):
                ops[-1] = last[0]; mods = last[1]
        self.mods = mods
        R = [regs_of(o) for o in ops]
        base = re.sub(r"_(e32|e64|dpp|sdwa)$", "", mn)
        self.base = base
        if mn.startswith("v_mfma"):
            self.cls = "mfma"; self.passes = 8 if "32x32x16" in mn else 4
            assert "32x32x16_bf16" in mn or "16x16x32_bf16" in mn, mn
            self.wr = R[0]; self.rd = R[1] + R[2] + R[3]; self.srcc = R[3]; self.srcab = R[1] + R[2]
        elif mn.startswith("v_"):
            self.cls = "valu"
            if base in TRANS: self.cls = "trans"
            if "_dpp" in mn or "row_" in mods or "quad_perm" in mods: self.dpp = True
            if base.startswith("v_cmp"):
                self.wr = R[0]; self.rd = sum(R[1:], [])
                if base.startswith("v_cmpx"): self.wr = self.wr + [("s", "exec")]
            elif base in ("v_readfirstlane_b32", "v_readlane_b32"):
                self.wr = R[0]; self.rd = sum(R[1:], [])
            elif base.startswith("v_permlane"):
                self.wr = R[0] + R[1]; self.rd = R[0] + R[1]
            elif base in ("v_add_co_u32", "v_sub_co_u32", "v_addc_co_u32", "v_subb_co_u32", "v_mad_u64_u32"):
                self.wr = R[0] + R[1]; self.rd = sum(R[2:], [])
            else:
                self.wr = R[0]; self.rd = sum(R[1:], [])
                if base in ("v_fmac_f32", "v_dot2c_f32_bf16", "v_pk_fmac_f16") or self.dpp or "_sdwa" in mn: self.rd = self.rd + R[0]
                if base == "v_cndmask_b32" and len(ops) == 3: self.rd = self.rd + [("s", "vcc")]
        elif mn.startswith("buffer_") or mn.startswith("global_"):
            self.cls = "vmem"
            if mn in ("buffer_wbl2", "buffer_inv"): pass
            elif " lds" in (" " + mods) or mn.startswith("global_load_lds"):
                self.lds_dma = True; self.rd = sum(R, []) + [("s", "m0")]
            elif "_load" in mn:
                self.wr = R[0]; self.rd = sum(R[1:], [])
                if "d16" in mn: self.rd = self.rd + R[0]
            elif "atomic" in mn:
                self.rd = sum(R, [])
                if "sc0" in mods: self.wr = R[0]
            else:
                self.rd = sum(R, [])
                self.data = R[0] if mn.startswith("buffer_") else R[1]
        elif mn.startswith("ds_"):
            self.cls = "ds"
            if "read" in mn or "permute" in mn or "swizzle" in mn:
                self.wr = R[0]; self.rd = sum(R[1:], [])
                if "d16" in mn: self.rd = self.rd + R[0]
            else: self.rd = sum(R, [])
        elif mn.startswith("s_"):
            self.cls = "salu"
            if mn.startswith("s_load") or mn.startswith("s_memtime") or mn.startswith("s_memrealtime") or mn.startswith("s_buffer_load"):
                self.cls = "smem"; self.wr = R[0]; self.rd = sum(R[1:], [])
            elif mn.startswith("s_cmp") or mn.startswith("s_cbranch") or mn in ("s_branch", "s_barrier", "s_waitcnt", "s_nop", "s_endpgm", "s_sleep", "s_setprio"):
                self.rd = sum(R, [])
            else:
                self.wr = R[0] if R else []; self.rd = sum(R[1:], [])
                if "saveexec" in mn: self.wr = self.wr + [("s", "exec")]
        else:
            raise ValueError("unknown instr " + text)
    def states(self):
        if self.is_label or self.is_dir or self.empty: return 0
        if self.mn == "s_nop": return int(self.text.split()[1], 0) + 1
        return 1

def need(prod, cons):
    n = 0
    pw = set(prod.wr); cr = set(cons.rd); cw = set(cons.wr)
    pv = {r for r in pw if r[0] in "va"}; ps = {r for r in pw if r[0] == "s"}
    isv = lambda i: i.cls in ("valu", "trans")
    if isv(prod):
        if cons.cls == "mfma" and pv & cr: n = max(n, 2)
        if cons.cls == "mfma" and ("s", "exec") in pw: n = max(n, 4)
        if isv(cons) and cons.dpp and pv & cr: n = max(n, 2)
        if isv(cons) and cons.dpp and ("s", "exec") in pw: n = max(n, 5)
        if cons.base.startswith("v_permlane") and pv & cr: n = max(n, 2)
        if cons.base in ("v_readfirstlane_b32", "v_readlane_b32") and pv & cr: n = max(n, 1)
        if cons.base in ("v_readfirstlane_b32", "v_readlane_b32", "v_writelane_b32") and (ps & cr or ("s", "exec") in pw): n = max(n, 4)
        if cons.cls == "vmem" and ps & cr: n = max(n, 5)
        if isv(cons) and ps & cr: n = max(n, 2)
        if cons.cls == "salu" and ps & cr: n = max(n, 1)
        if cons.cls == "smem" and ps & cr: n = max(n, 5)
        if prod.cls == "trans" and cons.cls != "trans" and cons.cls in ("valu", "mfma", "vmem", "ds") and pv & cr: n = max(n, 1 if cons.cls != "mfma" else 2)
        if ("_sdwa" in prod.mn or ("op_sel" in getattr(prod, "mods", "") and not prod.mn.startswith("v_pk_"))) and isv(cons) and pv & (cr | cw): n = max(n, 1)
        if prod.base.startswith("v_dot2") and pv & (cr | cw):
            same = cons.base == prod.base
            if not same: n = max(n, 3)
            else:
                ops = split_ops(cons.text.split(";")[0].split(None, 1)[1])
                ab = regs_of(ops[1]) + regs_of(ops[2].split()[0])
                if pv & set(ab): n = max(n, 3)
    if prod.cls == "mfma":
        P = prod.passes
        tab_ab = {4: 8, 8: 12}[P]; tab_part = {4: 6, 8: 10}[P]; war = {4: 3, 8: 7}[P]
        if cons.cls == "mfma":
            if pv & set(cons.srcab): n = max(n, tab_ab)
            if pv & set(cons.srcc):
                if not (cons.srcc == prod.wr and cons.passes == P): n = max(n, tab_part)
            elif pv & cw: n = max(n, tab_part)
        elif cons.cls in ("valu", "trans", "vmem", "ds"):
            if pv & (cr | cw): n = max(n, tab_ab)
            if isv(cons) and set(prod.srcc) & cw: n = max(n, war)
    if prod.cls == "vmem" and prod.data and len(prod.data) >= 3:
        if set(prod.data) & cw: n = max(n, 2 if isv(cons) else 1)
    if prod.cls == "salu" and ("s", "m0") in pw and (cons.lds_dma or "addtid" in cons.mn): n = max(n, 1)
    return n

import os
STAMPS = bool(os.environ.get('STAMPS'))
STAMP_WS = 40 << 20
MAXD = 20
def hazard_pass(lines):
    out = []; hist = []
    for ln in lines:
        for text in ln.split("\n"):
            ins = Ins(text)
            if ins.cls != "none":
                req = 0; dist = 0
                for p in reversed(hist):
                    if dist >= MAXD: break
                    r = need(p, ins) - dist
                    req = max(req, r)
                    dist += p.states()
                while req > 0:
                    k = min(req, 16)
                    nop = Ins(f"  s_nop {k-1}"); out.append(nop.text); hist.append(nop); req -= k
                hist.append(ins)
                if len(hist) > 40: hist = hist[-40:]
            out.append(text)
    return out

class K:
    def __init__(self, name, grid, block, lds, vgpr=256, agpr=0, sgpr=96):
        self.name = name; self.grid = grid; self.block = block; self.lds = lds
        self.vgpr = vgpr; self.agpr = agpr; self.sgpr = sgpr
        self.lines = []; self.tail = []
    def __call__(self, s): self.lines.append(s)
    def label(self, l): self.lines.append(f"{l}:")
    def stamp(self, i, real=False):
        if not STAMPS: return
        self.lines.append(f"  s_waitcnt lgkmcnt(0)\n  {'s_memrealtime' if real else 's_memtime'} s[{80+2*i}:{81+2*i}]\n  s_waitcnt lgkmcnt(0)")
        self.sgpr = 102
    def stamp_out(self, kidx, wsreg=32, nw=4):
        if not STAMPS: return
        L = self.lines.append
        L("  s_waitcnt vmcnt(0) lgkmcnt(0)\n  s_memtime s[96:97]\n  s_memrealtime s[98:99]\n  s_waitcnt lgkmcnt(0)")
        L(f"  s_mov_b64 exec, 1\n  s_lshl_b32 s100, s2, {2 if nw == 4 else 3}\n  s_add_u32 s100, s100, s3\n  s_lshl_b32 s100, s100, 7\n  s_add_u32 s100, s100, {STAMP_WS + kidx * 524288}\n  v_mov_b32 v0, s100")
        for i in range(10):
            L(f"  v_mov_b32 v2, s{80+2*i}\n  v_mov_b32 v3, s{81+2*i}\n  global_store_dwordx2 v0, v[2:3], s[{wsreg}:{wsreg+1}] offset:{8*i}")
        L("  s_waitcnt vmcnt(0)")
    def body(self):
        hdr = [f".globl {self.name}", ".p2align 8", f".type {self.name},@function", f"{self.name}:"]
        return "\n".join(hdr + hazard_pass(self.lines) + self.tail)
    def kd(self):
        acc = (self.vgpr + 3) // 4 * 4
        nfv = acc + self.agpr if self.agpr else self.vgpr
        return f""".amdhsa_kernel {self.name}
  .amdhsa_next_free_vgpr {nfv}
  .amdhsa_next_free_sgpr {self.sgpr}
  .amdhsa_accum_offset {acc}
  .amdhsa_group_segment_fixed_size 0
  .amdhsa_kernarg_size 136
  .amdhsa_user_sgpr_count 2
  .amdhsa_user_sgpr_kernarg_segment_ptr 1
  .amdhsa_system_sgpr_workgroup_id_x 1
.end_amdhsa_kernel"""
    def launch(self):
        return f"; @launch kernel={self.name} grid=({self.grid},1,1) block=({self.block},1,1) lds={self.lds}"

def emit_file(kernels, header, launches=None):
    out = [header.rstrip("\n")]
    for k in (launches or kernels): out.append(k.launch())
    out.append('.amdgcn_target "amdgcn-amd-amdhsa--gfx950"')
    out.append(".text")
    for k in kernels: out.append(k.body())
    out.append('.section .rodata,"a"')
    for k in kernels:
        out.append(".p2align 6"); out.append(k.kd())
    return "\n".join(out) + "\n"
```

```python
from asmfw import K
from layout import *

CST = 4160
UOFF = 4 * CST
DREG = UOFF + 4608
CONV_LDS = 4 * DREG

def gen_conv():
    k = K("conv_kernel", 256, 256, CONV_LDS, vgpr=256, sgpr=80)
    k("  s_cmp_ge_u32 s2, 234\n  s_cbranch_scc1 C_done")
    k.stamp(0); k.stamp(7, True)
    k(f"  s_load_dwordx2 s[32:33], s[0:1], {KA_WS}")
    k(f"  s_load_dwordx2 s[16:17], s[0:1], {KA_X}\n  s_load_dwordx2 s[18:19], s[0:1], {KA_DSK}")
    k(f"  s_load_dwordx8 s[20:27], s[0:1], {KA_W1}")
    k("  v_lshrrev_b32 v1, 6, v0\n  v_and_b32 v2, 63, v0")
    k("  v_readfirstlane_b32 s3, v1")
    k("  s_mov_b32 s40, 0xffff0000")
    k("  s_cmp_ge_u32 s2, 160\n  s_cbranch_scc1 C_aux")
    k("  s_and_b32 s4, s2, 7\n  s_mul_i32 s4, s4, 20\n  s_lshr_b32 s5, s2, 3\n  s_add_u32 s4, s4, s5\n  s_lshl_b32 s4, s4, 2")
    k("  s_add_u32 s5, s4, s3")
    k(f"  s_mul_i32 s6, s3, {DREG}")
    k("  v_lshlrev_b32 v3, 4, v2")
    k(f"  s_mul_i32 s7, s5, {UT_STRIDE}\n  s_mul_i32 s8, s5, {KG_STRIDE}")
    k("  s_lshr_b32 s9, s5, 1\n  s_lshl_b32 s9, s9, 2\n  s_and_b32 s10, s5, 1\n  s_lshl_b32 s10, s10, 4")
    k(f"  v_add_u32 v4, {UOFF}, v3")
    k(f"  v_bfe_u32 v5, v2, 1, 2\n  v_mul_u32_u24 v5, {CST}, v5\n  v_and_b32 v6, 1, v2\n  v_lshl_add_u32 v5, v6, 4, v5\n  v_add_u32 v5, 4096, v5")
    k("  v_cmp_gt_u32 vcc, 32, v2\n  v_cndmask_b32 v4, v5, v4, vcc\n  v_add_u32 v4, s6, v4")
    k("  v_mov_b32 v8, 0\n  v_mov_b32 v9, 0\n  v_mov_b32 v10, 0\n  v_mov_b32 v11, 0")
    k("  ds_write_b128 v4, v[8:11]")
    k("  s_waitcnt lgkmcnt(0)")
    k.stamp(1)
    k("  s_mov_b32 s36, s32\n  s_mov_b32 s37, s33\n  s_mov_b32 s38, 0x2000000\n  s_mov_b32 s39, 0x00020000")
    k("  s_load_dword s11, s[18:19], s9")
    k(f"  s_add_u32 m0, s6, {UOFF+512}\n  s_add_u32 s12, s7, {WS_UT}")
    for i in range(4): k(f"  buffer_load_dwordx4 v3, s[36:39], s12 offen offset:{1024*i} lds")
    for sg in (3, 2, 1, 0):
        src = (WS_KG1 if sg & 1 else WS_KG0) + (4 if sg < 2 else 0)
        k(f"  s_add_u32 m0, s6, {sg*CST}\n  s_add_u32 s12, s8, {src}")
        for i in range(4): k(f"  buffer_load_dwordx4 v3, s[36:39], s12 offen offset:{1024*i} lds")
    k("  s_movk_i32 s13, 5120\n  v_mul_lo_u32 v4, s13, v0\n  s_lshl_b32 s14, s4, 1\n  v_add_u32 v4, s14, v4\n  v_add_u32 v5, 0x140000, v4")
    for i, a in enumerate((4, 5)):
        for r in range(4): k(f"  global_load_dwordx2 v[{208+8*i+2*r}:{209+8*i+2*r}], v{a}, s[16:17] offset:{1280*r}")
    k("  v_and_b32 v6, 15, v2\n  v_lshrrev_b32 v7, 4, v2")
    k(f"  v_and_b32 v8, 3, v6\n  v_mul_u32_u24 v8, {CST}, v8\n  v_lshrrev_b32 v9, 2, v6\n  v_lshlrev_b32 v9, 3, v9\n  v_sub_u32 v8, v8, v9\n  v_lshl_add_u32 v8, v7, 4, v8\n  v_add_u32 v8, {24+384}, v8\n  v_add_u32 v12, s6, v8")
    k(f"  v_lshlrev_b32 v8, 5, v6\n  v_lshl_add_u32 v8, v7, 4, v8\n  v_add_u32 v8, {UOFF+32+384}, v8\n  v_add_u32 v13, s6, v8")
    k(f"  v_lshlrev_b32 v8, 5, v6\n  v_lshl_add_u32 v8, v7, 3, v8\n  v_add_u32 v14, s6, v8")
    k("  s_waitcnt lgkmcnt(0)")
    k("  s_lshr_b32 s11, s11, s10\n  s_lshl_b32 s11, s11, 16\n  v_mov_b32 v10, s11\n  v_mov_b32 v11, s11")
    k.stamp(2)
    k("  s_waitcnt vmcnt(24)")
    k.stamp(3)
    for J in range(8): k(f"  ds_read_b64 v[{48+2*J}:{49+2*J}], v14 offset:{UOFF+512+512*J}")
    for J in range(8):
        k(f"  s_waitcnt lgkmcnt({7-J})")
        for h in range(2):
            r = 48 + 2*J + h; o = 176 + 4*J + 2*h
            k(f"  v_lshlrev_b32 v{o}, 16, v{r}\n  v_and_b32 v{o+1}, s40, v{r}\n  v_pk_mul_f32 v[{o}:{o+1}], v[{o}:{o+1}], v[10:11]")
            k(f"  v_cvt_pk_bf16_f32 v8, v{o}, v{o+1}\n  v_lshlrev_b32 v{o}, 16, v8\n  v_and_b32 v{o+1}, s40, v8")
    for i in range(32): k(f"  v_mov_b32 v{16+i}, 0")
    k("  s_waitcnt vmcnt(8)")
    k.stamp(4)
    SETS = ((48, 80), (112, 144))
    def reads(st, extra):
        A, B = SETS[st]; out = []
        for n in range(8):
            off = 512 * (7 - n) + 64 - extra
            out.append(f"  ds_read_b64 v[{A+4*n}:{A+4*n+1}], v12 offset:{off}")
            out.append(f"  ds_read_b64 v[{A+4*n+2}:{A+4*n+3}], v12 offset:{off+8}")
            out.append(f"  ds_read_b128 v[{B+4*n}:{B+4*n+3}], v13 offset:{512*n + 64 - extra}")
        return out
    def mfmas(st):
        A, B = SETS[st]; out = []
        for J in range(8):
            for n in range(J + 1):
                m = J - n
                out.append(f"  v_mfma_f32_16x16x32_bf16 v[{16+4*J}:{19+4*J}], v[{A+4*n}:{A+4*n+3}], v[{B+4*m}:{B+4*m+3}], v[{16+4*J}:{19+4*J}]")
        return out
    def inter(mf, rd):
        out = []
        for i, m in enumerate(mf):
            out.append(m)
            if i < len(rd): out.append(rd[i])
        return out
    for l in reads(0, 0): k(l)
    k("  s_mov_b32 s15, 0")
    k("C_loop:")
    k("  s_waitcnt lgkmcnt(0)")
    for l in inter(mfmas(0), reads(1, 64)): k(l)
    k("  v_subrev_u32 v12, 128, v12\n  v_subrev_u32 v13, 128, v13")
    k("  s_waitcnt lgkmcnt(0)")
    k("  s_cmp_eq_u32 s15, 3\n  s_cbranch_scc1 C_last")
    for l in inter(mfmas(1), reads(0, 0)): k(l)
    k("  s_add_u32 s15, s15, 1\n  s_branch C_loop")
    k("C_last:")
    for l in mfmas(1): k(l)
    k.stamp(5)
    k("  s_waitcnt vmcnt(0)")
    for i in range(16): k(f"  v_lshlrev_b32 v{48+2*i}, 16, v{208+i}\n  v_and_b32 v{49+2*i}, s40, v{208+i}")
    k.stamp(6)
    for J in range(8):
        for h in range(2):
            a = 16 + 4*J + 2*h; o = 176 + 4*J + 2*h
            k(f"  v_cvt_pk_bf16_f32 v8, v{a}, v{a+1}\n  v_lshlrev_b32 v{a}, 16, v8\n  v_and_b32 v{a+1}, s40, v8")
            k(f"  v_pk_add_f32 v[{a}:{a+1}], v[{a}:{a+1}], v[{o}:{o+1}]\n  v_cvt_pk_bf16_f32 v{112+2*J+h}, v{a}, v{a+1}")
        k(f"  ds_write_b64 v14, v[{112+2*J}:{113+2*J}] offset:{512*J}")
    k("  v_lshrrev_b32 v4, 2, v0\n  s_movk_i32 s13, 20480\n  v_mul_lo_u32 v4, s13, v4\n  v_and_b32 v5, 3, v0\n  v_lshl_add_u32 v4, v5, 6, v4")
    k("  s_lshr_b32 s13, s4, 3\n  s_lshl_b32 s13, s13, 8\n  s_and_b32 s14, s4, 4\n  s_lshl_b32 s14, s14, 1\n  s_add_u32 s13, s13, s14")
    k(f"  s_add_u32 s13, s13, {WS_HF}\n  s_add_u32 s14, s13, {64*20480}")
    k("  v_lshlrev_b32 v5, 3, v0\n  v_add_u32 v6, 2048, v5")
    k("  s_waitcnt lgkmcnt(0)\n  s_barrier")
    for i in range(2):
        for w in range(4): k(f"  ds_read_b64 v[{80+8*i+2*w}:{81+8*i+2*w}], v{5+i} offset:{w*DREG}")
    for i in range(2):
        k(f"  s_waitcnt lgkmcnt({4-4*i})")
        for r in range(4):
            o = 112 + 16*i + 4*r
            for w in range(4):
                src = 80 + 8*i + 2*w + (r >> 1)
                k(f"  v_and_b32 v{o+w}, s40, v{src}" if r & 1 else f"  v_lshlrev_b32 v{o+w}, 16, v{src}")
            x = 48 + 16*i + 4*r
            k(f"  v_pk_add_f32 v[{o}:{o+1}], v[{o}:{o+1}], v[{x}:{x+1}]\n  v_pk_add_f32 v[{o+2}:{o+3}], v[{o+2}:{o+3}], v[{x+2}:{x+3}]")
            d = 144 + 8*i + 2*r
            k(f"  v_cvt_pk_bf16_f32 v{d}, v{o}, v{o+1}\n  v_cvt_pk_bf16_f32 v{d+1}, v{o+2}, v{o+3}")
            k(f"  buffer_store_dwordx2 v[{d}:{d+1}], v4, s[36:39], s{13+i} offen offset:{16*r}")
    k("  s_branch C_fin")
    k("C_aux:")
    k("  s_sub_u32 s4, s2, 160")
    k("  s_waitcnt lgkmcnt(0)")
    k(f"  s_mov_b32 s44, s20\n  s_mov_b32 s45, s21\n  s_mov_b32 s46, {640*640*2}\n  s_mov_b32 s47, 0x00020000")
    k(f"  s_mov_b32 s5, s4\n  s_movk_i32 s6, 1280\n  s_movk_i32 s7, 20\n  s_mov_b32 s8, {WS_W1P}\n  s_mov_b32 s9, 0\n  s_mov_b32 s10, 10\n  s_mov_b32 s11, {WS_CS1}")
    k("  s_cmp_lt_u32 s4, 10\n  s_cbranch_scc1 C_go")
    k(f"  s_mov_b32 s44, s22\n  s_mov_b32 s45, s23\n  s_sub_u32 s5, s4, 10\n  s_mov_b32 s8, {WS_W2P}\n  s_mov_b32 s11, 0")
    k("  s_cmp_lt_u32 s4, 20\n  s_cbranch_scc1 C_go")
    k(f"  s_mov_b32 s44, s24\n  s_mov_b32 s45, s25\n  s_mov_b32 s46, {640*1536*2}\n  s_sub_u32 s5, s4, 20\n  s_movk_i32 s6, 3072\n  s_mov_b32 s8, {WS_W3P}\n  s_mov_b32 s11, {WS_CS3}")
    k("  s_cmp_lt_u32 s4, 44\n  s_cbranch_scc1 C_go")
    k(f"  s_mov_b32 s44, s26\n  s_mov_b32 s45, s27\n  s_movk_i32 s6, 1280\n  s_movk_i32 s7, 48\n  s_mov_b32 s8, {WS_W4P}\n  s_mov_b32 s10, 8\n  s_mov_b32 s11, 0")
    k("  s_sub_u32 s5, s4, 44\n  s_mov_b32 s9, 0")
    k("  s_cmp_lt_u32 s5, 10\n  s_cbranch_scc1 C_go\n  s_sub_u32 s5, s5, 10\n  s_mov_b32 s9, 64")
    k("  s_cmp_lt_u32 s5, 10\n  s_cbranch_scc1 C_go\n  s_sub_u32 s5, s5, 10\n  s_mov_b32 s9, 128")
    k("C_go:")
    k("  s_mov_b32 s36, s32\n  s_mov_b32 s37, s33\n  s_mov_b32 s38, 0x2000000\n  s_mov_b32 s39, 0x00020000")
    k("  v_lshrrev_b32 v3, 3, v2\n  v_and_b32 v4, 7, v2")
    k("  s_lshl_b32 s12, s3, 3\n  s_add_u32 s12, s12, s9\n  v_add_u32 v3, s12, v3")
    k("  s_lshl_b32 s13, s6, 3\n  v_mul_lo_u32 v5, s13, v3\n  s_lshl_b32 s14, s5, 7\n  v_lshl_add_u32 v5, v4, 4, v5\n  v_add_u32 v5, s14, v5")
    k("  s_lshl_b32 s15, s6, 8")
    k("  s_add_u32 s28, s3, 8")
    k("  s_mov_b32 s29, 0")
    for i in range(3):
        if i == 2: k("  s_cmp_ge_u32 s28, s10\n  s_cbranch_scc1 C_ld_done")
        for e in range(8):
            k(f"  buffer_load_dwordx4 v[{32+32*i+4*e}:{35+32*i+4*e}], v5, s[44:47], s29 offen")
            k("  s_add_u32 s29, s29, s6")
        k("  s_sub_u32 s29, s29, s13\n  s_add_u32 s29, s29, s15")
    k("C_ld_done:")
    k.stamp(2)
    k("  s_lshl_b32 s14, s5, 3\n  v_add_u32 v6, s14, v4\n  v_lshrrev_b32 v7, 2, v6\n  v_and_b32 v6, 3, v6")
    k("  s_lshl_b32 s30, s7, 1\n  v_mul_lo_u32 v7, s30, v7\n  v_lshrrev_b32 v8, 2, v3\n  v_add_u32 v7, v7, v8\n  v_lshlrev_b32 v7, 10, v7")
    k("  v_and_b32 v8, 3, v3\n  v_lshl_add_u32 v7, v8, 8, v7\n  v_lshl_add_u32 v7, v6, 6, v7")
    k("  s_lshl_b32 s30, s7, 10\n  v_add_u32 v8, s30, v7")
    k("  s_mov_b32 s41, 0x05040100\n  s_mov_b32 s42, 0x07060302\n  s_mov_b32 s43, 0x3f803f80")
    for n in range(8): k(f"  v_mov_b32 v{16+n}, 0")
    k("  s_mov_b32 s31, s8")
    for i in range(3):
        if i == 2: k("  s_cmp_ge_u32 s28, s10\n  s_cbranch_scc1 C_st_done")
        k("  s_waitcnt vmcnt(0)" if i == 2 else "  s_waitcnt vmcnt(8)")
        R = 32 + 32*i
        for n in range(8):
            O = 128 + 32*(i & 1) + 4*n
            for j in range(4):
                k(f"  v_perm_b32 v{O+j}, v{R+4*(2*j+1)+(n>>1)}, v{R+4*(2*j)+(n>>1)}, s{42 if n & 1 else 41}")
            for j in range(4): k(f"  v_dot2_f32_bf16 v{16+n}, v{O+j}, s43, v{16+n}")
            k(f"  buffer_store_dwordx4 v[{O}:{O+3}], v{7 + (n >> 2)}, s[36:39], s31 offen offset:{16*(n&3)}")
        k("  s_add_u32 s31, s31, 8192")
    k("C_st_done:")
    k.stamp(5)
    k("  s_cmp_eq_u32 s11, 0\n  s_cbranch_scc1 C_fin")
    for n in range(8):
        r = 16 + n
        k(f"  v_add_f32_dpp v{r}, v{r}, v{r} row_ror:8 row_mask:0xf bank_mask:0xf")
        k(f"  v_mov_b32 v24, v{r}\n  v_permlane16_swap_b32 v{r}, v24\n  v_add_f32 v{r}, v{r}, v24")
        k(f"  v_mov_b32 v24, v{r}\n  v_permlane32_swap_b32 v{r}, v24\n  v_add_f32 v{r}, v{r}, v24")
    k("  s_lshl_b32 s12, s3, 8\n  v_lshlrev_b32 v9, 5, v4\n  v_add_u32 v9, s12, v9")
    k("  ds_write_b128 v9, v[16:19]\n  ds_write_b128 v9, v[20:23] offset:16")
    k("  s_waitcnt lgkmcnt(0)\n  s_barrier")
    k("  s_cmp_lg_u32 s3, 0\n  s_cbranch_scc1 C_fin")
    k("  v_lshlrev_b32 v9, 2, v2")
    for w in range(4): k(f"  ds_read_b32 v{16+w}, v9 offset:{256*w}")
    k("  s_lshl_b32 s12, s5, 8\n  s_add_u32 s12, s12, s11")
    k("  s_waitcnt lgkmcnt(0)")
    k("  v_add_f32 v16, v16, v17\n  v_add_f32 v18, v18, v19\n  v_add_f32 v16, v16, v18")
    k("  buffer_store_dword v16, v9, s[36:39], s12 offen")
    k("C_fin:")
    k.stamp_out(1)
    k("C_done:\n  s_endpgm")
    return k
```

```python
from asmfw import K
from layout import *
import struct
def f32(x): return "0x%08x" % struct.unpack("<I", struct.pack("<f", x))[0]
K1 = -2.0 * 0.7978845608028654 * 1.4426950408889634
K2 = K1 * 0.044715
INV640 = f32(1.0 / 640.0)
EPS = f32(1e-5)

class VM:
    def __init__(self, k): self.k = k; self.ops = []
    def issue(self, text, tag): self.k(text); self.ops.append(tag)
    def count_after(self, tag):
        idx = max(i for i, t in enumerate(self.ops) if t == tag)
        return len(self.ops) - 1 - idx
    def wait_text(self, tag): return f"  s_waitcnt vmcnt({min(63, self.count_after(tag))})"

def rnd_bf16(k, r):
    k(f"  v_cvt_pk_bf16_f32 v{r}, v{r}, v{r}\n  v_lshlrev_b32 v{r}, 16, v{r}")

def red_q(out, r, t):
    out += [f"  v_mov_b32 v{t}, v{r}", f"  v_permlane16_swap_b32 v{r}, v{t}", f"  v_add_f32 v{r}, v{r}, v{t}",
            f"  v_mov_b32 v{t}, v{r}", f"  v_permlane32_swap_b32 v{r}, v{t}", f"  v_add_f32 v{r}, v{r}, v{t}"]

def ln_scalars(out, s1, s2, m, rs, t):
    out += [f"  v_mul_f32 v{s1}, {INV640}, v{s1}", f"  v_mul_f32 v{s2}, {INV640}, v{s2}",
            f"  v_fma_f32 v{s2}, -v{s1}, v{s1}, v{s2}", f"  v_max_f32 v{s2}, 0, v{s2}"]
    ln_from_mv(out, s1, s2, m, rs, t)

def ln_from_mv(out, mean, var, m, rs, t):
    out += [f"  v_cvt_pk_bf16_f32 v{t}, v{mean}, v{var}", f"  v_lshlrev_b32 v{m}, 16, v{t}", f"  v_and_b32 v{rs}, s40, v{t}",
            f"  v_add_f32 v{rs}, {EPS}, v{rs}", f"  v_cvt_pk_bf16_f32 v{rs}, v{rs}, v{rs}", f"  v_lshlrev_b32 v{rs}, 16, v{rs}",
            f"  v_sqrt_f32 v{rs}, v{rs}", f"  v_cvt_pk_bf16_f32 v{rs}, v{rs}, v{rs}", f"  v_lshlrev_b32 v{rs}, 16, v{rs}",
            f"  v_rcp_f32 v{rs}, v{rs}"]

def gelu_pair(out, a, cs, al, be, t, dst, CK1, CONE):
    out += [f"  v_pk_mul_f32 v[{t}:{t+1}], v[{cs}:{cs+1}], v[{be}:{be+1}]",
            f"  v_pk_fma_f32 v[{t}:{t+1}], v[{a}:{a+1}], v[{al}:{al+1}], v[{t}:{t+1}] neg_lo:[0,0,1] neg_hi:[0,0,1]",
            f"  v_cvt_pk_bf16_f32 v{t+2}, v{t}, v{t+1}",
            f"  v_lshlrev_b32 v{t}, 16, v{t+2}", f"  v_and_b32 v{t+1}, s40, v{t+2}",
            f"  v_pk_mul_f32 v[{t+2}:{t+3}], v[{t}:{t+1}], v[{t}:{t+1}]",
            f"  v_pk_fma_f32 v[{t+2}:{t+3}], v[{t+2}:{t+3}], s[42:43], v[{CK1}:{CK1+1}]",
            f"  v_pk_mul_f32 v[{t+2}:{t+3}], v[{t+2}:{t+3}], v[{t}:{t+1}]",
            f"  v_exp_f32 v{t+2}, v{t+2}", f"  v_exp_f32 v{t+3}, v{t+3}",
            f"  v_pk_add_f32 v[{t+2}:{t+3}], v[{t+2}:{t+3}], v[{CONE}:{CONE+1}]",
            f"  v_rcp_f32 v{t+2}, v{t+2}", f"  v_rcp_f32 v{t+3}, v{t+3}",
            f"  v_pk_mul_f32 v[{t}:{t+1}], v[{t}:{t+1}], v[{t+2}:{t+3}]",
            f"  v_cvt_pk_bf16_f32 v{dst}, v{t}, v{t+1}"]

def prologue(k, pfx, big):
    k(f"  s_cmp_ge_u32 s2, 256\n  s_cbranch_scc1 {pfx}_done")
    k.stamp(0); k.stamp(7, True)
    k(f"  s_load_dwordx2 s[32:33], s[0:1], {KA_WS}\n  s_load_dwordx2 s[34:35], s[0:1], {KA_OUT}")
    k("  v_lshrrev_b32 v1, 6, v0\n  v_and_b32 v2, 63, v0\n  v_readfirstlane_b32 s3, v1")
    k("  v_lshlrev_b32 v3, 4, v2\n  v_and_b32 v6, 15, v2\n  v_lshrrev_b32 v7, 4, v2")
    k("  s_mov_b32 s40, 0xffff0000\n  s_mov_b32 s41, 0x3f803f80")
    k(f"  s_mov_b32 s42, {f32(K2)}\n  s_mov_b32 s43, {f32(K2)}")
    if big:
        k("  s_and_b32 s4, s2, 7\n  s_lshl_b32 s4, s4, 1\n  s_bfe_u32 s5, s2, 0x10003\n  s_add_u32 s4, s4, s5\n  s_lshr_b32 s5, s2, 4")
    else:
        k("  s_and_b32 s4, s2, 7\n  s_lshl_b32 s4, s4, 2\n  s_bfe_u32 s5, s2, 0x20003\n  s_add_u32 s4, s4, s5\n  s_lshr_b32 s5, s2, 5")
    k("  s_waitcnt lgkmcnt(0)")
    k("  s_mov_b32 s36, s32\n  s_mov_b32 s37, s33\n  s_mov_b32 s38, 0x2000000\n  s_mov_b32 s39, 0x00020000")
    k.stamp(1)

def merge(stream, fillers, per=2, start=0):
    out = []; fi = 0; nm = 0
    for s in stream:
        out.append(s)
        if "v_mfma" in s:
            nm += 1
            if nm > start:
                for _ in range(per):
                    if fi < len(fillers): out.append(fillers[fi]); fi += 1
    out += fillers[fi:]
    return out

PD = 6
WR = 8

def gen_g123(which):
    big = which == 3
    NT = 6 if big else 5; RT = 2 if big else 1; KS = 20
    pfx = f"G{which}"
    k = K(f"g{which}_kernel", 256, 256, NT * KS * 1024, vgpr=128 if big else 200, agpr=160 if big else 0, sgpr=80)
    vm = VM(k)
    prologue(k, pfx, big)
    XSRC = {1: WS_HF, 2: WS_ZF, 3: WS_X1F}[which]; WSRC = {1: WS_W1P, 2: WS_W2P, 3: WS_W3P}[which]
    k(f"  s_lshl_b32 s6, s4, {3 if big else 2}\n  s_mul_i32 s7, s3, {RT}\n  s_add_u32 s6, s6, s7")
    k(f"  s_mul_i32 s7, s6, 20480\n  s_add_u32 s7, s7, {XSRC}")
    k(f"  s_mul_i32 s9, s3, 5120\n  s_mul_i32 s8, s5, {NT*20480}\n  s_add_u32 s8, s8, s9\n  s_add_u32 s8, s8, {WSRC}")
    XR = (lambda rt, ks: f"a[{(rt*KS+ks)*4}:{(rt*KS+ks)*4+3}]") if big else (lambda rt, ks: f"v[{120+4*ks}:{123+4*ks}]")
    WB = 16
    ACC = 48
    def dma_w(nt):
        k(f"  s_add_u32 m0, s9, {nt*20480}\n  s_add_u32 s10, s8, {nt*20480}")
        for i in range(4): vm.issue(f"  buffer_load_dwordx4 v3, s[36:39], s10 offen offset:{1024*i} lds", f"W{nt}")
        k(f"  s_add_u32 m0, s9, {nt*20480+4096}\n  s_add_u32 s10, s10, 4096")
        vm.issue(f"  buffer_load_dwordx4 v3, s[36:39], s10 offen lds", f"W{nt}")
    dma_w(0)
    for ks in range(KS):
        for rt in range(RT):
            off = rt * 20480 + ks * 1024
            if off % 4096 == 0 or True:
                k(f"  s_add_u32 s10, s7, {off & ~4095}")
            vm.issue(f"  buffer_load_dwordx4 {XR(rt, ks)}, v3, s[36:39], s10 offen offset:{off & 4095}", f"X{ks}")
    early = 2 if big else NT - 1
    for nt in range(1, early + 1): dma_w(nt)
    k(f"  s_mul_i32 s11, s5, {NT}")
    CS = 64
    HR = 64
    CK1, CONE = 8, 10
    k(f"  v_mov_b32 v{CK1}, {f32(K1)}\n  v_mov_b32 v{CK1+1}, {f32(K1)}\n  v_mov_b32 v{CONE}, 1.0\n  v_mov_b32 v{CONE+1}, 1.0")
    def tile_off(nt, sreg, scale_s, scale_p):
        k(f"  s_add_u32 s12, s11, {nt}\n  s_lshr_b32 s13, s12, 1\n  s_mul_i32 s13, s13, {scale_s}\n  s_and_b32 s12, s12, 1\n  s_mul_i32 s12, s12, {scale_p}\n  s_add_u32 s{sreg}, s12, s13")
    if which in (1, 3):
        k("  v_lshlrev_b32 v4, 5, v7")
        for nt in range(NT):
            tile_off(nt, 14, 128, 16)
            k(f"  s_add_u32 s14, s14, {WS_CS1 if which == 1 else WS_CS3}")
            vm.issue(f"  buffer_load_dwordx4 v[{CS+4*nt}:{CS+4*nt+3}], v4, s[36:39], s14 offen", "CS")
    for nt in range(NT): tile_off(nt, 48 + nt, 1024, 8)
    AL = 12; BE = 14
    ALS = [12, 92]; BES = [14, 94]
    if which == 2:
        k(f"  s_mul_i32 s15, s6, 20480\n  s_add_u32 s16, s15, {WS_HF}\n  s_add_u32 s17, s15, {WS_X1F}")
        for nt in range(NT):
            k(f"  s_add_u32 s14, s16, s{48+nt}")
            vm.issue(f"  buffer_load_dwordx2 v[{HR+2*nt}:{HR+2*nt+1}], v3, s[36:39], s14 offen", "H")
        k(f"  s_lshl_b32 s14, s6, 7\n  s_add_u32 s14, s14, {WS_ST1}\n  v_lshlrev_b32 v4, 3, v6")
        vm.issue("  buffer_load_dwordx2 v[96:97], v4, s[36:39], s14 offen", "ST")
    if which == 3:
        k("  v_lshlrev_b32 v4, 6, v6\n  v_lshl_add_u32 v4, v7, 4, v4")
        k(f"  s_lshl_b32 s14, s6, 10\n  s_add_u32 s14, s14, {WS_ST2}")
        for rt in range(RT): vm.issue(f"  buffer_load_dwordx4 v[{96+4*rt}:{99+4*rt}], v4, s[36:39], s14 offen offset:{1024*rt}", "ST")
        k(f"  s_mul_i32 s17, s6, {48*1024}\n  s_add_u32 s17, s17, {WS_GF}")
    if which == 1:
        k("  s_lshr_b32 s12, s5, 1\n  s_lshr_b32 s13, s12, 1\n  s_add_u32 s13, s13, 1\n  s_sub_u32 s14, 0, s13\n  s_and_b32 s12, s12, 1\n  s_cmp_eq_u32 s12, 0\n  s_cselect_b32 s13, s13, s14")
        k("  s_lshl_b32 s12, s6, 4\n  s_add_u32 s12, s12, s13\n  v_add_u32 v4, s12, v6")
        k("  v_cmp_gt_u32 s[60:61], 0x800, v4" if False else "  s_movk_i32 s12, 0x800\n  v_cmp_gt_u32 s[60:61], s12, v4")
        k("  v_and_b32 v4, 0x7ff, v4\n  v_lshrrev_b32 v5, 4, v4\n  s_movk_i32 s12, 20480\n  v_mul_lo_u32 v5, s12, v5\n  v_and_b32 v4, 15, v4\n  v_lshl_add_u32 v5, v4, 4, v5\n  v_lshl_add_u32 v5, v7, 8, v5")
        k("  v_mov_b32 v96, 0\n  v_mov_b32 v97, 0")
    pre = []
    if which == 2:
        pre.append(vm.wait_text("ST"))
        pre += ["  v_mov_b32 v98, v97", "  v_mov_b32 v99, v97", "  v_mov_b32 v97, v96", "  v_mov_b32 v100, 0", "  v_mov_b32 v101, 0"]
        for nt in range(NT):
            for h in range(2):
                o = 74 + 4*nt + 2*h; r = HR + 2*nt + h
                pre += [f"  v_lshlrev_b32 v{o}, 16, v{r}", f"  v_and_b32 v{o+1}, s40, v{r}",
                        f"  v_pk_add_f32 v[{o}:{o+1}], v[{o}:{o+1}], v[96:97] neg_lo:[0,1] neg_hi:[0,1]",
                        f"  v_cvt_pk_bf16_f32 v{r}, v{o}, v{o+1}", f"  v_lshlrev_b32 v{o}, 16, v{r}", f"  v_and_b32 v{o+1}, s40, v{r}",
                        f"  v_pk_mul_f32 v[{o}:{o+1}], v[{o}:{o+1}], v[98:99]",
                        f"  v_cvt_pk_bf16_f32 v{r}, v{o}, v{o+1}", f"  v_lshlrev_b32 v{o}, 16, v{r}", f"  v_and_b32 v{o+1}, s40, v{r}"]
    if which == 3:
        pre.append(vm.wait_text("ST"))
        for rt in range(RT):
            b = 96 + 4*rt
            pre += [f"  v_add_f32 v{b}, v{b}, v{b+2}", f"  v_add_f32 v{b+1}, v{b+1}, v{b+3}"]
            red_q(pre, b, b+2); red_q(pre, b+1, b+2)
            ln_scalars(pre, b, b+1, b+2, ALS[rt], b+3)
            pre += [f"  v_mov_b32 v{ALS[rt]+1}, v{ALS[rt]}", f"  v_mul_f32 v{BES[rt]}, v{b+2}, v{ALS[rt]}", f"  v_mov_b32 v{BES[rt]+1}, v{BES[rt]}"]
    def stats1():
        o = []
        red_q(o, 96, 98); red_q(o, 97, 98)
        ln_scalars(o, 96, 97, 98, 99, 100)
        o += ["  v_sub_f32 v96, v96, v98", "  v_mul_f32 v96, v96, v99", "  v_mul_f32 v97, v97, v99", "  v_mul_f32 v97, v97, v99"]
        ln_from_mv(o, 96, 97, 101, 102, 100)
        o += ["  v_mul_f32 v12, v99, v102", "  v_mov_b32 v13, v12", "  v_fma_f32 v14, v98, v99, v101", "  v_mul_f32 v14, v14, v102", "  v_mov_b32 v15, v14"]
        return o
    def epi(nt):
        o = []
        for rt in range(RT):
            a = ACC + (nt & 1) * 4 * RT + 4 * rt
            T = 104 + 4 * rt; D = 112 + 2 * rt + 4 * (nt & 1)
            if which in (1, 3):
                gelu_pair(o, a, CS + 4*nt, ALS[rt], BES[rt], T, D, CK1, CONE)
                gelu_pair(o, a + 2, CS + 4*nt + 2, ALS[rt], BES[rt], T + 4 if RT == 1 else T, D + 1, CK1, CONE)
                if which == 1:
                    o += [f"  v_cndmask_b32 v{D}, 0, v{D}, s[60:61]", f"  v_cndmask_b32 v{D+1}, 0, v{D+1}, s[60:61]"]
                    o += [f"  s_add_u32 s14, s{48+nt}, {WS_ZF}", f"@ST  buffer_store_dwordx2 v[{D}:{D+1}], v5, s[36:39], s14 offen"]
                else:
                    o += [f"  s_add_u32 s14, s{48+nt}, s17", f"  s_add_u32 s14, s14, {rt*48*1024}", f"@ST  buffer_store_dwordx2 v[{D}:{D+1}], v3, s[36:39], s14 offen"]
            else:
                for h in range(2):
                    t = T + 2*h; x = 74 + 4*nt + 2*h
                    o += [f"  v_cvt_pk_bf16_f32 v{D+h}, v{a+2*h}, v{a+2*h+1}", f"  v_lshlrev_b32 v{t}, 16, v{D+h}", f"  v_and_b32 v{t+1}, s40, v{D+h}",
                          f"  v_pk_add_f32 v[{t}:{t+1}], v[{t}:{t+1}], v[{x}:{x+1}]", f"  v_cvt_pk_bf16_f32 v{D+h}, v{t}, v{t+1}",
                          f"  v_dot2_f32_bf16 v100, v{D+h}, s41, v100", f"  v_dot2_f32_bf16 v101, v{D+h}, v{D+h}, v101"]
                o += [f"  s_add_u32 s14, s{48+nt}, s17", f"@ST  buffer_store_dwordx2 v[{D}:{D+1}], v3, s[36:39], s14 offen"]
        return o
    steps = [(nt, ks) for nt in range(NT) for ks in range(KS)]
    NSTEP = len(steps)
    def rd(i):
        nt, ks = steps[i]; r = WB + 4 * (i % WR); off = (nt * KS + ks) * 1024
        return f"@RD{off}:{r}"
    def emit(lst):
        for s in lst:
            if s.startswith("@ST"): vm.issue(s[3:], "S")
            elif s.startswith("@RD"):
                off, r = map(int, s[3:].split(":"))
                base = "v3" if off < 65536 else "v1"
                k(f"  ds_read_b128 v[{r}:{r+3}], {base} offset:{off & 65535}")
            elif s.startswith("@BAR"):
                nt = int(s[4:]); k(vm.wait_text(f"W{nt}")); k("  s_barrier")
            elif s.startswith("@XW"): k(vm.wait_text(f"X{int(s[3:])}"))
            elif s.startswith("@VW"): k(vm.wait_text(s[3:]))
            elif s.startswith("@DMA"): dma_w(int(s[4:]))
            else: k(s)
    k("  v_add_u32 v1, 0x10000, v3")
    k.stamp(2)
    emit(["@BAR0"]); k.stamp(3)
    emit([rd(i) for i in range(PD)])
    for nt in range(NT):
        st = []
        for ks in range(KS):
            i = nt * KS + ks
            j = i + PD
            if j < NSTEP:
                if j % KS == 0: st.append(f"@BAR{j // KS}")
                st.append(rd(j))
            st.append(f"  s_waitcnt lgkmcnt({min(PD, NSTEP - 1 - i)})")
            if nt == 0: st.append(f"@XW{ks}")
            for rt in range(RT):
                a = ACC + (nt & 1) * 4 * RT + 4 * rt; w = WB + 4 * (i % WR)
                c = "0" if ks == 0 else f"v[{a}:{a+3}]"
                st.append(f"  v_mfma_f32_16x16x32_bf16 v[{a}:{a+3}], v[{w}:{w+3}], {XR(rt, ks)}, {c}")
            if nt == 0 and which == 1:
                x = 120 + 4*ks
                for j2 in range(4): st.append(f"  v_dot2_f32_bf16 v96, v{x+j2}, s41, v96")
                for j2 in range(4): st.append(f"  v_dot2_f32_bf16 v97, v{x+j2}, v{x+j2}, v97")
            if big and nt == 0 and ks in (8, 12, 16): st.append(f"@DMA{3 + (ks - 8) // 4}")
        fill = []
        if nt == 0: fill = list(pre)
        else:
            if nt == 1:
                if which == 1: fill += stats1()
                if which in (1, 3): fill.append("@VWCS")
            fill += epi(nt - 1)
        if nt == 0 and fill:
            fill = ["@VWST"] + fill[1:]
            if which == 2: fill = ["@VWST"] + fill[1:]
            st = merge(st, fill, per=4, start=KS * RT - 10)
        else:
            st = merge(st, fill, per=3 if not big else 2, start=3)
        emit(st)
        if nt == 0: k.stamp(4)
        if nt == 2: k.stamp(5)
    k.stamp(6)
    emit(epi(NT - 1))
    if which == 1:
        k("  s_cmp_lg_u32 s5, 0\n  s_cbranch_scc1 G1_fin")
        k(f"  s_lshl_b32 s14, s6, 7\n  s_add_u32 s14, s14, {WS_ST1}\n  v_lshlrev_b32 v4, 3, v6")
        k("  buffer_store_dwordx2 v[98:99], v4, s[36:39], s14 offen")
    if which == 2:
        o = []; red_q(o, 100, 102); red_q(o, 101, 102); emit(o)
        k(f"  s_lshl_b32 s14, s6, 10\n  s_lshl_b32 s12, s5, 3\n  s_add_u32 s14, s14, s12\n  s_add_u32 s14, s14, {WS_ST2}\n  v_lshlrev_b32 v4, 6, v6")
        k("  buffer_store_dwordx2 v[100:101], v4, s[36:39], s14 offen")
    k(f"{pfx}_fin:")
    k.stamp_out(1 + which)
    k(f"{pfx}_done:\n  s_endpgm")
    return k

def gen_g4():
    NT = 5; KS = 48; CH = 8; NCH = KS // CH; SL = 3; SLOT = NT * CH * 1024
    k = K("g4_kernel", 256, 256, SL * SLOT, vgpr=232, sgpr=80)
    vm = VM(k)
    prologue(k, "G4", False)
    k("  s_mov_b32 s44, s34\n  s_mov_b32 s45, s35\n  s_mov_b32 s46, %d\n  s_mov_b32 s47, 0x00020000" % ACT_BYTES)
    k("  s_lshl_b32 s6, s4, 2\n  s_add_u32 s6, s6, s3")
    k(f"  s_mul_i32 s7, s6, {48*1024}\n  s_add_u32 s7, s7, {WS_GF}")
    k(f"  s_lshl_b32 s9, s3, 11\n  s_mul_i32 s8, s5, {NT*KS*1024}\n  s_add_u32 s8, s8, s9\n  s_add_u32 s8, s8, {WS_W4P}")
    XB = 120
    WB = 16; ACC = 48
    def load_chunk(c):
        sl = c % SL
        for nt in range(NT):
            k(f"  s_add_u32 m0, s9, {sl*SLOT + nt*CH*1024}\n  s_add_u32 s10, s8, {(nt*KS + c*CH)*1024}")
            for i in range(2): vm.issue(f"  buffer_load_dwordx4 v3, s[36:39], s10 offen offset:{1024*i} lds", f"C{c}")
        for ks in range(CH):
            if ks % 4 == 0: k(f"  s_add_u32 s10, s7, {(c*CH+ks)*1024}")
            r = XB + (sl*CH + ks) * 4
            vm.issue(f"  buffer_load_dwordx4 v[{r}:{r+3}], v3, s[36:39], s10 offen offset:{(ks%4)*1024}", f"C{c}")
    load_chunk(0); load_chunk(1)
    k(f"  s_mul_i32 s11, s5, {NT}")
    for nt in range(NT):
        k(f"  s_add_u32 s12, s11, {nt}\n  s_lshr_b32 s13, s12, 1\n  s_and_b32 s12, s12, 1\n  s_lshl_b32 s12, s12, 3")
        k(f"  s_lshl_b32 s14, s13, 10\n  s_add_u32 s{48+nt}, s14, s12\n  s_lshl_b32 s14, s13, 6\n  s_add_u32 s{56+nt}, s14, s12")
    k(f"  s_mul_i32 s15, s6, 20480\n  s_add_u32 s16, s15, {WS_HF}\n  s_add_u32 s17, s15, {WS_X1F}")
    for nt in range(NT):
        k(f"  s_add_u32 s14, s16, s{48+nt}")
        vm.issue(f"  buffer_load_dwordx2 v[{68+2*nt}:{69+2*nt}], v3, s[36:39], s14 offen", "H")
        k(f"  s_add_u32 s14, s17, s{48+nt}")
        vm.issue(f"  buffer_load_dwordx2 v[{78+2*nt}:{79+2*nt}], v3, s[36:39], s14 offen", "H")
    k("  s_lshl_b32 s12, s6, 4\n  v_add_u32 v4, s12, v6\n  s_movk_i32 s12, 1280\n  v_mul_lo_u32 v4, s12, v4\n  v_lshl_add_u32 v4, v7, 4, v4")
    k("  v_add_u32 v1, 0x10000, v3")
    steps = [(c, ks, nt) for c in range(NCH) for ks in range(CH) for nt in range(NT)]
    NSTEP = len(steps); PER = CH * NT
    def rd(i):
        c, ks, nt = steps[i]; off = (c % SL) * SLOT + (nt * CH + ks) * 1024; r = WB + 4 * (i % WR)
        k(f"  ds_read_b128 v[{r}:{r+3}], {'v3' if off < 65536 else 'v1'} offset:{off & 65535}")
    def bar(c):
        k(vm.wait_text(f"C{c}")); k("  s_barrier")
    k.stamp(2)
    bar(0); k.stamp(3)
    for i in range(PD): rd(i)
    for i, (c, ks, nt) in enumerate(steps):
        j = i + PD
        if j < NSTEP:
            if j % PER == 0: bar(j // PER)
            rd(j)
        k(f"  s_waitcnt lgkmcnt({min(PD, NSTEP - 1 - i)})")
        a = ACC + 4 * nt; w = WB + 4 * (i % WR); x = XB + ((c % SL) * CH + ks) * 4
        cc = "0" if (c == 0 and ks == 0) else f"v[{a}:{a+3}]"
        k(f"  v_mfma_f32_16x16x32_bf16 v[{a}:{a+3}], v[{w}:{w+3}], v[{x}:{x+3}], {cc}")
        if ks == 0 and nt == 0 and c in (1, 3): k.stamp(4 if c == 1 else 5)
        if ks == 0 and nt == 0 and c + 2 < NCH:
            if c >= 1: k("  s_barrier")
            load_chunk(c + 2)
    k.stamp(6)
    k(vm.wait_text("H"))
    for nt in range(NT):
        a = ACC + 4 * nt
        for h in range(2):
            t = 88 + 4*h; D = 96 + 2*nt + h; hr = 68 + 2*nt + h; xr = 78 + 2*nt + h
            k(f"  v_cvt_pk_bf16_f32 v{D}, v{a+2*h}, v{a+2*h+1}\n  v_lshlrev_b32 v{t}, 16, v{D}\n  v_and_b32 v{t+1}, s40, v{D}")
            k(f"  v_lshlrev_b32 v{t+2}, 16, v{xr}\n  v_and_b32 v{t+3}, s40, v{xr}\n  v_pk_add_f32 v[{t}:{t+1}], v[{t}:{t+1}], v[{t+2}:{t+3}]")
            k(f"  v_cvt_pk_bf16_f32 v{D}, v{t}, v{t+1}\n  v_lshlrev_b32 v{t}, 16, v{D}\n  v_and_b32 v{t+1}, s40, v{D}")
            k(f"  v_lshlrev_b32 v{t+2}, 16, v{hr}\n  v_and_b32 v{t+3}, s40, v{hr}\n  v_pk_add_f32 v[{t}:{t+1}], v[{t}:{t+1}], v[{t+2}:{t+3}]")
            k(f"  v_cvt_pk_bf16_f32 v{D}, v{t}, v{t+1}")
        k(f"  buffer_store_dwordx2 v[{96+2*nt}:{97+2*nt}], v4, s[44:47], s{56+nt} offen")
    k.stamp_out(5)
    k("G4_done:\n  s_endpgm")
    return k

def gen_all():
    return [gen_g123(1), gen_g123(2), gen_g123(3), gen_g4()]
```

```python
from asmfw import K
from layout import *

LOG2E = "0x3fb8aa3b"

def cmul(k, d, x, w):
    k(f"  v_pk_mul_f32 v[{d}:{d+1}], v[{x}:{x+1}], v[{w}:{w+1}] op_sel:[0,0] op_sel_hi:[1,0]")
    k(f"  v_pk_fma_f32 v[{d}:{d+1}], v[{x}:{x+1}], v[{w}:{w+1}], v[{d}:{d+1}] op_sel:[1,1,0] op_sel_hi:[0,1,1] neg_lo:[1,0,0]")

WREG = 8704
TB = 3 * WREG
PREP_LDS = TB + 1536 + 16

def gen_prep():
    k = K("prep_kernel", 896, 256, PREP_LDS, vgpr=96, sgpr=64)
    k("  s_cmp_ge_u32 s2, 896\n  s_cbranch_scc1 P_done")
    k.stamp(0); k.stamp(7, True)
    k("  s_load_dwordx16 s[16:31], s[0:1], 0")
    k(f"  s_load_dwordx2 s[32:33], s[0:1], {KA_WS}")
    k("  v_lshrrev_b32 v1, 6, v0\n  v_and_b32 v2, 63, v0")
    k("  v_readfirstlane_b32 s3, v1")
    k("  s_mov_b32 s40, 0xffff0000")
    k("  s_cmp_ge_u32 s2, 640\n  s_cbranch_scc1 P_ln")
    k("  s_and_b32 s4, s2, 7\n  s_mul_i32 s4, s4, 80\n  s_lshr_b32 s5, s2, 3\n  s_add_u32 s4, s4, s5")
    k("  s_getpc_b64 s[6:7]\nP_pc:\n  s_add_u32 s6, s6, P_tab-P_pc\n  s_addc_u32 s7, s7, 0")
    k("  v_lshlrev_b32 v3, 4, v0")
    k("  global_load_dwordx4 v[80:83], v3, s[6:7]\n  global_load_dword v84, v3, s[6:7] offset:16")
    k("  s_waitcnt lgkmcnt(0)")
    k.stamp(1)
    k("  s_cmp_eq_u32 s3, 3\n  s_cbranch_scc1 P_k_wait")
    k("  s_mul_i32 s5, s4, 384\n  v_lshl_add_u32 v4, v0, 1, s5")
    for i, sb in enumerate((18, 20, 22, 24, 26, 28)):
        k(f"  global_load_ushort v{10+i}, v4, s[{sb}:{sb+1}]")
    k("  s_lshr_b32 s8, s4, 1\n  s_lshl_b32 s8, s8, 2\n  s_load_dword s9, s[30:31], s8")
    k("  s_and_b32 s10, s4, 1\n  s_lshl_b32 s10, s10, 4")
    k(f"  s_mul_i32 s11, s3, {WREG}")
    k("  v_lshl_add_u32 v5, v2, 2, s11")
    k("  v_and_b32 v6, 31, v2\n  v_mul_u32_u24 v6, 272, v6\n  v_lshrrev_b32 v7, 5, v2\n  v_lshl_add_u32 v6, v7, 4, v6\n  v_add_u32 v6, s11, v6")
    k("  s_waitcnt lgkmcnt(0)")
    k("  s_lshr_b32 s9, s9, s10\n  s_lshl_b32 s9, s9, 16")
    k(f"  v_mov_b32 v8, {LOG2E}\n  v_mul_f32 v8, s9, v8\n  v_exp_f32 v8, v8\n  v_cvt_pk_bf16_f32 v8, v8, v8\n  v_lshlrev_b32 v8, 16, v8")
    k("  s_waitcnt vmcnt(0)")
    k.stamp(2)
    for i in range(6): k(f"  v_lshlrev_b32 v{10+i}, 16, v{10+i}")
    k("  v_mul_f32 v10, v8, v10\n  v_mul_f32 v11, v8, v11\n  v_mul_f32 v12, v8, v12\n  v_mul_f32 v13, v8, v13")
    k(f"  v_mul_f32 v10, {LOG2E}, v10\n  v_mul_f32 v11, 0.15915494, v11")
    for dst, e in ((16, None), (18, "0x41000000"), (20, "0x43800000")):
        if e is None:
            k(f"  v_exp_f32 v22, v10\n  v_fract_f32 v23, v11")
        else:
            k(f"  v_mul_f32 v22, {e}, v10\n  v_mul_f32 v23, {e}, v11\n  v_exp_f32 v22, v22\n  v_fract_f32 v23, v23")
        k(f"  v_cos_f32 v{dst}, v23\n  v_sin_f32 v{dst+1}, v23")
        k(f"  v_mul_f32 v{dst}, v22, v{dst}\n  v_mul_f32 v{dst+1}, v22, v{dst+1}")
    cmul(k, 24, 14, 12)
    def put(reg, row, neg):
        k(f"  v_cvt_pk_bf16_f32 v9, v{reg}, {'-' if neg else ''}v{reg+1}\n  ds_write_b32 v5, v9 offset:{row*272}")
    put(24, 0, True)
    for r in range(1, 8):
        cmul(k, 24 + 2*r, 24 + 2*(r-1), 16); put(24 + 2*r, r, True)
    for i, r in enumerate((0, 2, 4, 6)):
        cmul(k, 40 + 2*i, 24 + 2*r, 20); put(40 + 2*i, 8 + i, True)
    cmul(k, 48, 40, 20); put(48, 12, True)
    cmul(k, 50, 44, 20); put(50, 13, True)
    cmul(k, 52, 48, 20); put(52, 14, True)
    cmul(k, 54, 50, 20); put(54, 15, True)
    prev = 52
    for i in range(5):
        dst = 24 + 2*i
        cmul(k, dst, prev, 20); put(dst, 16 + i, True); prev = dst
    k("  s_waitcnt lgkmcnt(0)")
    for s in range(8): k(f"  ds_read_b128 v[{40+4*s}:{43+4*s}], v6 offset:{32*s}")
    k("  v_mov_b32 v9, 0x3f80\n  ds_write_b32 v5, v9 offset:0")
    put(18, 1, False)
    prev = 18
    for j in range(2, 32):
        dst = 24 + 2*(j & 1)
        cmul(k, dst, prev, 18); put(dst, j, False); prev = dst
    k("  s_waitcnt lgkmcnt(0)")
    k.stamp(3)
    for s in range(4): k(f"  ds_read_b128 v[{8+4*s}:{11+4*s}], v6 offset:{32*s}")
    for s in range(4, 8): k(f"  ds_read_b128 v[{72+4*(s-4) if s < 6 else 88+4*(s-6)}:{75+4*(s-4) if s < 6 else 91+4*(s-6)}], v6 offset:{32*s}")
    breg = [8, 12, 16, 20, 72, 76, 88, 92]
    for s in range(8):
        k(f"  s_waitcnt lgkmcnt({7-s})")
        c = "0" if s == 0 else "v[24:39]"
        k(f"  v_mfma_f32_32x32x16_bf16 v[24:39], v[{40+4*s}:{43+4*s}], v[{breg[s]}:{breg[s]+3}], {c}")
    k("  v_and_b32 v6, 31, v2\n  v_mul_u32_u24 v6, 96, v6\n  v_lshl_add_u32 v6, v7, 4, v6\n  v_add_u32 v6, s11, v6")
    for g in range(3): k(f"  ds_write_b128 v6, v[{24+4*g}:{27+4*g}] offset:{32*g}")
    k("P_k_wait:")
    k("  s_waitcnt lgkmcnt(0)\n  s_barrier")
    k.stamp(4)
    k("  s_cmp_eq_u32 s3, 3\n  s_cbranch_scc1 P_k_zero")
    for w in range(3): k(f"  ds_read_b128 v[{8+4*w}:{11+4*w}], v3 offset:{w*WREG}")
    k("  v_lshlrev_b32 v4, 3, v0")
    k("  s_waitcnt lgkmcnt(0)")
    for i in range(4): k(f"  v_add_f32 v{8+i}, v{8+i}, v{12+i}\n  v_add_f32 v{8+i}, v{8+i}, v{16+i}")
    k("  v_cvt_pk_bf16_f32 v8, v8, v9\n  v_cvt_pk_bf16_f32 v9, v10, v11")
    k(f"  ds_write_b64 v4, v[8:9] offset:{TB}")
    k("  s_branch P_k_gather")
    k("P_k_zero:")
    k(f"  v_mov_b32 v8, 0\n  v_mov_b32 v4, {TB+1536}\n  ds_write_b32 v4, v8")
    k("P_k_gather:")
    k("  s_waitcnt vmcnt(0)")
    for i in range(4):
        k(f"  v_and_b32 v{20+2*i}, 0xffff, v{80+i}\n  v_lshrrev_b32 v{21+2*i}, 16, v{80+i}")
    k("  v_and_b32 v28, 0xffff, v84")
    k(f"  s_mul_i32 s8, s4, {KG_STRIDE}\n  v_add_u32 v4, s8, v3")
    k(f"  s_add_u32 s34, s32, {WS_KG1}\n  s_addc_u32 s35, s33, 0\n  s_add_u32 s36, s32, {WS_KG0}\n  s_addc_u32 s37, s33, 0")
    k("  s_waitcnt lgkmcnt(0)\n  s_barrier")
    k.stamp(5)
    for i in range(9): k(f"  ds_read_u16 v{30+i}, v{20+i} offset:{TB}")
    k("  s_waitcnt lgkmcnt(0)")
    for i in range(4):
        k(f"  v_lshl_or_b32 v{40+i}, v{31+2*i}, 16, v{30+2*i}\n  v_lshl_or_b32 v{44+i}, v{32+2*i}, 16, v{31+2*i}")
    k("  global_store_dwordx4 v4, v[40:43], s[34:35]\n  global_store_dwordx4 v4, v[44:47], s[36:37]")
    k("  v_mov_b32 v48, 0\n  v_mov_b32 v49, 0\n  v_mov_b32 v50, 0\n  v_mov_b32 v51, 0\n  v_add_u32 v4, 4096, v4")
    k("  s_cmp_lg_u32 s3, 0\n  s_cbranch_scc1 P_fin")
    k("  v_cmp_eq_u32 vcc, 0, v0\n  s_and_saveexec_b64 s[38:39], vcc")
    k("  global_store_dwordx4 v4, v[48:51], s[34:35]\n  global_store_dwordx4 v4, v[48:51], s[36:37]")
    k("  s_branch P_fin")
    k("P_ln:")
    k("  s_sub_u32 s4, s2, 640\n  s_and_b32 s5, s4, 7\n  s_lshl_b32 s5, s5, 5\n  s_lshr_b32 s4, s4, 3\n  s_add_u32 s4, s4, s5")
    k("  v_lshrrev_b32 v3, 5, v0\n  v_and_b32 v4, 31, v0")
    k("  v_mul_u32_u24 v5, 1280, v3\n  v_lshl_add_u32 v5, v4, 3, v5\n  s_mul_i32 s5, s4, 10240\n  v_add_u32 v5, s5, v5")
    k("  v_mul_u32_u24 v6, 1344, v3\n  v_lshl_add_u32 v6, v4, 3, v6")
    k("  s_waitcnt lgkmcnt(0)")
    k.stamp(1)
    for i in range(5): k(f"  global_load_dwordx2 v[{10+2*i}:{11+2*i}], v5, s[16:17] offset:{256*i}")
    for i in range(5):
        k(f"  s_waitcnt vmcnt({4-i})")
        for h in range(2):
            r = 10 + 2*i + h; o = 20 + 4*i + 2*h
            k(f"  v_lshlrev_b32 v{o}, 16, v{r}\n  v_and_b32 v{o+1}, s40, v{r}")
    k.stamp(2)
    def reduce32(r, t):
        for sh in (8, 4, 2, 1): k(f"  v_add_f32_dpp v{r}, v{r}, v{r} row_ror:{sh} row_mask:0xf bank_mask:0xf")
        k(f"  v_mov_b32 v{t}, v{r}\n  v_permlane16_swap_b32 v{r}, v{t}\n  v_add_f32 v{r}, v{r}, v{t}")
    k("  v_pk_add_f32 v[40:41], v[20:21], v[22:23]")
    for i in range(2, 10): k(f"  v_pk_add_f32 v[40:41], v[40:41], v[{20+2*i}:{21+2*i}]")
    k("  v_add_f32 v40, v40, v41")
    reduce32(40, 41)
    k("  v_mul_f32 v40, 0x3acccccd, v40")
    k("  v_mov_b32 v41, v40\n  v_mov_b32 v42, 0\n  v_mov_b32 v43, 0")
    for i in range(10):
        k(f"  v_pk_add_f32 v[44:45], v[{20+2*i}:{21+2*i}], v[40:41] neg_lo:[0,1] neg_hi:[0,1]\n  v_pk_fma_f32 v[42:43], v[44:45], v[44:45], v[42:43]")
    k("  v_add_f32 v42, v42, v43")
    reduce32(42, 43)
    k("  v_mul_f32 v42, 0x3acccccd, v42")
    k("  v_cvt_pk_bf16_f32 v44, v40, v42\n  v_lshlrev_b32 v40, 16, v44\n  v_and_b32 v42, s40, v44\n  v_mov_b32 v41, v40")
    k("  v_add_f32 v42, 0x3727c5ac, v42\n  v_cvt_pk_bf16_f32 v42, v42, v42\n  v_lshlrev_b32 v42, 16, v42")
    k("  v_sqrt_f32 v42, v42\n  v_cvt_pk_bf16_f32 v42, v42, v42\n  v_lshlrev_b32 v42, 16, v42\n  v_rcp_f32 v42, v42\n  v_mov_b32 v43, v42")
    for i in range(10):
        o = 20 + 2*i
        k(f"  v_pk_add_f32 v[{o}:{o+1}], v[{o}:{o+1}], v[40:41] neg_lo:[0,1] neg_hi:[0,1]")
        k(f"  v_cvt_pk_bf16_f32 v44, v{o}, v{o+1}\n  v_lshlrev_b32 v{o}, 16, v44\n  v_and_b32 v{o+1}, s40, v44")
        k(f"  v_pk_mul_f32 v[{o}:{o+1}], v[{o}:{o+1}], v[42:43]")
        k(f"  v_cvt_pk_bf16_f32 v{10+i}, v{o}, v{o+1}")
    for i in range(5): k(f"  ds_write_b64 v6, v[{10+2*i}:{11+2*i}] offset:{256*i}")
    k.stamp(3)
    k("  v_bfe_u32 v7, v2, 2, 2\n  v_mul_u32_u24 v7, 1344, v7\n  v_lshrrev_b32 v8, 4, v2\n  v_lshl_add_u32 v7, v8, 5, v7\n  v_and_b32 v8, 3, v2\n  v_lshl_add_u32 v7, v8, 3, v7")
    k("  s_lshl_b32 s6, s3, 7\n  v_add_u32 v7, s6, v7")
    k(f"  s_movk_i32 s7, {UT_STRIDE}\n  v_mul_lo_u32 v8, s7, v0\n  s_lshl_b32 s5, s4, 4\n  v_add_u32 v8, s5, v8")
    k(f"  s_add_u32 s34, s32, {WS_UT}\n  s_addc_u32 s35, s33, 0")
    k("  s_waitcnt lgkmcnt(0)\n  s_barrier")
    for i in range(3):
        if i == 2: k("  s_cmp_ge_u32 s3, 2\n  s_cbranch_scc1 P_fin")
        k(f"  ds_read_b64_tr_b16 v[{20+4*i}:{21+4*i}], v7 offset:{512*i}\n  ds_read_b64_tr_b16 v[{22+4*i}:{23+4*i}], v7 offset:{512*i+4*1344}")
        k("  s_waitcnt lgkmcnt(0)")
        k(f"  global_store_dwordx4 v8, v[{20+4*i}:{23+4*i}], s[34:35]")
        k(f"  v_add_u32 v8, {256*UT_STRIDE}, v8")
    k("P_fin:")
    k.stamp_out(0)
    k("P_done:\n  s_endpgm")
    tab = ktab_offsets()
    k.tail.append(".p2align 6\nP_tab:")
    for i in range(0, len(tab), 16):
        k.tail.append("  .short " + ", ".join(str(x) for x in tab[i:i+16]))
    return k
```

```python
def touch_share(off, L, vtmp, vdst, stmp):
    n = (L + 63) // 64; per = L // n; assert per * n == L
    out = [(f"  v_min_u32 v{vtmp}, {per-1}, v2\n  v_lshlrev_b32 v{vtmp}, 7, v{vtmp}\n  s_lshr_b32 s{stmp}, s2, 3\n  s_lshl_b32 s{stmp}, s{stmp}, 2\n  s_add_u32 s{stmp}, s{stmp}, s3\n  s_mul_i32 s{stmp}, s{stmp}, {L*128}\n  s_add_u32 s{stmp}, s{stmp}, {off}", False)]
    for i in range(n):
        out.append((f"  buffer_load_dword v{vdst}, v{vtmp}, s[36:39], s{stmp} offen sc1", True))
        if i < n - 1: out.append((f"  s_add_u32 s{stmp}, s{stmp}, {per*128}", False))
    return out

def pack_item(k, pfx):
    k("  v_lshrrev_b32 v3, 3, v2\n  v_mul_lo_u32 v3, s6, v3\n  v_and_b32 v4, 7, v2\n  v_lshl_add_u32 v3, v4, 4, v3")
    k("  s_lshl_b32 s13, s6, 3\n  s_lshl_b32 s14, s13, 3\n  s_mul_i32 s14, s14, s11\n  s_lshl_b32 s15, s5, 7\n  s_add_u32 s14, s14, s15\n  s_lshl_b32 s15, s3, 13")
    for e in range(8):
        k(f"  s_add_u32 m0, s15, {1024*e}\n  s_nop 0\n  buffer_load_dwordx4 v3, s[44:47], s14 offen lds")
        if e < 7: k("  s_add_u32 s14, s14, s13")
    k("  v_lshrrev_b32 v4, 4, v2\n  v_bfe_u32 v5, v2, 2, 2\n  v_lshl_add_u32 v4, v4, 3, v5\n  v_lshlrev_b32 v4, 7, v4\n  v_and_b32 v5, 3, v2\n  v_lshl_add_u32 v4, v5, 4, v4\n  v_add_u32 v4, s15, v4")
    k("  v_lshlrev_b32 v5, 4, v2")
    k("  s_lshr_b32 s28, s11, 1\n  s_mul_i32 s28, s28, s7\n  s_and_b32 s29, s11, 1\n  s_lshl_b32 s29, s29, 11\n  s_add_u32 s28, s28, s29\n  s_add_u32 s28, s28, s8")
    for tt in range(4):
        k(f"  s_lshl_b32 s29, s5, 2\n  s_add_u32 s29, s29, {tt}\n  s_mul_i32 s30, s29, 205\n  s_lshr_b32 s30, s30, 10\n  s_mul_i32 s31, s30, 5\n  s_sub_u32 s29, s29, s31")
        k("  s_and_b32 s31, s30, s12\n  s_sub_u32 s29, s29, s31\n  s_cmp_lt_i32 s29, 0\n  s_cselect_b32 s29, 4, s29")
        k(f"  s_mul_i32 s30, s30, s9\n  s_mul_i32 s29, s29, s10\n  s_add_u32 s{56+tt}, s29, s30\n  s_add_u32 s{56+tt}, s{56+tt}, s28")
    k("  s_waitcnt vmcnt(0)")
    for tt in range(4):
        for kk in range(2):
            for hf in range(2):
                r = 16 + 8*tt + 4*kk + 2*hf
                k(f"  ds_read_b64_tr_b16 v[{r}:{r+1}], v4 offset:{kk*4096 + hf*512 + 64*(tt>>1) + 8*(tt&1)}")
    for tt in range(4):
        for kk in range(2):
            r = 16 + 8*tt + 4*kk
            k(f"  s_waitcnt lgkmcnt({14 - 4*tt - 2*kk})")
            k(f"  buffer_store_dwordx4 v[{r}:{r+3}], v5, s[36:39], s{56+tt} offen offset:{1024*kk}")
```

```python
from asmfw import K
from layout import *
from k_common import *

CST = 4160
UOFF = 4 * CST
DREG = UOFF + 4608
CONV_LDS = 4 * DREG

def gen_conv():
    k = K("conv_kernel", 256, 256, CONV_LDS, vgpr=256, sgpr=80)
    k("  s_cmp_ge_u32 s2, 256\n  s_cbranch_scc1 C_done")
    k.stamp(0); k.stamp(7, True)
    k(f"  s_load_dwordx2 s[32:33], s[0:1], {KA_WS}")
    k(f"  s_load_dwordx2 s[16:17], s[0:1], {KA_X}\n  s_load_dwordx2 s[18:19], s[0:1], {KA_DSK}")
    k(f"  s_load_dwordx8 s[20:27], s[0:1], {KA_W1}")
    k("  v_lshrrev_b32 v1, 6, v0\n  v_and_b32 v2, 63, v0")
    k("  v_readfirstlane_b32 s3, v1")
    k("  s_mov_b32 s40, 0xffff0000")
    k("  s_cmp_ge_u32 s2, 160\n  s_cbranch_scc1 C_aux")
    k("  s_and_b32 s4, s2, 7\n  s_mul_i32 s4, s4, 20\n  s_lshr_b32 s5, s2, 3\n  s_add_u32 s4, s4, s5\n  s_lshl_b32 s4, s4, 2")
    k("  s_add_u32 s5, s4, s3")
    k(f"  s_mul_i32 s6, s3, {DREG}")
    k("  v_lshlrev_b32 v3, 4, v2")
    k(f"  s_and_b32 s29, s2, 7\n  s_mul_i32 s30, s29, {SLAB}\n  s_mul_i32 s29, s29, 80\n  s_sub_u32 s29, s5, s29")
    k(f"  s_mul_i32 s7, s29, {UT_STRIDE}\n  s_add_u32 s7, s7, s30\n  s_mul_i32 s8, s29, {KG_STRIDE}\n  s_add_u32 s8, s8, s30")
    k("  s_lshr_b32 s9, s5, 1\n  s_lshl_b32 s9, s9, 2\n  s_and_b32 s10, s5, 1\n  s_lshl_b32 s10, s10, 4")
    k(f"  v_add_u32 v4, {UOFF}, v3")
    k(f"  v_bfe_u32 v5, v2, 1, 2\n  v_mul_u32_u24 v5, {CST}, v5\n  v_and_b32 v6, 1, v2\n  v_lshl_add_u32 v5, v6, 4, v5\n  v_add_u32 v5, 4096, v5")
    k("  v_cmp_gt_u32 vcc, 32, v2\n  v_cndmask_b32 v4, v5, v4, vcc\n  v_add_u32 v4, s6, v4")
    k("  v_mov_b32 v8, 0\n  v_mov_b32 v9, 0\n  v_mov_b32 v10, 0\n  v_mov_b32 v11, 0")
    k("  ds_write_b128 v4, v[8:11]")
    k("  s_waitcnt lgkmcnt(0)")
    k.stamp(1)
    k(f"  s_mov_b32 s36, s32\n  s_mov_b32 s37, s33\n  s_mov_b32 s38, {WS_SPAN}\n  s_mov_b32 s39, 0x00020000")
    k("  s_load_dword s11, s[18:19], s9")
    k(f"  s_add_u32 m0, s6, {UOFF+512}\n  s_add_u32 s12, s7, {SL_UT}")
    for i in range(4): k(f"  buffer_load_dwordx4 v3, s[36:39], s12 offen offset:{1024*i} lds")
    for sg in (3, 2, 1, 0):
        src = (SL_KG1 if sg & 1 else SL_KG0) + (4 if sg < 2 else 0)
        k(f"  s_add_u32 m0, s6, {sg*CST}\n  s_add_u32 s12, s8, {src}")
        for i in range(4): k(f"  buffer_load_dwordx4 v3, s[36:39], s12 offen offset:{1024*i} lds")
    k(f"  s_lshr_b32 s13, s2, 3\n  s_mul_i32 s13, s13, {QS}\n  s_add_u32 s13, s13, s30\n  s_add_u32 s14, s13, {SL_XQ}\n  v_lshlrev_b32 v15, 4, v0")
    k(f"  s_lshr_b32 s13, s4, 3\n  s_mul_i32 s13, s13, {OS}\n  s_and_b32 s28, s4, 4\n  s_lshl_b32 s28, s28, 1\n  s_add_u32 s13, s13, s28\n  s_add_u32 s13, s13, {WS_HO}")
    for i in range(4):
        k(f"  buffer_load_dwordx4 v[{208+4*i}:{211+4*i}], v15, s[36:39], s14 offen\n  s_add_u32 s14, s14, 4096")
    k("  v_and_b32 v6, 15, v2\n  v_lshrrev_b32 v7, 4, v2")
    k(f"  v_and_b32 v8, 3, v6\n  v_mul_u32_u24 v8, {CST}, v8\n  v_lshrrev_b32 v9, 2, v6\n  v_lshlrev_b32 v9, 3, v9\n  v_sub_u32 v8, v8, v9\n  v_lshl_add_u32 v8, v7, 4, v8\n  v_add_u32 v8, {24+384}, v8\n  v_add_u32 v12, s6, v8")
    k(f"  v_lshlrev_b32 v8, 5, v6\n  v_lshl_add_u32 v8, v7, 4, v8\n  v_add_u32 v8, {UOFF+32+384}, v8\n  v_add_u32 v13, s6, v8")
    k(f"  v_lshlrev_b32 v8, 5, v6\n  v_lshl_add_u32 v8, v7, 3, v8\n  v_add_u32 v14, s6, v8")
    k("  s_waitcnt lgkmcnt(0)")
    k("  s_lshr_b32 s11, s11, s10\n  s_lshl_b32 s11, s11, 16\n  v_mov_b32 v10, s11\n  v_mov_b32 v11, s11")
    k.stamp(2)
    k("  s_waitcnt vmcnt(20)")
    k.stamp(3)
    for J in range(8): k(f"  ds_read_b64 v[{48+2*J}:{49+2*J}], v14 offset:{UOFF+512+512*J}")
    for J in range(8):
        k(f"  s_waitcnt lgkmcnt({7-J})")
        for h in range(2):
            r = 48 + 2*J + h; o = 176 + 4*J + 2*h
            k(f"  v_lshlrev_b32 v{o}, 16, v{r}\n  v_and_b32 v{o+1}, s40, v{r}\n  v_pk_mul_f32 v[{o}:{o+1}], v[{o}:{o+1}], v[10:11]")
            k(f"  v_cvt_pk_bf16_f32 v8, v{o}, v{o+1}\n  v_lshlrev_b32 v{o}, 16, v8\n  v_and_b32 v{o+1}, s40, v8")
    for i in range(32): k(f"  v_mov_b32 v{16+i}, 0")
    k("  s_waitcnt vmcnt(4)")
    k.stamp(4)
    SETS = ((48, 80), (112, 144))
    def reads(st, extra):
        A, B = SETS[st]; out = []
        for n in range(8):
            off = 512 * (7 - n) + 64 - extra
            out.append(f"  ds_read_b64 v[{A+4*n}:{A+4*n+1}], v12 offset:{off}")
            out.append(f"  ds_read_b64 v[{A+4*n+2}:{A+4*n+3}], v12 offset:{off+8}")
            out.append(f"  ds_read_b128 v[{B+4*n}:{B+4*n+3}], v13 offset:{512*n + 64 - extra}")
        return out
    def mfmas(st):
        A, B = SETS[st]; out = []
        for J in range(8):
            for n in range(J + 1):
                m = J - n
                out.append(f"  v_mfma_f32_16x16x32_bf16 v[{16+4*J}:{19+4*J}], v[{A+4*n}:{A+4*n+3}], v[{B+4*m}:{B+4*m+3}], v[{16+4*J}:{19+4*J}]")
        return out
    def inter(mf, rd):
        out = []
        for i, m in enumerate(mf):
            out.append(m)
            if i < len(rd): out.append(rd[i])
        return out
    for l in reads(0, 0): k(l)
    for off in (WS_W1P, WS_W2P):
        for t, _ in touch_share(off, 50, 4, 5, 12): k(t)
    k("  s_mov_b32 s15, 0")
    k("C_loop:")
    k("  s_waitcnt lgkmcnt(0)")
    for l in inter(mfmas(0), reads(1, 64)): k(l)
    k("  v_subrev_u32 v12, 128, v12\n  v_subrev_u32 v13, 128, v13")
    k("  s_waitcnt lgkmcnt(0)")
    k("  s_cmp_eq_u32 s15, 3\n  s_cbranch_scc1 C_last")
    for l in inter(mfmas(1), reads(0, 0)): k(l)
    k("  s_add_u32 s15, s15, 1\n  s_branch C_loop")
    k("C_last:")
    for l in mfmas(1): k(l)
    k.stamp(5)
    k("  s_waitcnt vmcnt(0)")
    for i in range(16): k(f"  v_lshlrev_b32 v{48+2*i}, 16, v{208+i}\n  v_and_b32 v{49+2*i}, s40, v{208+i}")
    k.stamp(6)
    for J in range(8):
        for h in range(2):
            a = 16 + 4*J + 2*h; o = 176 + 4*J + 2*h
            k(f"  v_cvt_pk_bf16_f32 v8, v{a}, v{a+1}\n  v_lshlrev_b32 v{a}, 16, v8\n  v_and_b32 v{a+1}, s40, v8")
            k(f"  v_pk_add_f32 v[{a}:{a+1}], v[{a}:{a+1}], v[{o}:{o+1}]\n  v_cvt_pk_bf16_f32 v{112+2*J+h}, v{a}, v{a+1}")
        k(f"  ds_write_b64 v14, v[{112+2*J}:{113+2*J}] offset:{512*J}")
    k("  v_lshlrev_b32 v5, 2, v0\n  v_lshlrev_b32 v7, 5, v0")
    k("  s_waitcnt lgkmcnt(0)\n  s_barrier")
    for i in range(4):
        for w in range(4):
            off = w*DREG + 1024*i
            k(f"  ds_read_b32 v{80+4*i+w}, v5 offset:{off}" if off < 65536 else f"  ds_read_b32 v{80+4*i+w}, v6 offset:{off-4096}")
        if i == 0: k("  v_add_u32 v6, 4096, v5")
    for i in range(4):
        k(f"  s_waitcnt lgkmcnt({12-4*i})")
        for r in range(2):
            o = 112 + 8*i + 4*r
            for w in range(4):
                src = 80 + 4*i + w
                k(f"  v_and_b32 v{o+w}, s40, v{src}" if r & 1 else f"  v_lshlrev_b32 v{o+w}, 16, v{src}")
            x = 48 + 8*i + 4*r
            k(f"  v_pk_add_f32 v[{o}:{o+1}], v[{o}:{o+1}], v[{x}:{x+1}]\n  v_pk_add_f32 v[{o+2}:{o+3}], v[{o+2}:{o+3}], v[{x+2}:{x+3}]")
            d = 144 + 4*i + 2*r
            k(f"  v_cvt_pk_bf16_f32 v{d}, v{o}, v{o+1}\n  v_cvt_pk_bf16_f32 v{d+1}, v{o+2}, v{o+3}")
            k(f"  buffer_store_dwordx2 v[{d}:{d+1}], v7, s[36:39], s13 offen offset:{16*r}")
        k("  s_add_u32 s13, s13, 8192")
    k("  s_branch C_fin")
    k("C_aux:")
    k("  s_sub_u32 s4, s2, 160")
    k("  s_waitcnt lgkmcnt(0)")
    k(f"  s_mov_b32 s36, s32\n  s_mov_b32 s37, s33\n  s_mov_b32 s38, {WS_SPAN}\n  s_mov_b32 s39, 0x00020000")
    k("  s_cmp_ge_u32 s4, 34\n  s_cbranch_scc1 C_touch_only")
    k(f"  s_mov_b32 s44, s20\n  s_mov_b32 s45, s21\n  s_mov_b32 s46, {640*640*2}\n  s_mov_b32 s47, 0x00020000")
    k(f"  s_mov_b32 s5, s4\n  s_movk_i32 s6, 1280\n  s_mov_b32 s11, {WS_CS1}")
    k("  s_cmp_lt_u32 s4, 10\n  s_cbranch_scc1 C_go")
    k(f"  s_mov_b32 s44, s24\n  s_mov_b32 s45, s25\n  s_mov_b32 s46, {640*1536*2}\n  s_sub_u32 s5, s4, 10\n  s_movk_i32 s6, 3072\n  s_mov_b32 s11, {WS_CS3}")
    k("C_go:")
    k("  v_lshrrev_b32 v3, 3, v0\n  v_and_b32 v4, 7, v2")
    k("  v_mul_lo_u32 v5, s6, v3\n  s_lshl_b32 s14, s5, 7\n  v_lshl_add_u32 v5, v4, 4, v5\n  v_add_u32 v5, s14, v5")
    k("  s_lshl_b32 s15, s6, 5\n  s_mov_b32 s29, 0")
    for i in range(20):
        k(f"  buffer_load_dwordx4 v[{32+4*i}:{35+4*i}], v5, s[44:47], s29 offen\n  s_add_u32 s29, s29, s15")
    for off in (WS_W1P, WS_W2P):
        for t, _ in touch_share(off, 50, 10, 11, 12): k(t)
    k("  s_mov_b32 s41, 0x00003f80\n  s_mov_b32 s42, 0x3f800000")
    for n in range(8): k(f"  v_mov_b32 v{16+n}, 0")
    for i in range(20):
        k(f"  s_waitcnt vmcnt({21-i})")
        for n in range(8): k(f"  v_dot2_f32_bf16 v{16+n}, v{32+4*i+(n>>1)}, s{42 if n & 1 else 41}, v{16+n}")
    k.stamp(5)
    for n in range(8):
        r = 16 + n
        k(f"  v_add_f32_dpp v{r}, v{r}, v{r} row_ror:8 row_mask:0xf bank_mask:0xf")
        k(f"  v_mov_b32 v24, v{r}\n  v_permlane16_swap_b32 v{r}, v24\n  v_add_f32 v{r}, v{r}, v24")
        k(f"  v_mov_b32 v24, v{r}\n  v_permlane32_swap_b32 v{r}, v24\n  v_add_f32 v{r}, v{r}, v24")
    k("  s_lshl_b32 s12, s3, 8\n  v_lshlrev_b32 v9, 5, v4\n  v_add_u32 v9, s12, v9")
    k("  ds_write_b128 v9, v[16:19]\n  ds_write_b128 v9, v[20:23] offset:16")
    k("  s_waitcnt lgkmcnt(0)\n  s_barrier")
    k("  s_cmp_lg_u32 s3, 0\n  s_cbranch_scc1 C_fin")
    k("  v_lshlrev_b32 v9, 2, v2")
    for w in range(4): k(f"  ds_read_b32 v{16+w}, v9 offset:{256*w}")
    k("  s_lshl_b32 s12, s5, 8\n  s_add_u32 s12, s12, s11")
    k("  s_waitcnt lgkmcnt(0)")
    k("  v_add_f32 v16, v16, v17\n  v_add_f32 v18, v18, v19\n  v_add_f32 v16, v16, v18")
    k("  buffer_store_dword v16, v9, s[36:39], s12 offen")
    k("  s_branch C_fin")
    k("C_touch_only:")
    k("  s_sub_u32 s4, s4, 34\n  s_lshl_b32 s4, s4, 2\n  s_add_u32 s4, s4, s3")
    k("  s_cmp_ge_u32 s4, 240\n  s_cbranch_scc1 C_pk_done")
    k(f"  s_mov_b32 s44, s24\n  s_mov_b32 s45, s25\n  s_mov_b32 s46, {640*1536*2}\n  s_mov_b32 s47, 0x00020000\n  s_mov_b32 s8, {WS_W3P}")
    k("  s_movk_i32 s6, 3072\n  s_mov_b32 s9, 102400\n  s_movk_i32 s10, 20480\n  s_movk_i32 s7, 4096\n  s_mov_b32 s12, 0")
    k("  s_mul_i32 s11, s4, 2731\n  s_lshr_b32 s11, s11, 16\n  s_mul_i32 s13, s11, 24\n  s_sub_u32 s5, s4, s13")
    pack_item(k, "C3")
    k(f"  s_mov_b32 s44, s26\n  s_mov_b32 s45, s27\n  s_mov_b32 s8, {WS_W4P}")
    k("  s_movk_i32 s6, 1280\n  s_mov_b32 s9, 245760\n  s_movk_i32 s10, 4096\n  s_movk_i32 s7, 20480\n  s_mov_b32 s12, 1")
    k("  s_mul_i32 s11, s4, 6554\n  s_lshr_b32 s11, s11, 16\n  s_mul_i32 s13, s11, 10\n  s_sub_u32 s5, s4, s13")
    pack_item(k, "C4")
    k("C_pk_done:")
    for off in (WS_W1P, WS_W2P):
        for t, _ in touch_share(off, 50, 10, 11, 12): k(t)
    k("C_fin:")
    k.stamp_out(1)
    k("C_done:\n  s_endpgm")
    return k
```

```python
from asmfw import K
from layout import *
from k_common import *
import struct, os
def f32(x): return "0x%08x" % struct.unpack("<I", struct.pack("<f", x))[0]
K1 = -2.0 * 0.7978845608028654 * 1.4426950408889634
K2 = K1 * 0.044715
INV640 = f32(1.0 / 640.0)
EPS = f32(1e-5)
P = lambda name, d: int(os.environ.get(name, d))

class VM:
    def __init__(self, k): self.k = k; self.ops = []; self.q = []; self.qpos = 0
    def issue(self, text, tag): self.k(text); self.ops.append(tag)
    def push(self, pre, text, tag): self.q.append((pre, text, tag))
    def index_of(self, tag): return max(i for i, t in enumerate(self.q) if t[2] == tag)
    def upto(self, n):
        while self.qpos < min(n, len(self.q)):
            pre, text, tag = self.q[self.qpos]; self.qpos += 1
            if pre: self.k(pre)
            if os.environ.get("NOXL") and tag.startswith("X") and tag != "XID": self.ops.append(tag); self.k("  s_nop 0"); continue
            self.issue(text, tag)
    def wait(self, tag):
        if any(t[2] == tag for t in self.q): self.upto(self.index_of(tag) + 1)
        idx = max(i for i, t in enumerate(self.ops) if t == tag)
        n = min(63, len(self.ops) - 1 - idx)
        if getattr(self, "done", -1) >= idx: return
        self.done = len(self.ops) - 1 - n
        self.k(f"  s_waitcnt vmcnt({n})")

def red_q(out, r, t):
    out += [f"  v_mov_b32 v{t}, v{r}", f"  v_permlane16_swap_b32 v{r}, v{t}", f"  v_add_f32 v{r}, v{r}, v{t}",
            f"  v_mov_b32 v{t}, v{r}", f"  v_permlane32_swap_b32 v{r}, v{t}", f"  v_add_f32 v{r}, v{r}, v{t}"]

def ln_scalars(out, s1, s2, m, rs, t):
    out += [f"  v_mul_f32 v{s1}, {INV640}, v{s1}", f"  v_mul_f32 v{s2}, {INV640}, v{s2}",
            f"  v_fma_f32 v{s2}, -v{s1}, v{s1}, v{s2}", f"  v_max_f32 v{s2}, 0, v{s2}"]
    ln_from_mv(out, s1, s2, m, rs, t)

def ln_from_mv(out, mean, var, m, rs, t):
    out += [f"  v_cvt_pk_bf16_f32 v{t}, v{mean}, v{var}", f"  v_lshlrev_b32 v{m}, 16, v{t}", f"  v_and_b32 v{rs}, s40, v{t}",
            f"  v_add_f32 v{rs}, {EPS}, v{rs}", f"  v_cvt_pk_bf16_f32 v{rs}, v{rs}, v{rs}", f"  v_lshlrev_b32 v{rs}, 16, v{rs}",
            f"  v_sqrt_f32 v{rs}, v{rs}", f"  v_cvt_pk_bf16_f32 v{rs}, v{rs}, v{rs}", f"  v_lshlrev_b32 v{rs}, 16, v{rs}",
            f"  v_rcp_f32 v{rs}, v{rs}"]

def gelu_pair(out, a, cs, al, be, t, dst, CK1, CONE):
    out += [f"  v_pk_mul_f32 v[{t}:{t+1}], v[{cs}:{cs+1}], v[{be}:{be+1}]",
            f"  v_pk_fma_f32 v[{t}:{t+1}], v[{a}:{a+1}], v[{al}:{al+1}], v[{t}:{t+1}] neg_lo:[0,0,1] neg_hi:[0,0,1]",
            f"  v_cvt_pk_bf16_f32 v{t+2}, v{t}, v{t+1}",
            f"  v_lshlrev_b32 v{t}, 16, v{t+2}", f"  v_and_b32 v{t+1}, s40, v{t+2}",
            f"  v_pk_mul_f32 v[{t+2}:{t+3}], v[{t}:{t+1}], v[{t}:{t+1}]",
            f"  v_pk_fma_f32 v[{t+2}:{t+3}], v[{t+2}:{t+3}], s[42:43], v[{CK1}:{CK1+1}]",
            f"  v_pk_mul_f32 v[{t+2}:{t+3}], v[{t+2}:{t+3}], v[{t}:{t+1}]",
            f"  v_exp_f32 v{t+2}, v{t+2}", f"  v_exp_f32 v{t+3}, v{t+3}",
            f"  v_pk_add_f32 v[{t+2}:{t+3}], v[{t+2}:{t+3}], v[{CONE}:{CONE+1}]",
            f"  v_rcp_f32 v{t+2}, v{t+2}", f"  v_rcp_f32 v{t+3}, v{t+3}",
            f"  v_pk_mul_f32 v[{t}:{t+1}], v[{t}:{t+1}], v[{t+2}:{t+3}]",
            f"  v_cvt_pk_bf16_f32 v{dst}, v{t}, v{t+1}"]

def zip_lists(a, b):
    out = []
    for i in range(max(len(a), len(b))):
        if i < len(a): out.append(a[i])
        if i < len(b): out.append(b[i])
    return out

def prologue(k, pfx, big):
    k(f"  s_cmp_ge_u32 s2, 256\n  s_cbranch_scc1 {pfx}_done")
    k.stamp(0); k.stamp(7, True)
    k(f"  s_load_dwordx2 s[32:33], s[0:1], {KA_WS}\n  s_load_dwordx2 s[34:35], s[0:1], {KA_OUT}")
    k("  v_lshrrev_b32 v1, 6, v0\n  v_and_b32 v2, 63, v0\n  v_readfirstlane_b32 s3, v1")
    k("  v_lshlrev_b32 v3, 4, v2\n  v_and_b32 v6, 15, v2\n  v_lshrrev_b32 v7, 4, v2\n  v_add_u32 v1, 0x10000, v3")
    k(f"  v_mul_u32_u24 v4, {OS}, v7\n  v_lshl_add_u32 v4, v6, 4, v4\n  v_mul_u32_u24 v5, {KG_STRIDE}, v7\n  v_lshl_add_u32 v5, v6, 4, v5")
    k(f"  s_and_b32 s24, s2, 7\n  s_mul_i32 s24, s24, {SLAB}")
    k("  s_mov_b32 s40, 0xffff0000\n  s_mov_b32 s41, 0x3f803f80")
    k(f"  s_mov_b32 s42, {f32(K2)}\n  s_mov_b32 s43, {f32(K2)}")
    if big:
        k("  s_and_b32 s4, s2, 7\n  s_lshl_b32 s4, s4, 1\n  s_bfe_u32 s5, s2, 0x10003\n  s_add_u32 s4, s4, s5\n  s_lshr_b32 s5, s2, 4")
    else:
        k("  s_and_b32 s4, s2, 7\n  s_lshl_b32 s4, s4, 2\n  s_bfe_u32 s5, s2, 0x20003\n  s_add_u32 s4, s4, s5\n  s_lshr_b32 s5, s2, 5")
        k("  s_mul_i32 s20, s5, 5\n  s_add_u32 s20, s20, 1\n  s_lshr_b32 s20, s20, 1\n  s_lshr_b32 s21, s5, 1\n  s_mul_i32 s21, s21, 5\n  s_add_u32 s21, s21, 2\n  s_and_b32 s22, s5, 1")
        k(f"  s_mul_i32 s48, s20, {4*OS}\n  s_add_u32 s49, s48, {4*OS}\n  s_mul_i32 s50, s21, {4*OS}\n  s_lshl_b32 s23, s22, 3\n  s_add_u32 s50, s50, s23")
        k(f"  s_mul_i32 s62, s20, {4*KG_STRIDE}\n  s_add_u32 s63, s62, {4*KG_STRIDE}\n  s_mul_i32 s64, s21, {4*KG_STRIDE}\n  s_add_u32 s64, s64, s23")

def srd(k):
    k("  s_waitcnt lgkmcnt(0)")
    k(f"  s_mov_b32 s36, s32\n  s_mov_b32 s37, s33\n  s_mov_b32 s38, {WS_SPAN}\n  s_mov_b32 s39, 0x00020000")
    k.stamp(1)

WR = 8

def run_stream(k, vm, steps, mfma_of, lds_off_of, bar_before, xwait_of, vtarget, fillers, extra_of, PD, GW, FPER, WB=16, stamps={}):
    N = len(steps); fi = [0]
    def rd(j):
        if j in bar_before:
            vm.wait(bar_before[j])
            k("  s_barrier")
        off = lds_off_of(j); r = WB + 4 * (j % WR)
        k(f"  ds_read_b128 v[{r}:{r+3}], {'v3' if off < 65536 else ('v1' if off < 131072 else 'v8')} offset:{off & 65535}")
    def fill(i, n):
        while n > 0 and fi[0] < len(fillers) and fillers[fi[0]][0] <= i:
            t = fillers[fi[0]][1]; fi[0] += 1
            if t.startswith("@ST"): vm.issue(t[3:], "S")
            elif t.startswith("@VW"): vm.wait(t[3:]); continue
            else: k(t)
            if not t.lstrip().startswith("s_"): n -= 1
    nrd = 0
    for j in range(min(PD, N)): rd(j); nrd += 1
    for i in range(N):
        if i in stamps: k.stamp(stamps[i])
        vm.upto(vtarget(i))
        if i % GW == 0:
            while nrd < min(N, i + PD): rd(nrd); nrd += 1
            last = min(N - 1, i + GW - 1)
            k(f"  s_waitcnt lgkmcnt({nrd - 1 - last})")
        xt = xwait_of(i)
        if xt: vm.wait(xt)
        for m in mfma_of(i, WB + 4 * (i % WR)):
            k(m); fill(i, FPER)
        for e in extra_of(i): k(e)
    vm.upto(10**9)
    fill(10**9, 10**9)

def gen_g123(which):
    big = which == 3
    NT = 6 if big else 5; RT = 2 if big else 1; KS = 20
    NB = P(f"G{which}_NB", 4 if big else 2)
    LOOK = P(f"G{which}_LOOK", 8)
    pfx = f"G{which}"
    k = K(f"g{which}_kernel", 256, 256, NT * KS * 1024, vgpr=152 if big else 200, agpr=160 if big else 0, sgpr=80)
    vm = VM(k)
    prologue(k, pfx, big)
    XST = OS if which == 1 else KG_STRIDE; XV = 4 if which == 1 else 5
    WSRC = {1: WS_W1P, 2: WS_W2P, 3: WS_W3P}[which]
    k(f"  s_lshl_b32 s6, s4, {3 if big else 2}\n  s_mul_i32 s7, s3, {RT}\n  s_add_u32 s6, s6, s7")
    k("  s_lshl_b32 s18, s6, 8\n  s_and_b32 s25, s18, 0xfff\n  s_add_u32 s25, s25, s24")
    if which == 1: k(f"  s_add_u32 s7, s18, {WS_HO - 4*OS}")
    else: k(f"  s_add_u32 s7, s25, {SL_KG1 if which == 2 else SL_KG0}\n  s_sub_u32 s7, s7, {4*KG_STRIDE}")
    k(f"  s_mul_i32 s9, s3, 5120\n  s_mul_i32 s8, s5, {NT*20480}\n  s_add_u32 s8, s8, s9\n  s_add_u32 s8, s8, {WSRC}")
    XR = (lambda rt, ks: f"a[{(rt*KS+ks)*4}:{(rt*KS+ks)*4+3}]") if big else (lambda rt, ks: f"v[{120+4*ks}:{123+4*ks}]")
    ACC = 48 if not big else 100
    CS = 68 if not big else 48
    HR = 68; XB = 78
    CK1, CONE = 8, 10
    ALS = [12, 72]; BES = [14, 74]
    ST = 98 if not big else 76
    TMP = 104 if not big else 84
    DR = 112 if not big else 92
    TCH = 116 if not big else 148
    def push_w(nt):
        for i in range(5):
            pre = None
            if big:
                if i == 0: pre = f"  s_mov_b32 m0, s{72+nt}\n  s_mov_b32 s10, s{66+nt}"
                if i == 4: pre = f"  s_add_u32 m0, s{72+nt}, 4096\n  s_add_u32 s10, s{66+nt}, 4096"
            else:
                if i == 0: pre = f"  s_add_u32 m0, s9, {nt*20480}\n  s_add_u32 s10, s8, {nt*20480}"
                if i == 4: pre = f"  s_add_u32 m0, s9, {nt*20480+4096}\n  s_add_u32 s10, s8, {nt*20480+4096}"
            vm.push(pre, f"  buffer_load_dwordx4 v3, s[36:39], s10 offen offset:{1024*(i&3)} lds", f"W{nt}")
    WFIRST = P(f"G{which}_WFIRST", NB)
    if big:
        k("  s_and_b32 s26, s4, 1\n  s_cmp_eq_u32 s26, 0")
        for n in range(6):
            lo = [0, 1, 3, 2, 4, 5][n]; at = [4, 5, 3, 2, 0, 1][n]
            k(f"  s_cselect_b32 s{66+n}, {n}, {at}\n  s_cselect_b32 s{72+n}, {n}, {lo}")
        for n in range(6): k(f"  s_mulk_i32 s{66+n}, 20480\n  s_mulk_i32 s{72+n}, 20480\n  s_add_u32 s{66+n}, s{66+n}, s8\n  s_add_u32 s{72+n}, s{72+n}, s9")
    k(f"  v_mov_b32 v{CK1}, {f32(K1)}\n  v_mov_b32 v{CK1+1}, {f32(K1)}\n  v_mov_b32 v{CONE}, 1.0\n  v_mov_b32 v{CONE+1}, 1.0")
    small = []
    if which == 1:
        k(f"  v_lshlrev_b32 v{TMP}, 5, v7\n  s_lshl_b32 s51, s20, 7\n  s_add_u32 s51, s51, {WS_CS1}\n  s_lshl_b32 s52, s21, 7\n  s_lshl_b32 s23, s22, 4\n  s_add_u32 s52, s52, s23\n  s_add_u32 s52, s52, {WS_CS1}")
        for lt in range(5):
            small.append((None, f"  buffer_load_dwordx4 v[{CS+4*lt}:{CS+4*lt+3}], v{TMP}, s[36:39], s{51 if lt < 4 else 52} offen offset:{(128*(lt>>1) + 16*(lt&1)) if lt < 4 else 0}", "CS"))
        k("  s_lshr_b32 s12, s5, 1\n  s_lshr_b32 s13, s12, 1\n  s_add_u32 s13, s13, 1\n  s_sub_u32 s14, 0, s13\n  s_and_b32 s12, s12, 1\n  s_cmp_eq_u32 s12, 0\n  s_cselect_b32 s13, s13, s14")
        k(f"  s_lshl_b32 s12, s6, 4\n  s_add_u32 s12, s12, s13\n  v_add_u32 v{TMP+1}, s12, v6")
        k(f"  s_movk_i32 s12, 0x800\n  v_cmp_gt_u32 s[60:61], s12, v{TMP+1}")
        k(f"  v_bfe_u32 v0, v{TMP+1}, 8, 3\n  s_mov_b32 s12, {SLAB}\n  v_mul_lo_u32 v0, s12, v0\n  v_and_b32 v{TMP+1}, 0xff, v{TMP+1}\n  v_lshl_add_u32 v0, v{TMP+1}, 4, v0\n  v_mul_u32_u24 v{TMP+1}, {KG_STRIDE}, v7\n  v_add_u32 v0, v0, v{TMP+1}")
        k(f"  v_mov_b32 v{ST}, 0\n  v_mov_b32 v{ST+1}, 0")
        for j in range(3): k(f"  s_add_u32 s{54+j}, s{62+j}, {SL_KG1}")
        k(f"  s_lshl_b32 s12, s5, 2\n  s_add_u32 s12, s12, s3\n  s_mul_i32 s12, s12, 20\n  v_min_u32 v{TCH}, 19, v2\n  v_add_u32 v{TCH}, s12, v{TCH}")
        k(f"  v_lshrrev_b32 v{TCH+1}, 3, v{TCH}\n  v_mul_u32_u24 v{TCH+1}, {OS}, v{TCH+1}\n  v_and_b32 v{TCH}, 7, v{TCH}\n  v_lshl_add_u32 v{TCH}, v{TCH}, 7, v{TCH+1}")
        k(f"  s_lshl_b32 s12, s4, 10\n  s_add_u32 s12, s12, {WS_HO}")
    if which == 2:
        k(f"  s_add_u32 s16, s18, {WS_HO}\n  s_add_u32 s17, s25, {SL_KG0}")
        for j in range(3):
            k(f"  s_add_u32 s{51+j}, s16, s{48+j}\n  s_add_u32 s{54+j}, s17, s{62+j}")
            small.append((None, f"  buffer_load_dwordx{4 if j < 2 else 2} v[{HR+4*j}:{HR+4*j+(3 if j < 2 else 1)}], v4, s[36:39], s{51+j} offen", "H"))
        k(f"  s_lshl_b32 s14, s6, 7\n  s_add_u32 s14, s14, {WS_ST1}\n  v_lshlrev_b32 v{TMP}, 3, v6")
        small.append((None, f"  buffer_load_dwordx2 v[{ST}:{ST+1}], v{TMP}, s[36:39], s14 offen", "ST"))
    if which == 3:
        k(f"  v_lshlrev_b32 v{TMP}, 5, v7\n  s_mul_i32 s51, s5, 384\n  s_add_u32 s51, s51, {WS_CS3}")
        k(f"  v_lshlrev_b32 v{TMP+1}, 6, v6\n  v_lshl_add_u32 v{TMP+1}, v7, 4, v{TMP+1}")
        k(f"  s_lshl_b32 s14, s6, 10\n  s_add_u32 s14, s14, {WS_ST2}")
        for rt in range(RT): small.append((None, f"  buffer_load_dwordx4 v[{ST+4*rt}:{ST+3+4*rt}], v{TMP+1}, s[36:39], s14 offen offset:{1024*rt}", "ST"))
        k(f"  s_and_b32 s17, s6, 15\n  s_mul_i32 s17, s17, {48*1024}\n  s_mul_i32 s12, s5, 3072\n  s_add_u32 s17, s17, s12\n  s_add_u32 s17, s17, s24\n  s_add_u32 s17, s17, {SL_G}")
        k("  s_cmp_eq_u32 s26, 0")
        for j in range(3): k(f"  s_cselect_b32 s{48+j}, {j}, {2-j}")
        for j in range(3):
            k(f"  s_lshl_b32 s12, s{48+j}, 7\n  s_add_u32 s{52+j}, s51, s12\n  s_lshl_b32 s12, s{48+j}, 10\n  s_add_u32 s{56+j}, s17, s12\n  s_add_u32 s{60+j}, s{56+j}, {48*1024}")
        for nt in range(NT):
            small.append((None, f"  buffer_load_dwordx4 v[{CS+4*nt}:{CS+4*nt+3}], v{TMP}, s[36:39], s{52+(nt>>1)} offen offset:{16*(nt&1)}", "CS"))
    if which == 1: vm.push(None, f"  buffer_load_dword v{TCH+2}, v{TCH}, s[36:39], s12 offen sc1", "T")
    for e in small: vm.push(*e)
    NPRE = len(vm.q)
    for nt in range(WFIRST): push_w(nt)
    for ks in range(KS):
        for rt in range(RT):
            pre = f"  s_add_u32 s7, s7, {4*XST}" if rt == 0 else None
            vm.push(pre, f"  buffer_load_dwordx4 {XR(rt, ks)}, v{XV}, s[36:39], s7 offen offset:{256*rt}", f"X{ks}")
    for nt in range(WFIRST, NT): push_w(nt)
    srd(k)
    vm.upto(NPRE + 5 * WFIRST + LOOK)
    steps = [(nt, ks) for ks in range(KS) for nt in range(NB)] + [(nt, ks) for nt in range(NB, NT) for ks in range(KS)]
    last_step = {nt: max(i for i, s in enumerate(steps) if s[0] == nt) for nt in range(NT)}
    NBS = NB * KS
    fillers = []
    DELAY = 3
    def add(e, lst): fillers.extend((e, t) for t in lst)
    if which == 2:
        pre = ["@VWST", f"  v_mov_b32 v{ST+2}, v{ST+1}", f"  v_mov_b32 v{ST+3}, v{ST+1}", f"  v_mov_b32 v{ST+1}, v{ST}", f"  v_mov_b32 v{ST+4}, 0", f"  v_mov_b32 v{ST+5}, 0"]
        for i in range(10):
            o = XB + 2*i; r = HR + i
            pre += [f"  v_lshlrev_b32 v{o}, 16, v{r}", f"  v_and_b32 v{o+1}, s40, v{r}",
                    f"  v_pk_add_f32 v[{o}:{o+1}], v[{o}:{o+1}], v[{ST}:{ST+1}] neg_lo:[0,1] neg_hi:[0,1]",
                    f"  v_cvt_pk_bf16_f32 v{r}, v{o}, v{o+1}", f"  v_lshlrev_b32 v{o}, 16, v{r}", f"  v_and_b32 v{o+1}, s40, v{r}",
                    f"  v_pk_mul_f32 v[{o}:{o+1}], v[{o}:{o+1}], v[{ST+2}:{ST+3}]",
                    f"  v_cvt_pk_bf16_f32 v{r}, v{o}, v{o+1}", f"  v_lshlrev_b32 v{o}, 16, v{r}", f"  v_and_b32 v{o+1}, s40, v{r}"]
        add(4, pre)
    if which == 3:
        pre = ["@VWST"]
        for rt in range(RT):
            b = ST + 4*rt
            pre += [f"  v_add_f32 v{b}, v{b}, v{b+2}", f"  v_add_f32 v{b+1}, v{b+1}, v{b+3}"]
            red_q(pre, b, b+2); red_q(pre, b+1, b+2)
            ln_scalars(pre, b, b+1, b+2, ALS[rt], b+3)
            pre += [f"  v_mov_b32 v{ALS[rt]+1}, v{ALS[rt]}", f"  v_mul_f32 v{BES[rt]}, v{b+2}, v{ALS[rt]}", f"  v_mov_b32 v{BES[rt]+1}, v{BES[rt]}"]
        add(4, pre)
    if which == 1:
        o = []
        red_q(o, ST, ST+2); red_q(o, ST+1, ST+2)
        ln_scalars(o, ST, ST+1, ST+2, ST+3, ST+4)
        o += [f"  v_sub_f32 v{ST}, v{ST}, v{ST+2}", f"  v_mul_f32 v{ST}, v{ST}, v{ST+3}", f"  v_mul_f32 v{ST+1}, v{ST+1}, v{ST+3}", f"  v_mul_f32 v{ST+1}, v{ST+1}, v{ST+3}"]
        ln_from_mv(o, ST, ST+1, ST+5, 13, ST+4)
        o += [f"  v_mul_f32 v12, v{ST+3}, v13", f"  v_fma_f32 v14, v{ST+2}, v{ST+3}, v{ST+5}", "  v_mul_f32 v14, v14, v13", "  v_mov_b32 v13, v12", "  v_mov_b32 v15, v14"]
        add(NBS, o)
    if which in (1, 3): add(NBS, ["@VWCS"])
    def epi_tile(nt, rt):
        a = ACC + (nt * RT + rt) * 4; D = DR + 4 * rt + 2 * (nt & 1)
        if which in (1, 3):
            l1 = []; l2 = []
            gelu_pair(l1, a, CS + 4*nt, ALS[rt], BES[rt], TMP, D, CK1, CONE)
            gelu_pair(l2, a + 2, CS + 4*nt + 2, ALS[rt], BES[rt], TMP + 4, D + 1, CK1, CONE)
            o = zip_lists(l1, l2)
            if which == 1: o += [f"  v_cndmask_b32 v{D}, 0, v{D}, s[60:61]", f"  v_cndmask_b32 v{D+1}, 0, v{D+1}, s[60:61]"]
            return o
        ls = []
        for h in range(2):
            t = TMP + 2*h; x = XB + 4*nt + 2*h
            ls.append([f"  v_cvt_pk_bf16_f32 v{D+h}, v{a+2*h}, v{a+2*h+1}", f"  v_lshlrev_b32 v{t}, 16, v{D+h}", f"  v_and_b32 v{t+1}, s40, v{D+h}",
                  f"  v_pk_add_f32 v[{t}:{t+1}], v[{t}:{t+1}], v[{x}:{x+1}]", f"  v_cvt_pk_bf16_f32 v{D+h}, v{t}, v{t+1}",
                  f"  v_dot2_f32_bf16 v{ST+4}, v{D+h}, s41, v{ST+4}", f"  v_dot2_f32_bf16 v{ST+5}, v{D+h}, v{D+h}, v{ST+5}"])
        return zip_lists(*ls)
    def store(j, rt):
        w = 4 if (big or j < 2) else 2
        if big: addr = f"v3, s[36:39], s{56 + 4*rt + j} offen"
        else: addr = f"v{0 if which == 1 else 5}, s[36:39], s{54+j} offen"
        return [f"@ST  buffer_store_dwordx{w} v[{DR+4*rt}:{DR+4*rt+w-1}], {addr}"]
    for j in range(3):
        tiles = [t for t in (2*j, 2*j+1) if t < NT]
        for t in tiles:
            for rt in range(RT):
                e = max(last_step[t], NBS - 1) + DELAY
                add(e, epi_tile(t, rt))
                if t == tiles[-1]: add(e, store(j, rt))
    def mfma_of(i, w):
        nt, ks = steps[i]; out = []
        for rt in range(RT):
            a = ACC + (nt * RT + rt) * 4
            c = "0" if ks == 0 else f"v[{a}:{a+3}]"
            out.append(f"  v_mfma_f32_16x16x32_bf16 v[{a}:{a+3}], v[{w}:{w+3}], {XR(rt, ks)}, {c}")
        return out
    bar = {0: f"W{NB-1}"}
    for nt in range(NB, NT): bar[NBS + (nt - NB) * KS] = f"W{nt}"
    def xwait(i): return f"X{steps[i][1]}" if (i < NBS and steps[i][0] == 0) else None
    def vtarget(i):
        if i < NBS: return vm.index_of(f"X{steps[i][1]}") + 1 + LOOK
        return vm.index_of(f"X{KS-1}") + 1 + LOOK + (i - NBS)
    def extra(i):
        nt, ks = steps[i]
        if which == 1 and i < NBS and nt < 2:
            x = 120 + 4*ks
            if nt == 0: return [f"  v_dot2_f32_bf16 v{ST}, v{x+j}, s41, v{ST}" for j in range(4)]
            return [f"  v_dot2_f32_bf16 v{ST+1}, v{x+j}, v{x+j}, v{ST+1}" for j in range(4)]
        return []
    k.stamp(2)
    run_stream(k, vm, steps, mfma_of, lambda j: (steps[j][0] * KS + steps[j][1]) * 1024, bar, xwait, vtarget, fillers, extra,
               PD=6, GW=2, FPER=P(f"G{which}_FPER", 2 if big else 3), stamps={2: 3, NBS: 4, NBS + KS: 5})
    if which == 1:
        k("  s_cmp_lg_u32 s5, 0\n  s_cbranch_scc1 G1_fin")
        k(f"  s_lshl_b32 s14, s6, 7\n  s_add_u32 s14, s14, {WS_ST1}\n  v_lshlrev_b32 v{TMP}, 3, v6")
        k(f"  buffer_store_dwordx2 v[{ST+2}:{ST+3}], v{TMP}, s[36:39], s14 offen")
    if which == 2:
        o = []; red_q(o, ST+4, TMP); red_q(o, ST+5, TMP)
        for l in o: k(l)
        k(f"  s_lshl_b32 s14, s6, 10\n  s_lshl_b32 s12, s5, 3\n  s_add_u32 s14, s14, s12\n  s_add_u32 s14, s14, {WS_ST2}\n  v_lshlrev_b32 v{TMP}, 6, v6")
        k(f"  buffer_store_dwordx2 v[{ST+4}:{ST+5}], v{TMP}, s[36:39], s14 offen")
    k(f"{pfx}_fin:")
    k.stamp(6)
    k.stamp_out(1 + which)
    k(f"{pfx}_done:\n  s_endpgm")
    return k

def gen_g4():
    NT = 5; KS = 48; CH = 4; NCH = KS // CH; SL = P("G4_SL", 6); SLOT = NT * CH * 1024
    k = K("g4_kernel", 256, 256, SL * SLOT, vgpr=120 + SL * 16, sgpr=80)
    vm = VM(k)
    prologue(k, "G4", False)
    k("  v_add_u32 v8, 0x20000, v3")
    k("  s_lshl_b32 s6, s4, 2\n  s_add_u32 s6, s6, s3\n  s_lshl_b32 s18, s6, 8\n  s_and_b32 s25, s18, 0xfff\n  s_add_u32 s25, s25, s24")
    k(f"  s_and_b32 s7, s6, 15\n  s_mul_i32 s7, s7, {48*1024}\n  s_add_u32 s7, s7, s24\n  s_add_u32 s7, s7, {SL_G}")
    k("  s_and_b32 s26, s4, 3\n  s_mul_i32 s26, s26, 3\n  s_sub_u32 s26, s26, 1")
    k(f"  s_mul_i32 s9, s3, 5120\n  s_mul_i32 s8, s5, {NT*KS*1024}\n  s_add_u32 s8, s8, s9\n  s_add_u32 s8, s8, {WS_W4P}")
    XB = 120; ACC = 48
    for c in range(NCH):
        sl = c % SL
        w = []
        for i in range(5):
            pre = None
            if i == 0: pre = f"  s_add_u32 s26, s26, 1\n  s_cmp_eq_u32 s26, {NCH}\n  s_cselect_b32 s26, 0, s26\n  s_mul_i32 s10, s26, {SLOT}\n  s_add_u32 m0, s9, {sl*SLOT}\n  s_add_u32 s10, s10, s8"
            if i == 4: pre = f"  s_add_u32 m0, s9, {sl*SLOT+4096}\n  s_add_u32 s10, s10, 4096"
            w.append((pre, f"  buffer_load_dwordx4 v3, s[36:39], s10 offen offset:{1024*(i&3)} lds", f"C{c}"))
        for ks in range(CH):
            r = XB + (sl*CH + ks) * 4
            w.append(("  s_lshl_b32 s27, s26, 12\n  s_add_u32 s27, s27, s7" if ks == 0 else None, f"  buffer_load_dwordx4 v[{r}:{r+3}], v3, s[36:39], s27 offen offset:{ks*1024}", f"C{c}"))
        for e in w: vm.push(*e)
    k(f"  s_add_u32 s16, s18, {WS_HO}\n  s_add_u32 s17, s25, {SL_KG0}")
    for j in range(3): k(f"  s_add_u32 s{51+j}, s16, s{48+j}\n  s_add_u32 s{54+j}, s17, s{62+j}")
    k("  s_lshl_b32 s57, s20, 6\n  s_add_u32 s58, s57, 64\n  s_lshl_b32 s59, s21, 6\n  s_add_u32 s59, s59, s23")
    k("  s_lshl_b32 s12, s6, 4\n  v_add_u32 v9, s12, v6\n  s_movk_i32 s12, 1280\n  v_mul_lo_u32 v9, s12, v9\n  v_lshl_add_u32 v9, v7, 4, v9")
    srd(k)
    k(f"  s_mov_b32 s44, s34\n  s_mov_b32 s45, s35\n  s_mov_b32 s46, {ACT_BYTES}\n  s_mov_b32 s47, 0x00020000")
    vm.upto(P('G4_FIRST', 27))
    steps = [(c, ks, nt) for c in range(NCH) for ks in range(CH) for nt in range(NT)]
    PER = CH * NT; PD = 6
    AHEAD = P("G4_AHEAD", 2)
    def mfma_of(i, w):
        c, ks, nt = steps[i]; a = ACC + 4 * nt; x = XB + ((c % SL) * CH + ks) * 4
        cc = "0" if (c == 0 and ks == 0) else f"v[{a}:{a+3}]"
        return [f"  v_mfma_f32_16x16x32_bf16 v[{a}:{a+3}], v[{w}:{w+3}], v[{x}:{x+3}], {cc}"]
    bar = {c * PER: f"C{c}" for c in range(NCH)}
    def vtarget(i):
        c = i // PER; f = (i % PER + 1) / PER
        lim = max(SL, c - 2 + SL + 1) * 9
        return min(lim, int((c + AHEAD + f) * 9))
    fillers = []
    e = PER * (NCH - 3)
    for j in range(3):
        w = 4 if j < 2 else 2
        fillers.append((e, f"@ST  buffer_load_dwordx{w} v[{68+4*j}:{68+4*j+w-1}], v4, s[36:39], s{51+j} offen"))
        fillers.append((e, f"@ST  buffer_load_dwordx{w} v[{78+4*j}:{78+4*j+w-1}], v5, s[36:39], s{54+j} offen"))
    k.stamp(2)
    run_stream(k, vm, steps, mfma_of, lambda j: (steps[j][0] % SL) * SLOT + (steps[j][2] * CH + steps[j][1]) * 1024, bar, lambda i: None, vtarget, fillers, lambda i: [],
               PD=PD, GW=2, FPER=1, stamps={2: 3, 4 * PER: 4, 8 * PER: 5})
    k("  s_waitcnt vmcnt(0)")
    for nt in range(NT):
        a = ACC + 4 * nt; ls = []
        for h in range(2):
            t = 88 + 4*h; D = 96 + 2*nt + h; hr = 68 + 2*nt + h; xr = 78 + 2*nt + h
            ls.append([f"  v_cvt_pk_bf16_f32 v{D}, v{a+2*h}, v{a+2*h+1}", f"  v_lshlrev_b32 v{t}, 16, v{D}", f"  v_and_b32 v{t+1}, s40, v{D}",
             f"  v_lshlrev_b32 v{t+2}, 16, v{xr}", f"  v_and_b32 v{t+3}, s40, v{xr}", f"  v_pk_add_f32 v[{t}:{t+1}], v[{t}:{t+1}], v[{t+2}:{t+3}]",
             f"  v_cvt_pk_bf16_f32 v{D}, v{t}, v{t+1}", f"  v_lshlrev_b32 v{t}, 16, v{D}", f"  v_and_b32 v{t+1}, s40, v{D}",
             f"  v_lshlrev_b32 v{t+2}, 16, v{hr}", f"  v_and_b32 v{t+3}, s40, v{hr}", f"  v_pk_add_f32 v[{t}:{t+1}], v[{t}:{t+1}], v[{t+2}:{t+3}]",
             f"  v_cvt_pk_bf16_f32 v{D}, v{t}, v{t+1}"])
        for l in zip_lists(*ls): k(l)
        if nt in (1, 3): k(f"  buffer_store_dwordx4 v[{96+2*nt-2}:{97+2*nt}], v9, s[44:47], s{57+(nt>>1)} offen")
        if nt == 4: k(f"  buffer_store_dwordx2 v[{96+2*nt}:{97+2*nt}], v9, s[44:47], s59 offen")
    k.stamp(6)
    k.stamp_out(5)
    k("G4_done:\n  s_endpgm")
    return k

def gen_all():
    return [gen_g123(1), gen_g123(2), gen_g123(3), gen_g4()]
```

```python
from asmfw import K
from layout import *
from k_common import *

LOG2E = "0x3fb8aa3b"

def cmul(k, d, x, w):
    k(f"  v_pk_mul_f32 v[{d}:{d+1}], v[{x}:{x+1}], v[{w}:{w+1}] op_sel:[0,0] op_sel_hi:[1,0]")
    k(f"  v_pk_fma_f32 v[{d}:{d+1}], v[{x}:{x+1}], v[{w}:{w+1}], v[{d}:{d+1}] op_sel:[1,1,0] op_sel_hi:[0,1,1] neg_lo:[1,0,0]")

WREG = 8704
TB = 3 * WREG
PREP_LDS = 32768
N_LN = 128; N_PK = 50; N_KG = 640
PREP_GRID = N_LN + N_PK + N_KG

def gen_prep():
    k = K("prep_kernel", PREP_GRID, 256, PREP_LDS, vgpr=96, sgpr=64)
    k(f"  s_cmp_ge_u32 s2, {PREP_GRID}\n  s_cbranch_scc1 P_done")
    k.stamp(0); k.stamp(7, True)
    k("  s_load_dwordx16 s[16:31], s[0:1], 0")
    k(f"  s_load_dwordx2 s[32:33], s[0:1], {KA_WS}")
    k(f"  s_load_dwordx8 s[48:55], s[0:1], {KA_W1}")
    k("  v_lshrrev_b32 v1, 6, v0\n  v_and_b32 v2, 63, v0")
    k("  v_readfirstlane_b32 s3, v1")
    k("  s_mov_b32 s40, 0xffff0000")
    k(f"  s_cmp_lt_u32 s2, {N_LN}\n  s_cbranch_scc1 P_ln")
    k(f"  s_cmp_ge_u32 s2, {N_LN+N_KG}\n  s_cbranch_scc1 P_pack")
    k(f"  s_and_b32 s4, s2, 7\n  s_mul_i32 s4, s4, 80\n  s_lshr_b32 s5, s2, 3\n  s_sub_u32 s5, s5, {N_LN//8}\n  s_add_u32 s4, s4, s5")
    k("  s_getpc_b64 s[6:7]\nP_pc:\n  s_add_u32 s6, s6, P_tab-P_pc\n  s_addc_u32 s7, s7, 0")
    k("  v_lshlrev_b32 v3, 4, v0")
    k("  global_load_dwordx4 v[80:83], v3, s[6:7]\n  global_load_dword v84, v3, s[6:7] offset:16")
    k("  s_waitcnt lgkmcnt(0)")
    k.stamp(1)
    k("  s_cmp_eq_u32 s3, 3\n  s_cbranch_scc1 P_k_wait")
    k("  s_mul_i32 s5, s4, 384\n  v_lshl_add_u32 v4, v0, 1, s5")
    for i, sb in enumerate((18, 20, 22, 24, 26, 28)):
        k(f"  global_load_ushort v{10+i}, v4, s[{sb}:{sb+1}]")
    k("  s_lshr_b32 s8, s4, 1\n  s_lshl_b32 s8, s8, 2\n  s_load_dword s9, s[30:31], s8")
    k("  s_and_b32 s10, s4, 1\n  s_lshl_b32 s10, s10, 4")
    k(f"  s_mul_i32 s11, s3, {WREG}")
    k("  v_lshl_add_u32 v5, v2, 2, s11")
    k("  v_and_b32 v6, 31, v2\n  v_mul_u32_u24 v6, 272, v6\n  v_lshrrev_b32 v7, 5, v2\n  v_lshl_add_u32 v6, v7, 4, v6\n  v_add_u32 v6, s11, v6")
    k("  s_waitcnt lgkmcnt(0)")
    k("  s_lshr_b32 s9, s9, s10\n  s_lshl_b32 s9, s9, 16")
    k(f"  v_mov_b32 v8, {LOG2E}\n  v_mul_f32 v8, s9, v8\n  v_exp_f32 v8, v8\n  v_cvt_pk_bf16_f32 v8, v8, v8\n  v_lshlrev_b32 v8, 16, v8")
    k("  s_waitcnt vmcnt(0)")
    k.stamp(2)
    for i in range(6): k(f"  v_lshlrev_b32 v{10+i}, 16, v{10+i}")
    k("  v_mul_f32 v10, v8, v10\n  v_mul_f32 v11, v8, v11\n  v_mul_f32 v12, v8, v12\n  v_mul_f32 v13, v8, v13")
    k(f"  v_mul_f32 v10, {LOG2E}, v10\n  v_mul_f32 v11, 0.15915494, v11")
    for dst, e in ((16, None), (18, "0x41000000"), (20, "0x43800000")):
        if e is None:
            k(f"  v_exp_f32 v22, v10\n  v_fract_f32 v23, v11")
        else:
            k(f"  v_mul_f32 v22, {e}, v10\n  v_mul_f32 v23, {e}, v11\n  v_exp_f32 v22, v22\n  v_fract_f32 v23, v23")
        k(f"  v_cos_f32 v{dst}, v23\n  v_sin_f32 v{dst+1}, v23")
        k(f"  v_mul_f32 v{dst}, v22, v{dst}\n  v_mul_f32 v{dst+1}, v22, v{dst+1}")
    cmul(k, 24, 14, 12)
    def put(reg, row, neg):
        k(f"  v_cvt_pk_bf16_f32 v9, v{reg}, {'-' if neg else ''}v{reg+1}\n  ds_write_b32 v5, v9 offset:{row*272}")
    put(24, 0, True)
    for r in range(1, 8):
        cmul(k, 24 + 2*r, 24 + 2*(r-1), 16); put(24 + 2*r, r, True)
    for i, r in enumerate((0, 2, 4, 6)):
        cmul(k, 40 + 2*i, 24 + 2*r, 20); put(40 + 2*i, 8 + i, True)
    cmul(k, 48, 40, 20); put(48, 12, True)
    cmul(k, 50, 44, 20); put(50, 13, True)
    cmul(k, 52, 48, 20); put(52, 14, True)
    cmul(k, 54, 50, 20); put(54, 15, True)
    prev = 52
    for i in range(5):
        dst = 24 + 2*i
        cmul(k, dst, prev, 20); put(dst, 16 + i, True); prev = dst
    k("  s_waitcnt lgkmcnt(0)")
    for s in range(8): k(f"  ds_read_b128 v[{40+4*s}:{43+4*s}], v6 offset:{32*s}")
    k("  v_mov_b32 v9, 0x3f80\n  ds_write_b32 v5, v9 offset:0")
    put(18, 1, False)
    prev = 18
    for j in range(2, 32):
        dst = 24 + 2*(j & 1)
        cmul(k, dst, prev, 18); put(dst, j, False); prev = dst
    k("  s_waitcnt lgkmcnt(0)")
    k.stamp(3)
    breg = [8, 12, 16, 20, 72, 76, 88, 92]
    for s in range(8): k(f"  ds_read_b128 v[{breg[s]}:{breg[s]+3}], v6 offset:{32*s}")
    for s in range(8):
        k(f"  s_waitcnt lgkmcnt({7-s})")
        c = "0" if s == 0 else "v[24:39]"
        k(f"  v_mfma_f32_32x32x16_bf16 v[24:39], v[{40+4*s}:{43+4*s}], v[{breg[s]}:{breg[s]+3}], {c}")
    k("  v_and_b32 v6, 31, v2\n  v_mul_u32_u24 v6, 96, v6\n  v_lshl_add_u32 v6, v7, 4, v6\n  v_add_u32 v6, s11, v6")
    for g in range(3): k(f"  ds_write_b128 v6, v[{24+4*g}:{27+4*g}] offset:{32*g}")
    k("P_k_wait:")
    k("  s_waitcnt lgkmcnt(0)\n  s_barrier")
    k.stamp(4)
    k("  s_cmp_eq_u32 s3, 3\n  s_cbranch_scc1 P_k_zero")
    for w in range(3): k(f"  ds_read_b128 v[{8+4*w}:{11+4*w}], v3 offset:{w*WREG}")
    k("  v_lshlrev_b32 v4, 3, v0")
    k("  s_waitcnt lgkmcnt(0)")
    for i in range(4): k(f"  v_add_f32 v{8+i}, v{8+i}, v{12+i}\n  v_add_f32 v{8+i}, v{8+i}, v{16+i}")
    k("  v_cvt_pk_bf16_f32 v8, v8, v9\n  v_cvt_pk_bf16_f32 v9, v10, v11")
    k(f"  ds_write_b64 v4, v[8:9] offset:{TB}")
    k("  s_branch P_k_gather")
    k("P_k_zero:")
    k(f"  v_mov_b32 v8, 0\n  v_mov_b32 v4, {TB+1536}\n  ds_write_b32 v4, v8")
    k("P_k_gather:")
    k("  s_waitcnt vmcnt(0)")
    for i in range(4):
        k(f"  v_and_b32 v{20+2*i}, 0xffff, v{80+i}\n  v_lshrrev_b32 v{21+2*i}, 16, v{80+i}")
    k("  v_and_b32 v28, 0xffff, v84")
    k(f"  s_mul_i32 s8, s4, {KG_STRIDE}\n  s_and_b32 s9, s2, 7\n  s_mul_i32 s9, s9, {SLAB - 80*KG_STRIDE}\n  s_add_u32 s8, s8, s9\n  v_add_u32 v4, s8, v3")
    k(f"  s_add_u32 s34, s32, {SL_KG1}\n  s_addc_u32 s35, s33, 0\n  s_add_u32 s36, s32, {SL_KG0}\n  s_addc_u32 s37, s33, 0")
    k("  s_waitcnt lgkmcnt(0)\n  s_barrier")
    k.stamp(5)
    for i in range(9): k(f"  ds_read_u16 v{30+i}, v{20+i} offset:{TB}")
    k("  s_waitcnt lgkmcnt(0)")
    for i in range(4):
        k(f"  v_lshl_or_b32 v{40+i}, v{31+2*i}, 16, v{30+2*i}\n  v_lshl_or_b32 v{44+i}, v{32+2*i}, 16, v{31+2*i}")
    k("  global_store_dwordx4 v4, v[40:43], s[34:35]\n  global_store_dwordx4 v4, v[44:47], s[36:37]")
    k("  global_load_dword v52, v4, s[34:35] sc1\n  global_load_dword v53, v4, s[36:37] sc1")
    k("  v_mov_b32 v48, 0\n  v_mov_b32 v49, 0\n  v_mov_b32 v50, 0\n  v_mov_b32 v51, 0\n  v_add_u32 v4, 4096, v4")
    k("  s_cmp_lg_u32 s3, 0\n  s_cbranch_scc1 P_fin")
    k("  v_cmp_eq_u32 vcc, 0, v0\n  s_and_saveexec_b64 s[38:39], vcc")
    k("  global_store_dwordx4 v4, v[48:51], s[34:35]\n  global_store_dwordx4 v4, v[48:51], s[36:37]")
    k("  s_branch P_fin")
    k("P_pack:")
    k(f"  s_sub_u32 s4, s2, {N_LN+N_KG}\n  s_lshl_b32 s4, s4, 2\n  s_add_u32 s4, s4, s3")
    k("  s_waitcnt lgkmcnt(0)")
    k.stamp(1)
    k(f"  s_mov_b32 s44, s48\n  s_mov_b32 s45, s49\n  s_mov_b32 s46, {640*640*2}\n  s_mov_b32 s47, 0x00020000\n  s_mov_b32 s8, {WS_W1P}")
    k("  s_cmp_lt_u32 s4, 100\n  s_cbranch_scc1 P_go")
    k(f"  s_mov_b32 s44, s50\n  s_mov_b32 s45, s51\n  s_sub_u32 s4, s4, 100\n  s_mov_b32 s8, {WS_W2P}")
    k("P_go:")
    k("  s_movk_i32 s6, 1280\n  s_mov_b32 s9, 102400\n  s_movk_i32 s10, 20480\n  s_movk_i32 s7, 4096\n  s_mov_b32 s12, 1")
    k("  s_mul_i32 s11, s4, 6554\n  s_lshr_b32 s11, s11, 16\n  s_mul_i32 s13, s11, 10\n  s_sub_u32 s5, s4, s13")
    k(f"  s_mov_b32 s36, s32\n  s_mov_b32 s37, s33\n  s_mov_b32 s38, {WS_SPAN}\n  s_mov_b32 s39, 0x00020000")
    pack_item(k, "P")
    k("  s_branch P_fin")
    US = 1344
    k("P_ln:")
    k("  s_and_b32 s5, s2, 7\n  s_lshl_b32 s5, s5, 4\n  s_lshr_b32 s4, s2, 3\n  s_add_u32 s4, s4, s5")
    k("  v_lshrrev_b32 v3, 4, v0\n  v_and_b32 v4, 15, v0")
    k("  v_mul_u32_u24 v5, 1280, v3\n  v_lshl_add_u32 v5, v4, 4, v5\n  s_mul_i32 s5, s4, 20480\n  v_add_u32 v5, s5, v5")
    k(f"  v_mul_u32_u24 v7, {US}, v3\n  v_lshl_add_u32 v7, v4, 4, v7")
    k("  s_waitcnt lgkmcnt(0)")
    k.stamp(1)
    for i in range(5): k(f"  global_load_dwordx4 v[{12+4*i}:{15+4*i}], v5, s[16:17] offset:{256*i}")
    k(f"  v_bfe_u32 v8, v2, 2, 2\n  v_mul_u32_u24 v8, {US}, v8\n  v_lshrrev_b32 v9, 4, v2\n  v_lshl_add_u32 v8, v9, 5, v8\n  v_and_b32 v9, 3, v2\n  v_lshl_add_u32 v8, v9, 3, v8")
    k(f"  s_lshl_b32 s6, s3, 7\n  v_add_u32 v8, s6, v8")
    k(f"  s_movk_i32 s7, {UT_STRIDE}\n  s_mov_b32 s8, {SLAB - 80*UT_STRIDE}\n  s_lshl_b32 s5, s4, 5")
    for i, r in enumerate((9, 78, 79)):
        k(f"  v_add_u32 v88, {256*i}, v0\n  v_mul_lo_u32 v{r}, s7, v88\n  v_mul_u32_u24 v88, 205, v88\n  v_lshrrev_b32 v88, 14, v88\n  v_mul_lo_u32 v88, s8, v88\n  v_add3_u32 v{r}, v{r}, v88, s5")
    k(f"  v_and_b32 v10, 7, v2\n  v_lshrrev_b32 v11, 3, v0\n  v_mul_u32_u24 v6, {2*US}, v10\n  v_lshl_add_u32 v6, v11, 3, v6")
    k(f"  s_movk_i32 s7, {QS}\n  s_mov_b32 s8, {SLAB - 20*QS}\n  s_lshl_b32 s5, s4, 7\n  v_lshl_add_u32 v10, v10, 4, s5")
    for i in range(5):
        k(f"  v_add_u32 v88, {32*i}, v11\n  v_mul_lo_u32 v{90+i}, s7, v88\n  v_mul_u32_u24 v88, 205, v88\n  v_lshrrev_b32 v88, 12, v88\n  v_mul_lo_u32 v88, s8, v88\n  v_add3_u32 v{90+i}, v{90+i}, v88, v10")
    k(f"  s_add_u32 s34, s32, {SL_UT}\n  s_addc_u32 s35, s33, 0\n  s_add_u32 s36, s32, {SL_XQ}\n  s_addc_u32 s37, s33, 0")
    for i in range(5):
        k(f"  s_waitcnt vmcnt({4-i})")
        k(f"  ds_write_b128 v7, v[{12+4*i}:{15+4*i}] offset:{256*i}")
        for h in range(4):
            r = 12 + 4*i + h; o = 32 + 8*i + 2*h
            k(f"  v_lshlrev_b32 v{o}, 16, v{r}\n  v_and_b32 v{o+1}, s40, v{r}")
    k.stamp(2)
    k("  s_waitcnt lgkmcnt(0)\n  s_barrier")
    for i in range(5):
        k(f"  ds_read_b64 v[{12+4*i}:{13+4*i}], v6 offset:{256*i}\n  ds_read_b64 v[{14+4*i}:{15+4*i}], v6 offset:{256*i+US}")
    def reduce16(r):
        for sh in (8, 4, 2, 1): k(f"  v_add_f32_dpp v{r}, v{r}, v{r} row_ror:{sh} row_mask:0xf bank_mask:0xf")
    k("  v_pk_add_f32 v[72:73], v[32:33], v[34:35]")
    for i in range(2, 20): k(f"  v_pk_add_f32 v[72:73], v[72:73], v[{32+2*i}:{33+2*i}]")
    k("  v_add_f32 v72, v72, v73")
    reduce16(72)
    k("  v_mul_f32 v72, 0x3acccccd, v72")
    k("  v_mov_b32 v73, v72\n  v_mov_b32 v74, 0\n  v_mov_b32 v75, 0")
    k("  s_waitcnt lgkmcnt(0)")
    for i in range(5):
        k(f"  global_store_dwordx4 v{90+i}, v[{12+4*i}:{15+4*i}], s[36:37]")
    for i in range(20):
        k(f"  v_pk_add_f32 v[76:77], v[{32+2*i}:{33+2*i}], v[72:73] neg_lo:[0,1] neg_hi:[0,1]\n  v_pk_fma_f32 v[74:75], v[76:77], v[76:77], v[74:75]")
    k("  v_add_f32 v74, v74, v75")
    reduce16(74)
    k("  v_mul_f32 v74, 0x3acccccd, v74")
    k("  v_cvt_pk_bf16_f32 v76, v72, v74\n  v_lshlrev_b32 v72, 16, v76\n  v_and_b32 v74, s40, v76\n  v_mov_b32 v73, v72")
    k("  v_add_f32 v74, 0x3727c5ac, v74\n  v_cvt_pk_bf16_f32 v74, v74, v74\n  v_lshlrev_b32 v74, 16, v74")
    k("  v_sqrt_f32 v74, v74\n  v_cvt_pk_bf16_f32 v74, v74, v74\n  v_lshlrev_b32 v74, 16, v74\n  v_rcp_f32 v74, v74\n  v_mov_b32 v75, v74")
    k("  s_barrier")
    for i in range(20):
        o = 32 + 2*i
        k(f"  v_pk_add_f32 v[{o}:{o+1}], v[{o}:{o+1}], v[72:73] neg_lo:[0,1] neg_hi:[0,1]")
        k(f"  v_cvt_pk_bf16_f32 v76, v{o}, v{o+1}\n  v_lshlrev_b32 v{o}, 16, v76\n  v_and_b32 v{o+1}, s40, v76")
        k(f"  v_pk_mul_f32 v[{o}:{o+1}], v[{o}:{o+1}], v[74:75]")
        k(f"  v_cvt_pk_bf16_f32 v{80+(i&7)}, v{o}, v{o+1}")
        if i % 4 == 3: k(f"  ds_write_b128 v7, v[{80+(i&4)}:{83+(i&4)}] offset:{256*(i//4)}")
    k.stamp(3)
    k("  s_waitcnt lgkmcnt(0)\n  s_barrier")
    for i in range(2):
        for g in range(4): k(f"  ds_read_b64_tr_b16 v[{32+8*i+2*g}:{33+8*i+2*g}], v8 offset:{512*i+4*g*US}")
    for i in range(2):
        k(f"  s_waitcnt lgkmcnt({4-4*i})")
        k(f"  global_store_dwordx4 v{(9, 78)[i]}, v[{32+8*i}:{35+8*i}], s[34:35]\n  global_store_dwordx4 v{(9, 78)[i]}, v[{36+8*i}:{39+8*i}], s[34:35] offset:16")
    k("  s_cmp_ge_u32 s3, 2\n  s_cbranch_scc1 P_fin")
    for g in range(4): k(f"  ds_read_b64_tr_b16 v[{48+2*g}:{49+2*g}], v8 offset:{1024+4*g*US}")
    k("  s_waitcnt lgkmcnt(0)")
    k(f"  global_store_dwordx4 v79, v[48:51], s[34:35]\n  global_store_dwordx4 v79, v[52:55], s[34:35] offset:16")
    k("P_fin:")
    k.stamp_out(0)
    k("P_done:\n  s_endpgm")
    tab = ktab_offsets()
    k.tail.append(".p2align 6\nP_tab:")
    for i in range(0, len(tab), 16):
        k.tail.append("  .short " + ", ".join(str(x) for x in tab[i:i+16]))
    return k
```

```python
MB = 1 << 20
L = 2048; D = 640; NS = 192; F = 1536
UT_STRIDE = 4352
KG_STRIDE = 4224
QS = 16640
OS = 33024
SLAB = 1536 * 1024
SL_KG0 = 0
SL_KG1 = 80 * KG_STRIDE
SL_UT = 160 * KG_STRIDE
SL_XQ = SL_UT + 80 * UT_STRIDE
SL_END = SL_XQ + 20 * QS
SL_G = SL_END - 16 * 48 * 1024
assert SL_G % 1024 == 0 and SL_G >= SL_KG1 and SL_END <= SLAB
WS_HO = 12 * MB
WS_SPAN = 32 * MB
WS_W1P = 25 * MB
WS_W2P = 26 * MB
WS_W3P = 27 * MB
WS_W4P = 29 * MB
WS_CS1 = 31 * MB
WS_CS3 = 31 * MB + 65536
WS_ST1 = 31 * MB + 2 * 65536
WS_ST2 = 31 * MB + 4 * 65536
ACT_BYTES = L * D * 2
GF_BYTES = L * F * 2
KA_X = 0; KA_ARE = 8; KA_AIM = 16; KA_BRE = 24; KA_BIM = 32; KA_CRE = 40; KA_CIM = 48; KA_LDT = 56; KA_DSK = 64
KA_BX = 72; KA_W1 = 80; KA_W2 = 88; KA_W3 = 96; KA_W4 = 104; KA_OUT = 112; KA_DBG = 120; KA_WS = 128

import struct
def bf16_round_int(l):
    u = struct.unpack("<I", struct.pack("<f", float(l)))[0]
    u = (u + 0x7FFF + ((u >> 16) & 1)) & 0xFFFF0000
    return int(struct.unpack("<f", struct.pack("<I", u))[0])

ROWS = list(range(8)) + [256, 258, 260, 262, 512, 516, 768, 772, 1024, 1280, 1536, 1792, 2048]
def k_lut():
    lut = {}
    for ri, rv in enumerate(ROWS):
        for c in range(32):
            lut.setdefault(rv + 8 * c, (ri, c))
    return lut
def ktab_offsets():
    lut = k_lut(); out = []
    for p in range(2064):
        lag = 2047 - p
        if lag < 0: out.append(1536)
        else:
            ri, c = lut[bf16_round_int(lag)]
            out.append(2 * (24 * c + ri))
    return out
```

```python
def touch_share(off, L, vtmp, vdst, stmp):
    n = (L + 63) // 64; per = L // n; assert per * n == L
    out = [(f"  v_min_u32 v{vtmp}, {per-1}, v2\n  v_lshlrev_b32 v{vtmp}, 7, v{vtmp}\n  s_lshr_b32 s{stmp}, s2, 3\n  s_lshl_b32 s{stmp}, s{stmp}, 2\n  s_add_u32 s{stmp}, s{stmp}, s3\n  s_mul_i32 s{stmp}, s{stmp}, {L*128}\n  s_add_u32 s{stmp}, s{stmp}, {off}", False)]
    for i in range(n):
        out.append((f"  buffer_load_dword v{vdst}, v{vtmp}, s[36:39], s{stmp} offen sc1", True))
        if i < n - 1: out.append((f"  s_add_u32 s{stmp}, s{stmp}, {per*128}", False))
    return out

def pack_item(k, pfx, flags=""):
    k("  v_lshrrev_b32 v6, 3, v2\n  v_mul_lo_u32 v6, s6, v6\n  v_and_b32 v4, 7, v2\n  v_lshl_add_u32 v6, v4, 4, v6")
    k("  s_lshl_b32 s13, s6, 3\n  s_lshl_b32 s14, s13, 3\n  s_mul_i32 s14, s14, s11\n  s_lshl_b32 s15, s5, 7\n  s_add_u32 s14, s14, s15\n  s_lshl_b32 s15, s3, 13")
    for e in range(8):
        k(f"  s_add_u32 m0, s15, {1024*e}\n  s_nop 0\n  buffer_load_dwordx4 v6, s[44:47], s14 offen lds")
        if e < 7: k("  s_add_u32 s14, s14, s13")
    k("  v_lshrrev_b32 v4, 4, v2\n  v_bfe_u32 v5, v2, 2, 2\n  v_lshl_add_u32 v4, v4, 3, v5\n  v_lshlrev_b32 v4, 7, v4\n  v_and_b32 v5, 3, v2\n  v_lshl_add_u32 v4, v5, 4, v4\n  v_add_u32 v4, s15, v4")
    k("  v_lshlrev_b32 v5, 4, v2")
    k("  s_lshr_b32 s28, s11, 1\n  s_mul_i32 s28, s28, s7\n  s_and_b32 s29, s11, 1\n  s_lshl_b32 s29, s29, 11\n  s_add_u32 s28, s28, s29\n  s_add_u32 s28, s28, s8")
    for tt in range(4):
        k(f"  s_lshl_b32 s29, s5, 2\n  s_add_u32 s29, s29, {tt}\n  s_mul_i32 s30, s29, 205\n  s_lshr_b32 s30, s30, 10\n  s_mul_i32 s31, s30, 5\n  s_sub_u32 s29, s29, s31")
        k("  s_and_b32 s31, s30, s12\n  s_sub_u32 s29, s29, s31\n  s_cmp_lt_i32 s29, 0\n  s_cselect_b32 s29, 4, s29")
        k(f"  s_mul_i32 s30, s30, s9\n  s_mul_i32 s29, s29, s10\n  s_add_u32 s{56+tt}, s29, s30\n  s_add_u32 s{56+tt}, s{56+tt}, s28")
    k("  s_waitcnt vmcnt(0)")
    for tt in range(4):
        for kk in range(2):
            for hf in range(2):
                r = 16 + 8*tt + 4*kk + 2*hf
                k(f"  ds_read_b64_tr_b16 v[{r}:{r+1}], v4 offset:{kk*4096 + hf*512 + 64*(tt>>1) + 8*(tt&1)}")
    for tt in range(4):
        for kk in range(2):
            r = 16 + 8*tt + 4*kk
            k(f"  s_waitcnt lgkmcnt({14 - 4*tt - 2*kk})")
            k(f"  buffer_store_dwordx4 v[{r}:{r+3}], v5, s[36:39], s{56+tt} offen offset:{1024*kk}{flags}")
```

```python
from asmfw import K
from layout import *
from k_common import *
from k_gemm import VM, red_q, zip_lists, f32, K1, K2, P, INV640, EPS

SLOT = 20480
WR = 8; WB = 16
NSL = 7; FLG = NSL * SLOT
ACC = 48; CS = 96; ST = 120; TMP = 128; DR = 136; AL2 = 144; BE2 = 146; PT = 148; V128K = 152
HP = 154; X1P = 164; MR = 174; XV = 176
CK1, CONE = 8, 10
SPIN_LIMIT = 400000
LDS_SPIN = 1 << 23
SLACK = 4
GS = 68; GQ = 72

def cost(t):
    t = t.lstrip()
    if t.startswith("s_") or t.startswith("@VW"): return 0
    return 2 if t.split()[0] in ("v_exp_f32", "v_rcp_f32", "v_sqrt_f32") else 1

def gelu4(a, cs, C, D, pk):
    T = TMP; o = []
    if pk:
        ls = []
        for h in range(2):
            x = T + 4*h; y = x + 2; A = a + 2*h; c = cs + 2*h
            ls.append([f"  v_pk_fma_f32 v[{x}:{x+1}], v[{C}:{C+1}], v[{c}:{c+1}], v[{A}:{A+1}] op_sel_hi:[0,1,1]",
                       f"  v_pk_mul_f32 v[{y}:{y+1}], v[{x}:{x+1}], v[{x}:{x+1}]",
                       f"  v_pk_fma_f32 v[{y}:{y+1}], v[{C+2}:{C+3}], v[{y}:{y+1}], v[{C}:{C+1}] op_sel:[0,0,1] op_sel_hi:[0,1,1]",
                       f"  v_pk_mul_f32 v[{y}:{y+1}], v[{y}:{y+1}], v[{x}:{x+1}]",
                       f"  v_exp_f32 v{y}, v{y}", f"  v_exp_f32 v{y+1}, v{y+1}",
                       f"  v_pk_fma_f32 v[{y}:{y+1}], v[{y}:{y+1}], v[{C+2}:{C+3}], v[{C+2}:{C+3}] op_sel:[0,1,1] op_sel_hi:[1,1,1]",
                       f"  v_rcp_f32 v{y}, v{y}", f"  v_rcp_f32 v{y+1}, v{y+1}",
                       f"  v_pk_mul_f32 v[{x}:{x+1}], v[{x}:{x+1}], v[{y}:{y+1}]",
                       f"  v_cvt_pk_bf16_f32 v{D+h}, v{x}, v{x+1}"])
        return zip_lists(*ls)
    ls = []
    for e in range(4):
        x = T + e; y = T + 4 + e
        ls.append([f"  v_fma_f32 v{x}, v{C}, v{cs+e}, v{a+e}", f"  v_mul_f32 v{y}, v{x}, v{x}", f"  v_fma_f32 v{y}, v{C+2}, v{y}, v{C+1}",
                   f"  v_mul_f32 v{y}, v{y}, v{x}", f"  v_exp_f32 v{y}, v{y}", f"  v_fma_f32 v{y}, v{y}, v{C+3}, v{C+3}", f"  v_rcp_f32 v{y}, v{y}",
                   f"  v_mul_f32 v{x}, v{x}, v{y}"])
    for i in range(8):
        for l in ls: o.append(l[i])
    return o + [f"  v_cvt_pk_bf16_f32 v{D}, v{T}, v{T+1}", f"  v_cvt_pk_bf16_f32 v{D+1}, v{T+2}, v{T+3}"]

def ln_s(out, mean, var, m, s, t):
    out += [f"  v_cvt_pk_bf16_f32 v{t}, v{mean}, v{var}", f"  v_lshlrev_b32 v{m}, 16, v{t}", f"  v_and_b32 v{s}, s40, v{t}",
            f"  v_add_f32 v{s}, {EPS}, v{s}", f"  v_cvt_pk_bf16_f32 v{s}, v{s}, v{s}", f"  v_lshlrev_b32 v{s}, 16, v{s}",
            f"  v_sqrt_f32 v{s}, v{s}", f"  v_cvt_pk_bf16_f32 v{s}, v{s}, v{s}", f"  v_lshlrev_b32 v{s}, 16, v{s}"]
def mean_var(out, s1, s2):
    out += [f"  v_mul_f32 v{s1}, {INV640}, v{s1}", f"  v_mul_f32 v{s2}, {INV640}, v{s2}", f"  v_fma_f32 v{s2}, -v{s1}, v{s1}, v{s2}", f"  v_max_f32 v{s2}, 0, v{s2}"]
def gelu_consts(out, C, t):
    out += [f"  v_rcp_f32 v{t}, v{C+3}", f"  v_mul_f32 v{C+1}, {f32(K1)}, v{t}", f"  v_mul_f32 v{C+2}, v{t}, v{t}", f"  v_mul_f32 v{C+2}, v{C+2}, v{t}", f"  v_mul_f32 v{C+2}, {f32(K2)}, v{C+2}"]

class Stream:
    def __init__(self, k, vm): self.k = k; self.vm = vm; self.uid = 0; self.t = 90; self.ring = [WB + 4*i for i in range(8)]
    def need_ready(self, n):
        self.uid += 1; u = self.uid; k = self.k
        k(f"GG_rd{u}:\n  ds_read_b128 v[{RT4}:{RT4+3}], v{VFL}\n  s_add_u32 s76, s76, 1\n  s_waitcnt lgkmcnt(0)\n  v_min_u32 v{RT4}, v{RT4}, v{RT4+1}\n  v_min3_u32 v{RT4}, v{RT4}, v{RT4+2}, v{RT4+3}\n  v_readfirstlane_b32 s13, v{RT4}\n  s_cmp_ge_u32 s13, {n}\n  s_cbranch_scc1 GG_ro{u}\n  s_cmp_lt_u32 s76, {LDS_SPIN}\n  s_cbranch_scc1 GG_rd{u}\nGG_ro{u}:")
    def free_text(self, n): return f"  v_mov_b32 v{self.t+1}, {n}\n  ds_write_b32 v{VFW}, v{self.t+1}"
    def run(self, N, mfma_of, lds_off_of, ready_before, free_after, xwait_of, vtarget, fillers, extra_of, PD=6, GW=2, FPER=2, stamps={}, bases=(3, 1, V128K)):
        PD = len(self.ring) - GW; k = self.k; vm = self.vm; fi = [0]; ops = []
        def rd(j):
            if j in ready_before: self.need_ready(ready_before[j]); ops.clear()
            off = lds_off_of(j); r = self.ring[j % len(self.ring)]
            k(f"  ds_read_b128 v[{r}:{r+3}], v{bases[off >> 16]} offset:{off & 65535}"); ops.append(j)
        def fill(i, n):
            while n > 0 and fi[0] < len(fillers) and fillers[fi[0]][0] <= i:
                t = fillers[fi[0]][1]; fi[0] += 1
                if t.startswith("@ST") or t.startswith("@HS"): vm.issue(t[3:], "S")
                elif t.startswith("@VW"): vm.wait(t[3:]); continue
                else: k(t)
                n -= cost(t)
        nrd = 0
        for j in range(min(PD, N)): rd(j); nrd += 1
        for i in range(N):
            if i in stamps: k.stamp(stamps[i])
            vm.upto(vtarget(i))
            if i % GW == 0:
                while nrd < min(N, i + PD): rd(nrd); nrd += 1
                last = min(N - 1, i + GW - 1)
                if last in ops:
                    idx = ops.index(last); k(f"  s_waitcnt lgkmcnt({len(ops) - 1 - idx})"); del ops[:idx + 1]
            xt = xwait_of(i)
            if xt: vm.wait(xt)
            for m in mfma_of(i, self.ring[i % len(self.ring)]):
                k(m); fill(i, FPER)
            for e in extra_of(i): k(e)
            if i in free_after: k(self.free_text(free_after[i])); ops.append(None)
        vm.upto(10**9)
        fill(10**9, 10**9)

import os
STP = os.environ.get("STP", "g1,s1,g2,s2,g3,s3").split(",")
KGS = KG_STRIDE
LSTAMP = bool(os.environ.get('STAMPS'))
RT4 = 140; VFL = 153; VFW = 0
def gen_gg():
    k = K("gg_kernel", 256, 512, FLG + 64, vgpr=256, agpr=0, sgpr=80)
    def sp(name):
        if name in STP: k.stamp(1 + STP.index(name))
    def spd(d): return {i: 1 + STP.index(n) for i, n in d.items() if n in STP}
    vm = VM(k); st = Stream(k, vm)
    uid = [0]
    def hstore(text, pre="", post=""):
        uid[0] += 1; n = uid[0]
        return f"@HS{pre}  s_cmp_lg_u32 s65, 0\n  s_cbranch_scc1 GG_hf{n}\n{text} sc1\n  s_branch GG_he{n}\nGG_hf{n}:\n{text}\nGG_he{n}:{post}"
    k("  s_cmp_ge_u32 s2, 256\n  s_cbranch_scc1 GG_done")
    k.stamp(0); k.stamp(7, True)
    k(f"  s_load_dwordx2 s[32:33], s[0:1], {KA_WS}\n  s_load_dwordx2 s[34:35], s[0:1], {KA_OUT}")
    k("  v_lshrrev_b32 v1, 6, v0\n  v_and_b32 v2, 63, v0\n  v_readfirstlane_b32 s3, v1")
    k(f"  v_lshlrev_b32 v3, 4, v2\n  v_mov_b32 v{VFL}, {FLG}")
    k(f"  s_and_b32 s19, s2, 7\n  s_lshl_b32 s4, s19, 2\n  s_bfe_u32 s5, s2, 0x20003\n  s_add_u32 s4, s4, s5\n  s_lshr_b32 s5, s2, 5\n  s_lshr_b32 s25, s2, 4")
    k("  s_mov_b32 s76, 0\n  s_cmp_ge_u32 s3, 4\n  s_cbranch_scc1 GG_loader")
    k(f"  v_and_b32 v6, 15, v2\n  v_lshrrev_b32 v7, 4, v2\n  v_add_u32 v1, 0x10000, v3\n  v_add_u32 v{V128K}, 0x20000, v3")
    k(f"  s_lshl_b32 s12, s3, 2\n  s_add_u32 s12, s12, {FLG+16}\n  v_mov_b32 v{VFW}, s12")
    k(f"  v_mul_u32_u24 v4, {OS}, v7\n  v_lshl_add_u32 v4, v6, 4, v4\n  v_mul_u32_u24 v5, {KGS}, v7\n  v_lshl_add_u32 v5, v6, 4, v5")
    k("  s_mov_b32 s40, 0xffff0000\n  s_mov_b32 s41, 0x3f803f80")
    k("  v_mov_b32 v8, s41\n  v_mov_b32 v9, s41\n  v_mov_b32 v10, s41\n  v_mov_b32 v11, s41")
    k("  s_getreg_b32 s66, hwreg(HW_REG_XCC_ID, 0, 4)\n  s_or_b32 s66, s66, 0x100")
    k(f"  s_mul_i32 s67, s19, {SLAB}")
    k("  s_mul_i32 s20, s5, 5\n  s_add_u32 s20, s20, 1\n  s_lshr_b32 s20, s20, 1\n  s_lshr_b32 s21, s5, 1\n  s_mul_i32 s21, s21, 5\n  s_add_u32 s21, s21, 2\n  s_and_b32 s22, s5, 1")
    k(f"  s_mul_i32 s48, s20, {4*OS}\n  s_add_u32 s49, s48, {4*OS}\n  s_mul_i32 s50, s21, {4*OS}\n  s_lshl_b32 s23, s22, 3\n  s_add_u32 s50, s50, s23")
    k(f"  s_mul_i32 s62, s20, {4*KGS}\n  s_add_u32 s63, s62, {4*KGS}\n  s_mul_i32 s64, s21, {4*KGS}\n  s_add_u32 s64, s64, s23")
    k("  s_lshl_b32 s6, s4, 2\n  s_add_u32 s6, s6, s3\n  s_lshl_b32 s18, s6, 8\n  s_and_b32 s68, s6, 15")
    k("  s_lshl_b32 s69, s68, 8\n  s_add_u32 s69, s69, s67")
    k("  s_lshl_b32 s24, s19, 1\n  s_bfe_u32 s27, s2, 0x10003\n  s_add_u32 s24, s24, s27")
    k("  s_lshl_b32 s26, s24, 3\n  s_lshl_b32 s12, s3, 1\n  s_add_u32 s26, s26, s12\n  s_and_b32 s27, s26, 15")
    k("  s_and_b32 s31, s4, 3\n  s_mul_i32 s31, s31, 3\n  s_sub_u32 s31, s31, 1")
    SLO = lambda j: (j % NSL) * SLOT
    def emit_hs(t): vm.issue(t[3:], "S")
    def publish(n, flag_off):
        vm.wait("S"); sp(f"s{n}a")
        k(flag_off)
        k(f"  v_mov_b32 v{PT}, 1\n  v_mov_b32 v{PT+1}, 0\n  s_mov_b64 exec, 1")
        vm.issue(hstore(f"  buffer_store_dword v{PT}, v{PT+1}, s[36:39], s12 offen")[3:], "F")
        k("  s_mov_b64 exec, -1")
    def poll(n, setup):
        k(setup)
        k("  s_mov_b32 s13, 0")
        k(f"GG_poll{n}:")
        k(f"  buffer_load_dword v{PT}, v{PT+1}, s[36:39], 0 offen sc1\n  s_waitcnt vmcnt(0)\n  v_cmp_ne_u32 vcc, 0, v{PT}\n  s_add_u32 s13, s13, 1")
        k(f"  s_cmp_eq_u64 vcc, -1\n  s_cbranch_scc1 GG_np{n}\n  s_cmp_lt_u32 s13, {SPIN_LIMIT}\n  s_cbranch_scc1 GG_poll{n}")
        k(f"GG_np{n}:")
        k(f"  s_cmp_lg_u32 s65, 0\n  s_cbranch_scc1 GG_na{n}\n  buffer_inv sc1\n  s_waitcnt vmcnt(0)\nGG_na{n}:")
        vm.done = len(vm.ops) - 1

    def gemm_phase(which, J0, NT, RT, NB, XR, pre_fill, epi_tile, store, extra, LOOK, FPER, stamps):
        KS = 20
        steps = [(nt, ks) for ks in range(KS) for nt in range(NB)] + [(nt, ks) for nt in range(NB, NT) for ks in range(KS)]
        last_step = {nt: max(i for i, s in enumerate(steps) if s[0] == nt) for nt in range(NT)}
        NBS = NB * KS
        fillers = list(pre_fill(NBS))
        N = len(steps); cur = 0.0
        for e, x in fillers: cur = max(cur, e) + cost(x) / (FPER * RT)
        inside = True
        for j in range(3):
            tiles = [t for t in (2*j, 2*j+1) if t < NT]
            for t in tiles:
                for rt in range(RT):
                    e = max(last_step[t], NBS - 1) + 3
                    u = epi_tile(t, rt, False)
                    need = sum(cost(x) for x in u) / (FPER * RT)
                    if inside and max(cur, e) + need <= N + SLACK: cur = max(cur, e) + need
                    else: inside = False; u = epi_tile(t, rt, True); e = 10**8
                    fillers += [(e, x) for x in u]
                    if t == tiles[-1]: fillers += [(e, x) for x in store(j, rt)]
        def mfma_of(i, w):
            nt, ks = steps[i]; out = []
            for rt in range(RT):
                a = ACC + (nt * RT + rt) * 4
                c = "0" if ks == 0 else f"v[{a}:{a+3}]"
                out.append(f"  v_mfma_f32_16x16x32_bf16 v[{a}:{a+3}], v[{w}:{w+3}], {XR(rt, ks)}, {c}")
            return out
        xt = lambda ks: f"X{which}_{ks}"
        def xwait(i): return xt(steps[i][1]) if (i < NBS and steps[i][0] == 0) else None
        def vtarget(i): return vm.index_of(xt(steps[i][1])) + 1 + LOOK if i < NBS else vm.qpos + 1
        ready = {0: J0 + NB}; free = {NBS - 1: J0 + NB}
        for nt in range(NB, NT): ready[NBS + (nt - NB) * KS] = J0 + nt + 1; free[last_step[nt]] = J0 + nt + 1
        vm.upto(vm.index_of(xt(0)) + LOOK)
        st.run(N, mfma_of, lambda j: SLO(J0 + steps[j][0]) + steps[j][1] * 1024, ready, free, xwait, vtarget, fillers,
               lambda i: extra(steps[i], i < NBS), FPER=FPER, stamps=stamps(NBS))

    VS1 = 88
    k("  s_lshr_b32 s12, s5, 1\n  s_lshr_b32 s13, s12, 1\n  s_add_u32 s13, s13, 1\n  s_sub_u32 s14, 0, s13\n  s_and_b32 s12, s12, 1\n  s_cmp_eq_u32 s12, 0\n  s_cselect_b32 s13, s14, s13")
    k(f"  s_lshl_b32 s12, s13, 4\n  s_add_u32 s7, s18, s12\n  s_add_u32 s7, s7, {WS_HO - 4*OS}")
    k(f"  s_lshl_b32 s12, s6, 4\n  s_add_u32 s12, s12, s13\n  v_add_u32 v{TMP+1}, s12, v6\n  s_movk_i32 s12, 0x800\n  v_cmp_gt_u32 s[60:61], s12, v{TMP+1}")
    k(f"  v_add_u32 v{VS1}, s13, v6\n  v_cmp_gt_u32 s[70:71], 16, v{VS1}\n  v_lshlrev_b32 v{VS1}, 3, v{VS1}")
    k(f"  v_lshlrev_b32 v{TMP}, 5, v7\n  s_lshl_b32 s51, s20, 7\n  s_add_u32 s51, s51, {WS_CS1}\n  s_lshl_b32 s52, s21, 7\n  s_lshl_b32 s12, s22, 4\n  s_add_u32 s52, s52, s12\n  s_add_u32 s52, s52, {WS_CS1}")
    k(f"  v_and_b32 v{ST}, 3, v6\n  v_cmp_eq_u32 s[42:43], 1, v{ST}\n  v_cmp_eq_u32 s[58:59], 2, v{ST}\n  v_cmp_eq_u32 s[78:79], 3, v{ST}\n  v_lshrrev_b32 v{ST}, 2, v6\n  v_cmp_eq_u32 s[56:57], v7, v{ST}")
    k(f"  s_add_u32 s17, s69, {SL_KG1}")
    for j in range(3): k(f"  s_add_u32 s{53+j}, s{62+j}, s17")
    k(f"  s_add_u32 s16, s18, {WS_HO}")
    for j in range(3): k(f"  s_add_u32 s{72+j}, s16, s{48+j}")
    k(f"  s_lshl_b32 s75, s19, 7\n  s_add_u32 s75, s75, {WS_XID}\n  s_lshr_b32 s14, s2, 3\n  s_lshl_b32 s14, s14, 2\n  v_mov_b32 v{TMP+2}, s14\n  v_mov_b32 v{TMP+3}, s66")
    k("  s_cmp_eq_u32 s3, 0\n  s_cselect_b32 s8, 1, 0\n  s_mov_b32 s9, 0")
    k(f"  v_and_b32 v{PT+3}, 31, v2\n  v_lshlrev_b32 v{PT+3}, 2, v{PT+3}")
    vm.push("  s_mov_b64 exec, s[8:9]", f"  buffer_store_dword v{TMP+3}, v{TMP+2}, s[36:39], s75 offen sc1\n  s_mov_b64 exec, -1", "I")
    for ks in range(20): vm.push(f"  s_add_u32 s7, s7, {4*OS}", f"  buffer_load_dwordx4 v[{XV+4*ks}:{XV+4*ks+3}], v4, s[36:39], s7 offen", f"X1_{ks}")
    for lt in range(5):
        vm.push(None, f"  buffer_load_dwordx4 v[{CS+4*lt}:{CS+4*lt+3}], v{TMP}, s[36:39], s{51 if lt < 4 else 52} offen offset:{(128*(lt>>1) + 16*(lt&1)) if lt < 4 else 0}", "CS")
    for j in range(3):
        w = 4 if j < 2 else 2
        vm.push(None, f"  buffer_load_dwordx{w} v[{HP+4*j}:{HP+4*j+w-1}], v4, s[36:39], s{72+j} offen", "H")
    vm.push(None, f"  buffer_load_dword v{PT+2}, v{PT+3}, s[36:39], s75 offen sc1", "XID")
    k(f"  s_mul_i32 s12, s5, {10*OS}\n  s_lshl_b32 s13, s4, 10\n  s_add_u32 s12, s12, s13\n  s_lshl_b32 s13, s3, 8\n  s_add_u32 s12, s12, s13\n  s_add_u32 s12, s12, {WS_HO}")
    k(f"  s_mul_i32 s13, s25, 384\n  s_min_u32 s14, s3, 2\n  s_lshl_b32 s14, s14, 7\n  s_add_u32 s13, s13, s14\n  s_add_u32 s13, s13, {WS_CS3}\n  s_add_u32 s28, s13, 64")
    k(f"  s_mul_i32 s15, s5, 320\n  s_and_b32 s15, s15, 0xffffff80\n  s_lshl_b32 s14, s3, 7\n  s_add_u32 s15, s15, s14\n  s_add_u32 s15, s15, {WS_CS1}\n  s_add_u32 s29, s15, 64")
    k("  s_barrier")
    k("  s_waitcnt lgkmcnt(0)")
    k("  s_add_u32 s10, s32, s12\n  s_addc_u32 s11, s33, 0")
    k(f"  s_mov_b32 s36, s32\n  s_mov_b32 s37, s33\n  s_mov_b32 s38, {WS_SPAN}\n  s_mov_b32 s39, 0x00020000")
    k(f"  s_mov_b32 s44, s34\n  s_mov_b32 s45, s35\n  s_mov_b32 s46, {ACT_BYTES}\n  s_mov_b32 s47, 0x00020000")
    vm.upto(1)
    for o in range(10):
        for h in range(4): k(f"  s_load_dword s77, s[10:11], {o*OS + 64*h}")
    for r in (15, 29, 13, 28): k(f"  s_load_dword s77, s[32:33], s{r}")
    k("  s_waitcnt lgkmcnt(0)")
    sp("g1t")
    def pre1(NBS):
        o = [f"  v_cndmask_b32 v{ST+1}, v{GQ}, v{GQ+1}, s[42:43]", f"  v_cndmask_b32 v{ST+1}, v{ST+1}, v{GQ+2}, s[58:59]", f"  v_cndmask_b32 v{ST+1}, v{ST+1}, v{GQ+3}, s[78:79]",
             f"  v_cndmask_b32 v{ST+1}, 0, v{ST+1}, s[56:57]", f"  v_mov_b32 v{ST}, v{GS}"]
        red_q(o, ST+1, ST+2)
        mean_var(o, ST, ST+1)
        ln_s(o, ST, ST+1, MR, ST+3, ST+2)
        o += [f"  v_rcp_f32 v{MR+1}, v{ST+3}", f"  v_sub_f32 v{ST}, v{ST}, v{MR}", f"  v_mul_f32 v{ST}, v{ST}, v{MR+1}", f"  v_mul_f32 v{ST+1}, v{ST+1}, v{MR+1}", f"  v_mul_f32 v{ST+1}, v{ST+1}, v{MR+1}"]
        ln_s(o, ST, ST+1, ST+4, ST+5, ST+2)
        o += [f"  v_fma_f32 v12, -v{ST+4}, v{ST+3}, -v{MR}", f"  v_mul_f32 v15, v{ST+3}, v{ST+5}"]
        gelu_consts(o, 12, ST+2)
        mode = (f"  s_mov_b32 s13, 0\nGG_xr:\n  v_cmp_ne_u32 vcc, 0, v{PT+2}\n  s_cmp_eq_u64 vcc, -1\n  s_cbranch_scc1 GG_xo\n  s_add_u32 s13, s13, 1\n  s_cmp_ge_u32 s13, {SPIN_LIMIT}\n  s_cbranch_scc1 GG_xo\n"
                f"  buffer_load_dword v{PT+2}, v{PT+3}, s[36:39], s75 offen sc1\n  s_waitcnt vmcnt(0)\n  s_branch GG_xr\nGG_xo:\n"
                f"  v_cmp_eq_u32 vcc, s66, v{PT+2}\n  s_cmp_eq_u64 vcc, -1\n  s_cselect_b32 s65, {0 if os.environ.get('FORCE_SLOW') else 1}, 0")
        return [(NBS + 3, t) for t in o] + [(NBS + 8, "@VWXID"), (NBS + 8, mode)]
    def epi1(nt, rt, pk):
        D = DR + 2 * (nt & 1)
        return gelu4(ACC + 4*nt, CS + 4*nt, 12, D, pk) + [f"  v_cndmask_b32 v{D}, 0, v{D}, s[60:61]", f"  v_cndmask_b32 v{D+1}, 0, v{D+1}, s[60:61]"]
    def store1(j, rt):
        w = 4 if j < 2 else 2
        o = [hstore(f"  buffer_store_dwordx{w} v[{DR}:{DR+w-1}], v5, s[36:39], s{53+j} offen")]
        if j == 0:
            o += [f"  s_lshl_b32 s14, s68, 7\n  s_add_u32 s14, s14, s67\n  s_add_u32 s14, s14, {SL_ST1}",
                  hstore(f"  buffer_store_dwordx2 v[{MR}:{MR+1}], v{VS1}, s[36:39], s14 offen", "  s_mov_b64 exec, s[70:71]\n", "\n  s_mov_b64 exec, -1")]
        return o
    def extra1(step, inB):
        nt, ks = step
        if inB and nt < 2:
            x = XV + 4*ks
            if nt == 0: return [f"  v_mfma_f32_16x16x32_bf16 v[{GS}:{GS+3}], v[8:11], v[{x}:{x+3}], {'0' if ks == 0 else f'v[{GS}:{GS+3}]'}"]
            return [f"  v_mfma_f32_16x16x32_bf16 v[{GQ}:{GQ+3}], v[{x}:{x+3}], v[{x}:{x+3}], {'0' if ks == 0 else f'v[{GQ}:{GQ+3}]'}"]
        return []
    X1R = lambda rt, ks: f"v[{XV+4*ks}:{XV+4*ks+3}]"
    R8 = list(st.ring)
    st.ring = (R8 + [76, 80, 84, 92, 164, 168])[:P("G1_WR", 14)]
    gemm_phase(1, 0, 5, 1, P("G1_NB", 5), X1R, pre1, epi1, store1, extra1, P("G1_LOOK", 10), P("G1_FPER", 2),
               lambda NBS: spd({2: "g1a", NBS // 2: "g1h", NBS - 1: "g1b"}))
    sp("g1")
    publish(1, f"  s_lshl_b32 s12, s6, 5\n  s_lshl_b32 s13, s5, 2\n  s_add_u32 s12, s12, s13\n  s_add_u32 s12, s12, {WS_FL1}")
    k(f"  s_sub_u32 s7, s17, {4*KGS}\n  s_add_u32 s17, s69, {SL_KG0}")
    for j in range(3): k(f"  s_add_u32 s{54+j}, s17, s{62+j}")
    k(f"  v_lshlrev_b32 v{ST+7}, 3, v6")
    poll(1, f"  s_lshl_b32 s12, s6, 5\n  s_add_u32 s12, s12, {WS_FL1}\n  v_and_b32 v{PT+1}, 7, v2\n  v_lshl_add_u32 v{PT+1}, v{PT+1}, 2, s12")
    sp("s1")
    st.t = 8
    st.ring = (R8 + [88, 92, 136, 144])[:P("G2_WR", 14)]
    vm.push(None, f"  buffer_load_dwordx2 v[{MR}:{MR+1}], v{ST+7}, s[36:39], s14 offen", "ST1")
    for ks in range(20): vm.push(f"  s_add_u32 s7, s7, {4*KGS}", f"  buffer_load_dwordx4 {X1R(0, ks)}, v5, s[36:39], s7 offen", f"X2_{ks}")
    k(f"  v_lshlrev_b32 v{ST+6}, 5, v7\n  s_mul_i32 s51, s25, 384\n  s_add_u32 s51, s51, {WS_CS3}")
    for nt in range(6): vm.push(None, f"  buffer_load_dwordx4 v[{CS+4*nt}:{CS+4*nt+3}], v{ST+6}, s[36:39], s51 offen offset:{128*(nt>>1) + 16*(nt&1)}", "CS")
    XB = 68
    def pre2(NBS):
        vm.upto(vm.index_of("X2_0") + P("G2_LOOK", 10)); vm.wait("ST1")
        ls = []
        for i in range(10):
            o = XB + 2*i; r = HP + i; t = TMP + (i & 3)
            ls.append([f"  v_lshlrev_b32 v{o}, 16, v{r}", f"  v_and_b32 v{o+1}, s40, v{r}",
                    f"  v_pk_add_f32 v[{o}:{o+1}], v[{o}:{o+1}], v[{MR}:{MR+1}] op_sel_hi:[1,0] neg_lo:[0,1] neg_hi:[0,1]",
                    f"  v_cvt_pk_bf16_f32 v{t}, v{o}, v{o+1}", f"  v_lshlrev_b32 v{o}, 16, v{t}", f"  v_and_b32 v{o+1}, s40, v{t}",
                    f"  v_pk_mul_f32 v[{o}:{o+1}], v[{o}:{o+1}], v[{MR}:{MR+1}] op_sel:[0,1] op_sel_hi:[1,1]",
                    f"  v_cvt_pk_bf16_f32 v{t}, v{o}, v{o+1}", f"  v_lshlrev_b32 v{o}, 16, v{t}", f"  v_and_b32 v{o+1}, s40, v{t}"])
        for l in ls:
            for x in l: k(x)
        return []
    def epi2(nt, rt, pk):
        a = ACC + 4*nt; D = X1P + 2*nt; ls = []
        for h in range(2):
            t = TMP + 2*h; x = XB + 4*nt + 2*h
            add = [f"  v_pk_add_f32 v[{t}:{t+1}], v[{t}:{t+1}], v[{x}:{x+1}]"] if pk else [f"  v_add_f32 v{t}, v{t}, v{x}", f"  v_add_f32 v{t+1}, v{t+1}, v{x+1}"]
            ls.append([f"  v_cvt_pk_bf16_f32 v{D+h}, v{a+2*h}, v{a+2*h+1}", f"  v_lshlrev_b32 v{t}, 16, v{D+h}", f"  v_and_b32 v{t+1}, s40, v{D+h}"] + add + [f"  v_cvt_pk_bf16_f32 v{D+h}, v{t}, v{t+1}"])
        return zip_lists(*ls)
    def store2(j, rt):
        w = 4 if j < 2 else 2
        return [hstore(f"  buffer_store_dwordx{w} v[{X1P+4*j}:{X1P+4*j+w-1}], v5, s[36:39], s{54+j} offen")]
    gemm_phase(2, 5, 5, 1, P("G2_NB", 5), X1R, pre2, epi2, store2, lambda s, b: [], P("G2_LOOK", 10), P("G2_FPER", 2),
               lambda NBS: spd({2: "g2a", NBS // 2: "g2h", NBS - 1: "g2b"}))
    for i in range(10):
        k(f"  v_dot2_f32_bf16 v{ST+4}, v{X1P+i}, s41, {'0' if i == 0 else f'v{ST+4}'}\n  v_dot2_f32_bf16 v{ST+5}, v{X1P+i}, v{X1P+i}, {'0' if i == 0 else f'v{ST+5}'}")
    o = []; o2 = []; red_q(o, ST+4, TMP); red_q(o2, ST+5, TMP+1)
    for l in zip_lists(o, o2): k(l)
    k(f"  s_lshl_b32 s14, s68, 10\n  s_lshl_b32 s12, s5, 3\n  s_add_u32 s14, s14, s12\n  s_add_u32 s14, s14, s67\n  s_add_u32 s14, s14, {SL_ST2}\n  v_lshlrev_b32 v{TMP}, 6, v6")
    emit_hs(hstore(f"  buffer_store_dwordx2 v[{ST+4}:{ST+5}], v{TMP}, s[36:39], s14 offen"))
    sp("g2")
    publish(2, f"  s_lshl_b32 s12, s6, 5\n  s_lshl_b32 s13, s5, 2\n  s_add_u32 s12, s12, s13\n  s_add_u32 s12, s12, {WS_FL2}")
    k(f"  s_lshl_b32 s7, s27, 8\n  s_add_u32 s7, s7, s67\n  s_add_u32 s7, s7, {SL_KG0}\n  s_sub_u32 s7, s7, {4*KGS}")
    k(f"  v_lshlrev_b32 v{TMP+1}, 6, v6\n  v_lshl_add_u32 v{TMP+1}, v7, 4, v{TMP+1}\n  s_lshl_b32 s14, s27, 10\n  s_add_u32 s14, s14, s67\n  s_add_u32 s14, s14, {SL_ST2}")
    k(f"  s_mul_i32 s17, s27, {48*1024}\n  s_mul_i32 s12, s25, 3072\n  s_add_u32 s17, s17, s12\n  s_add_u32 s17, s17, s67\n  s_add_u32 s17, s17, {SL_G}\n  s_add_u32 s16, s17, {48*1024}")
    poll(2, f"  s_lshl_b32 s12, s26, 5\n  s_add_u32 s12, s12, {WS_FL2}\n  v_lshl_add_u32 v{PT+1}, v6, 2, s12")
    sp("s2")
    st.ring = R8
    X3R = lambda rt, ks: f"v[{XV+((ks%10)*2+rt)*4}:{XV+((ks%10)*2+rt)*4+3}]"
    for ks in range(20):
        for rt in range(2):
            vm.push(f"  s_add_u32 s7, s7, {4*KGS}" if rt == 0 else None, f"  buffer_load_dwordx4 {X3R(rt, ks)}, v5, s[36:39], s7 offen offset:{256*rt}", f"X3_{ks}")
        if ks == 3:
            for rt in range(2): vm.push(None, f"  buffer_load_dwordx4 v[{ST+4*rt}:{ST+3+4*rt}], v{TMP+1}, s[36:39], s14 offen offset:{1024*rt}", "ST")
    CN = [12, AL2]
    def pre3(NBS):
        pre = ["@VWST"]
        for rt in range(2):
            b = ST + 4*rt; C = CN[rt]
            pre += [f"  v_add_f32 v{b}, v{b}, v{b+2}", f"  v_add_f32 v{b+1}, v{b+1}, v{b+3}"]
            red_q(pre, b, b+2); red_q(pre, b+1, b+2)
            mean_var(pre, b, b+1)
            ln_s(pre, b, b+1, b+2, C+3, b+3)
            pre += [f"  v_sub_f32 v{C}, 0, v{b+2}"]
            gelu_consts(pre, C, b+3)
        return [(40, t) for t in pre]
    def epi3(nt, rt, pk): return gelu4(ACC + (nt*2+rt)*4, CS + 4*nt, CN[rt], DR + 4*rt + 2*(nt & 1), pk)
    def store3(j, rt): return [hstore(f"  buffer_store_dwordx4 v[{DR+4*rt}:{DR+4*rt+3}], v3, s[36:39], s{17-rt} offen offset:{1024*j}")]
    gemm_phase(3, 10, 6, 2, 6, X3R, pre3, epi3, store3, lambda s, b: [], min(16, P("G3_LOOK", 12)), 2,
               lambda NBS: spd({2: "g3a", NBS // 2: "g3h", NBS - 1: "g3b"}))
    sp("g3")
    publish(3, f"  s_lshr_b32 s12, s26, 1\n  s_lshl_b32 s12, s12, 6\n  s_lshl_b32 s13, s25, 2\n  s_add_u32 s12, s12, s13\n  s_add_u32 s12, s12, {WS_FL3}")
    k(f"  s_and_b32 s12, s3, 1\n  s_lshl_b32 s12, s12, 11\n  s_mul_i32 s7, s68, {48*1024}\n  s_add_u32 s7, s7, s67\n  s_add_u32 s7, s7, s12\n  s_add_u32 s7, s7, {SL_G}")
    k(f"  s_xor_b32 s13, s68, 1\n  s_sub_u32 s15, s13, s68\n  s_mul_i32 s15, s15, {48*1024}")
    k(f"  v_add_u32 v8, s12, v3\n  v_add_u32 v9, 0x10000, v8\n  v_add_u32 v10, 0x20000, v8")
    k("  s_lshl_b32 s57, s20, 6\n  s_add_u32 s58, s57, 64\n  s_lshl_b32 s59, s21, 6\n  s_add_u32 s59, s59, s23")
    k("  s_lshl_b32 s12, s6, 4\n  v_add_u32 v11, s12, v6\n  s_movk_i32 s12, 1280\n  v_mul_lo_u32 v11, s12, v11\n  v_lshl_add_u32 v11, v7, 4, v11")
    XSL = SLO(21)
    k(f"  s_mul_i32 s12, s3, 5120\n  s_add_u32 s12, s12, {XSL}\n  v_add_u32 v12, s12, v3\n  s_xor_b32 s13, s3, 1\n  s_mul_i32 s13, s13, 5120\n  s_add_u32 s13, s13, {XSL}\n  v_add_u32 v13, s13, v3")
    poll(3, f"  s_lshr_b32 s12, s6, 1\n  s_lshl_b32 s12, s12, 6\n  s_add_u32 s12, s12, {WS_FL3}\n  v_lshl_add_u32 v{PT+1}, v6, 2, s12")
    sp("s3")
    st.t = 90
    XLEAD = min(3, P("G4_XLEAD", 3))
    pos = {}
    X4R = lambda c, j, o: XV + ((c % 5) * 4 + 2*j + o) * 4
    def x4(c):
        for j in range(2):
            for o in range(2):
                pre = "  s_add_u32 s31, s31, 1\n  s_cmp_eq_u32 s31, 12\n  s_cselect_b32 s31, 0, s31\n  s_lshl_b32 s11, s31, 12\n  s_add_u32 s11, s11, s7\n  s_add_u32 s14, s11, s15" if (j == 0 and o == 0) else None
                x = X4R(c, j, o)
                vm.push(pre, f"  buffer_load_dwordx4 v[{x}:{x+3}], v3, s[36:39], s{14 if o else 11} offen offset:{j*1024}", f"X4_{c}_{j}")
    for c in range(XLEAD + 1): x4(c)
    for c in range(12):
        pos[c] = len(vm.q)
        if c + XLEAD + 1 < 12: x4(c + XLEAD + 1)
    pos[12] = len(vm.q)
    steps = [(c, j, nt) for c in range(12) for j in range(2) for nt in range(5)]
    def mfma4(i, w):
        c, j, nt = steps[i]; out = []
        for o in range(2):
            a = ACC + 20*o + 4*nt; x = X4R(c, j, o)
            cc = "0" if (c == 0 and j == 0) else f"v[{a}:{a+3}]"
            out.append(f"  v_mfma_f32_16x16x32_bf16 v[{a}:{a+3}], v[{w}:{w+3}], v[{x}:{x+3}], {cc}")
        return out
    ready4 = {c * 10: 16 + c + 1 for c in range(12)}
    free4 = {c * 10 + 9: 16 + c + 1 for c in range(5)}
    def vt4(i):
        c = i // 10; f = (i % 10 + 1) / 10
        return pos[c] + int(f * (pos[c+1] - pos[c]) + 0.999)
    UX = CS; UH = 120
    fill4 = []
    for i in range(10):
        fill4 += [(20, f"  v_lshlrev_b32 v{UX+2*i}, 16, v{X1P+i}"), (20, f"  v_and_b32 v{UX+2*i+1}, s40, v{X1P+i}"),
                  (20, f"  v_lshlrev_b32 v{UH+2*i}, 16, v{HP+i}"), (20, f"  v_and_b32 v{UH+2*i+1}, s40, v{HP+i}")]
    vm.upto(pos[0])
    st.run(len(steps), mfma4, lambda j: SLO(16 + steps[j][0]) + (steps[j][2] * 4 + steps[j][1]) * 1024, ready4, free4,
           lambda i: f"X4_{steps[i][0]}_{steps[i][1]}" if steps[i][2] == 0 else None, vt4, fill4, lambda i: [], FPER=1, stamps=spd({2: "g4a", 40: "g4b", 80: "g4c"}), bases=(8, 9, 10))
    sp("g4")
    k("  s_barrier")
    for nt in range(5): k(f"  ds_write_b128 v12, v[{ACC+20+4*nt}:{ACC+23+4*nt}] offset:{1024*nt}")
    k("  s_waitcnt lgkmcnt(0)\n  s_barrier")
    for nt in range(5): k(f"  ds_read_b128 v[{WB+4*nt}:{WB+4*nt+3}], v13 offset:{1024*nt}")
    for nt in range(5):
        a = ACC + 4 * nt; ls = []
        k(f"  s_waitcnt lgkmcnt({4-nt})")
        for h in range(2):
            t = 140 + 2*h; D = XV + 2*nt + h; x = UX + 4*nt + 2*h; hh = UH + 4*nt + 2*h
            ls.append([f"  v_pk_add_f32 v[{a+2*h}:{a+2*h+1}], v[{a+2*h}:{a+2*h+1}], v[{WB+4*nt+2*h}:{WB+4*nt+2*h+1}]", f"  v_cvt_pk_bf16_f32 v{D}, v{a+2*h}, v{a+2*h+1}", f"  v_lshlrev_b32 v{t}, 16, v{D}", f"  v_and_b32 v{t+1}, s40, v{D}",
             f"  v_pk_add_f32 v[{t}:{t+1}], v[{t}:{t+1}], v[{x}:{x+1}]",
             f"  v_cvt_pk_bf16_f32 v{D}, v{t}, v{t+1}", f"  v_lshlrev_b32 v{t}, 16, v{D}", f"  v_and_b32 v{t+1}, s40, v{D}",
             f"  v_pk_add_f32 v[{t}:{t+1}], v[{t}:{t+1}], v[{hh}:{hh+1}]", f"  v_cvt_pk_bf16_f32 v{D}, v{t}, v{t+1}"])
        for l in zip_lists(*ls): k(l)
        if nt in (1, 3): k(f"  buffer_store_dwordx4 v[{XV+2*nt-2}:{XV+2*nt+1}], v11, s[44:47], s{57+(nt>>1)} offen")
        if nt == 4: k(f"  buffer_store_dwordx2 v[{XV+2*nt}:{XV+2*nt+1}], v11, s[44:47], s59 offen")
    k.stamp_out(1)
    k("  s_endpgm")
    k("GG_loader:")
    k(f"  s_sub_u32 s3, s3, 4\n  s_mul_i32 s9, s3, 5120\n  s_lshl_b32 s12, s3, 2\n  s_add_u32 s12, s12, {FLG}\n  v_mov_b32 v12, s12\n  v_mov_b32 v8, 0\n  ds_write_b32 v12, v8\n  ds_write_b32 v12, v8 offset:16\n  s_waitcnt lgkmcnt(0)\n  s_barrier")
    k(f"  s_mul_i32 s8, s5, {5*SLOT}\n  s_add_u32 s8, s8, s9\n  s_mul_i32 s28, s25, {6*SLOT}\n  s_add_u32 s28, s28, s9\n  s_add_u32 s28, s28, {WS_W3P}\n  s_mul_i32 s29, s5, {12*SLOT}\n  s_add_u32 s29, s29, s9\n  s_add_u32 s29, s29, {WS_W4P}")
    k(f"  s_and_b32 s30, s4, 3\n  s_mul_i32 s30, s30, {3*SLOT}\n  s_add_u32 s30, s30, s29\n  s_add_u32 s31, s29, {12*SLOT}\n  s_add_u32 s16, s9, {NSL*SLOT}")
    k(f"  s_mov_b32 s36, s32\n  s_mov_b32 s37, s33\n  s_mov_b32 s38, {WS_SPAN}\n  s_mov_b32 s39, 0x00020000")
    k(f"  s_add_u32 s10, s8, {WS_W1P}\n  s_mov_b32 s11, s9\n  s_mov_b32 s12, 0")
    chk = f"  ds_read_b128 v[8:11], v{VFL} offset:16\n  s_waitcnt lgkmcnt(0)\n  v_min_u32 v8, v8, v9\n  v_min3_u32 v8, v8, v10, v11\n  v_readfirstlane_b32 s13, v8\n  s_add_u32 s76, s76, 1\n  s_cmp_ge_u32 s13, s15\n  s_cbranch_scc1 GG_ld_go"
    if LSTAMP: k("  v_mov_b32 v20, 0\n  v_mov_b32 v21, 0\n  v_mov_b32 v22, 0")
    k("GG_ld:")
    k(f"  s_cmp_lt_u32 s12, {NSL}\n  s_cbranch_scc1 GG_ld_go")
    k(f"  s_sub_u32 s15, s12, {NSL-1}")
    k(chk)
    k("  s_waitcnt vmcnt(0)\n  v_mov_b32 v14, s12\n  ds_write_b32 v12, v14")
    if LSTAMP: k("  s_memtime s[40:41]\n  s_waitcnt lgkmcnt(0)\n  s_sub_u32 s40, s40, s80\n  v_mov_b32 v24, s40\n  v_cmp_eq_u32 vcc, s12, v2\n  v_cndmask_b32 v22, v22, v24, vcc")
    k("GG_ld_sp:")
    k("  s_sleep 1")
    k(chk + f"\n  s_cmp_lt_u32 s76, {LDS_SPIN}\n  s_cbranch_scc1 GG_ld_sp")
    k("GG_ld_go:")
    if LSTAMP: k("  s_memtime s[40:41]\n  s_waitcnt lgkmcnt(0)\n  s_sub_u32 s40, s40, s80\n  v_mov_b32 v24, s40\n  v_cmp_eq_u32 vcc, s12, v2\n  v_cndmask_b32 v20, v20, v24, vcc")
    k("  s_mov_b32 m0, s11\n  s_add_u32 s14, s10, 4096")
    for i in range(4): k(f"  buffer_load_dwordx4 v3, s[36:39], s10 offen offset:{1024*i} lds")
    k("  s_add_u32 m0, s11, 4096\n  s_nop 0\n  buffer_load_dwordx4 v3, s[36:39], s14 offen lds")
    k("  s_waitcnt vmcnt(5)\n  v_mov_b32 v14, s12\n  ds_write_b32 v12, v14")
    if LSTAMP: k("  s_memtime s[40:41]\n  s_waitcnt lgkmcnt(0)\n  s_sub_u32 s40, s40, s80\n  v_mov_b32 v24, s40\n  v_cmp_eq_u32 vcc, s12, v2\n  v_cndmask_b32 v21, v21, v24, vcc")
    k(f"  s_add_u32 s12, s12, 1\n  s_add_u32 s10, s10, {SLOT}\n  s_add_u32 s11, s11, {SLOT}\n  s_cmp_eq_u32 s11, s16\n  s_cselect_b32 s11, s9, s11")
    k(f"  s_add_u32 s14, s8, {WS_W2P}\n  s_cmp_eq_u32 s12, 5\n  s_cselect_b32 s10, s14, s10\n  s_cmp_eq_u32 s12, 10\n  s_cselect_b32 s10, s28, s10\n  s_cmp_eq_u32 s12, 16\n  s_cselect_b32 s10, s30, s10")
    k("  s_cmp_eq_u32 s10, s31\n  s_cselect_b32 s10, s29, s10")
    k("  s_cmp_lt_u32 s12, 28\n  s_cbranch_scc1 GG_ld")
    k("  s_waitcnt vmcnt(0)\n  v_mov_b32 v14, 28\n  ds_write_b32 v12, v14\n  s_waitcnt lgkmcnt(0)")
    if LSTAMP:
        k("  s_cmp_lg_u32 s3, 0\n  s_cbranch_scc1 GG_done\n  s_lshl_b32 s40, s2, 10\n  s_add_u32 s40, s40, 0x2c00000\n  v_lshl_add_u32 v23, v2, 2, s40")
        k("  global_store_dword v23, v20, s[32:33]\n  global_store_dword v23, v21, s[32:33] offset:256\n  global_store_dword v23, v22, s[32:33] offset:512")
    k("GG_done:\n  s_endpgm")
    return k
```

```python
from asmfw import K
from layout import *
from k_common import *
import os
LOG2E = "0x3fb8aa3b"
CST = 4160; UOFF = 4 * CST; DREG = UOFF + 4608
RB = 4 * DREG; WREG = 8704; TBL = RB + 8 * WREG; TBS = 1552
PC_LDS = TBL + 5 * TBS
SPIN = 400000
TOUCH = {'12': ((WS_W1P, 50), (WS_W2P, 50)), '321': ((WS_W3P, 120), (WS_W2P, 50), (WS_W1P, 50)), '1': ((WS_W1P, 50),)}[os.environ.get('NTOUCH', '12')]
N_LN = 64; PK_FIRST = 440 if len(TOUCH) == 3 else 200

def cmul(k, d, x, w):
    k(f"  v_pk_mul_f32 v[{d}:{d+1}], v[{x}:{x+1}], v[{w}:{w+1}] op_sel:[0,0] op_sel_hi:[1,0]")
    k(f"  v_pk_fma_f32 v[{d}:{d+1}], v[{x}:{x+1}], v[{w}:{w+1}], v[{d}:{d+1}] op_sel:[1,1,0] op_sel_hi:[0,1,1] neg_lo:[1,0,0]")

def gen_pc():
    k = K("pc_kernel", 256, 512, PC_LDS, vgpr=256, sgpr=80)
    def poll_dbg(lbl, off, val, vt=250):
        k(f"  v_mov_b32 v{vt}, {off}\n  s_mov_b32 s78, 0\n{lbl}:\n  global_load_dword v{vt+1}, v{vt}, s[34:35] sc1\n  s_waitcnt vmcnt(0)\n  v_readfirstlane_b32 s79, v{vt+1}\n  s_add_u32 s78, s78, 1")
        k(f"  s_cmp_ge_u32 s79, {val}\n  s_cbranch_scc1 {lbl}_ok\n  s_sleep 4\n  s_cmp_lt_u32 s78, {SPIN}\n  s_cbranch_scc1 {lbl}\n{lbl}_ok:")
    def add_dbg(off, val, vt=250):
        k(f"  v_mov_b32 v{vt}, {off}\n  v_mov_b32 v{vt+1}, {val}\n  s_mov_b64 exec, 1\n  global_atomic_add v{vt}, v{vt+1}, s[34:35] sc1\n  s_mov_b64 exec, -1")
    k("  s_cmp_ge_u32 s2, 256\n  s_cbranch_scc1 F_done")
    k.stamp(0); k.stamp(7, True)
    k("  s_load_dwordx16 s[16:31], s[0:1], 0")
    k(f"  s_load_dwordx4 s[32:35], s[0:1], {KA_DBG}")
    k(f"  s_load_dwordx8 s[48:55], s[0:1], {KA_W1}\n  s_load_dwordx2 s[56:57], s[0:1], {KA_DSK}")
    k("  v_lshrrev_b32 v1, 6, v0\n  v_and_b32 v2, 63, v0\n  v_readfirstlane_b32 s3, v1\n  v_lshlrev_b32 v3, 4, v2")
    k("  s_mov_b32 s40, 0xffff0000")
    def after_kernarg():
        k("  s_waitcnt lgkmcnt(0)")
        k("  s_mov_b64 s[36:37], s[34:35]\n  s_mov_b64 s[34:35], s[32:33]\n  s_mov_b64 s[32:33], s[36:37]")
        k(f"  s_mov_b32 s38, {WS_SPAN}\n  s_mov_b32 s39, 0x00020000")
    k("  s_cmp_ge_u32 s2, 160\n  s_cbranch_scc1 F_aux")
    k("  s_and_b32 s4, s2, 7\n  s_mul_i32 s4, s4, 20\n  s_lshr_b32 s5, s2, 3\n  s_add_u32 s4, s4, s5\n  s_lshl_b32 s4, s4, 2")
    k("  s_and_b32 s58, s3, 3\n  s_lshr_b32 s59, s3, 2\n  s_add_u32 s5, s4, s58")
    k(f"  s_mul_i32 s6, s58, {DREG}\n  s_mul_i32 s11, s3, {WREG}\n  s_add_u32 s11, s11, {RB}")
    k(f"  s_and_b32 s60, s2, 7\n  s_mul_i32 s61, s60, {SLAB}")
    k("  s_getpc_b64 s[8:9]\nF_pc:\n  s_add_u32 s8, s8, F_tab-F_pc\n  s_addc_u32 s9, s9, 0")
    k("  v_and_b32 v4, 255, v0\n  v_lshlrev_b32 v4, 4, v4")
    k("  global_load_dwordx4 v[124:127], v4, s[8:9]\n  global_load_dwordx2 v[128:129], v4, s[8:9] offset:16")
    k("  s_mul_i32 s7, s5, 384\n  s_lshl_b32 s10, s59, 8\n  s_add_u32 s7, s7, s10\n  v_lshl_add_u32 v5, v2, 1, s7")
    k("  v_lshl_add_u32 v6, v2, 2, s11")
    k("  v_and_b32 v7, 31, v2\n  v_mul_u32_u24 v7, 272, v7\n  v_lshrrev_b32 v8, 5, v2\n  v_lshl_add_u32 v7, v8, 4, v7\n  v_add_u32 v7, s11, v7")
    k("  v_and_b32 v130, 31, v2\n  v_mul_u32_u24 v130, 96, v130\n  v_lshl_add_u32 v130, v8, 4, v130\n  v_add_u32 v130, s11, v130")
    k("  s_lshr_b32 s12, s5, 1\n  s_lshl_b32 s12, s12, 2\n  s_and_b32 s13, s5, 1\n  s_lshl_b32 s13, s13, 4")
    after_kernarg()
    k.stamp(1)
    for u in range(2):
        for i, sb in enumerate((18, 20, 22, 24, 26, 28)):
            k(f"  global_load_ushort v{112+6*u+i}, v5, s[{sb}:{sb+1}] offset:{128*u if True else 0}" if u == 0 else f"  global_load_ushort v{112+6*u+i}, v131, s[{sb}:{sb+1}]")
        if u == 0: k("  s_lshl_b32 s10, s59, 7\n  s_sub_u32 s10, 128, s10\n  v_add_u32 v131, s10, v5")
    k("  s_load_dword s14, s[30:31], s12\n  s_lshl_b32 s10, s4, 1\n  s_load_dwordx2 s[62:63], s[56:57], s10")
    k("  s_cmp_eq_u32 s59, 0\n  s_cbranch_scc1 F_ng")
    k("  v_mul_u32_u24 v133, 160, v4\n  v_add_u32 v133, s10, v133")
    for i in range(4):
        for r in range(2): k(f"  global_load_dwordx2 v[{176+4*i+2*r}:{177+4*i+2*r}], v133, s[16:17] offset:{1280*r}")
        if i < 3: k(f"  v_add_u32 v133, {512*1280}, v133")
    k("F_ng:")
    for i in range(16): k(f"  v_mov_b32 v{96+i}, 0")
    k("  s_waitcnt lgkmcnt(0)")
    k("  s_lshr_b32 s14, s14, s13\n  s_lshl_b32 s14, s14, 16")
    k(f"  v_mov_b32 v9, {LOG2E}\n  v_mul_f32 v9, s14, v9\n  v_exp_f32 v9, v9\n  v_cvt_pk_bf16_f32 v9, v9, v9\n  v_lshlrev_b32 v132, 16, v9")
    k("  s_mov_b32 s15, s59")
    k("  s_cmp_eq_u32 s59, 0\n  s_cbranch_scc1 F_w0\n  s_waitcnt vmcnt(8)\n  s_branch F_w1\nF_w0:\n  s_waitcnt vmcnt(0)\nF_w1:")
    for i in range(4): k(f"  v_and_b32 v{208+2*i}, 0xffff, v{124+i}\n  v_lshrrev_b32 v{209+2*i}, 16, v{124+i}")
    k("  v_and_b32 v216, 0xffff, v128\n  v_lshrrev_b32 v217, 16, v128\n  v_and_b32 v218, 0xffff, v129")
    for i in range(11): k(f"  v_add_u32 v{208+i}, {TBL}, v{208+i}")
    k.stamp(2)
    k("F_unit:")
    for i in range(6): k(f"  v_lshlrev_b32 v{10+i}, 16, v{112+i}")
    for i in range(6): k(f"  v_mov_b32 v{112+i}, v{118+i}")
    k("  v_mul_f32 v10, v132, v10\n  v_mul_f32 v11, v132, v11\n  v_mul_f32 v12, v132, v12\n  v_mul_f32 v13, v132, v13")
    k(f"  v_mul_f32 v10, {LOG2E}, v10\n  v_mul_f32 v11, 0.15915494, v11")
    for dst, e in ((16, None), (18, "0x41000000"), (20, "0x43800000")):
        if e is None: k(f"  v_exp_f32 v22, v10\n  v_fract_f32 v23, v11")
        else: k(f"  v_mul_f32 v22, {e}, v10\n  v_mul_f32 v23, {e}, v11\n  v_exp_f32 v22, v22\n  v_fract_f32 v23, v23")
        k(f"  v_cos_f32 v{dst}, v23\n  v_sin_f32 v{dst+1}, v23")
        k(f"  v_mul_f32 v{dst}, v22, v{dst}\n  v_mul_f32 v{dst+1}, v22, v{dst+1}")
    cmul(k, 24, 14, 12)
    def put(reg, row, neg):
        k(f"  v_cvt_pk_bf16_f32 v9, v{reg}, {'-' if neg else ''}v{reg+1}\n  ds_write_b32 v6, v9 offset:{row*272}")
    put(24, 0, True)
    for r in range(1, 8):
        cmul(k, 24 + 2*r, 24 + 2*(r-1), 16); put(24 + 2*r, r, True)
    for i, r in enumerate((0, 2, 4, 6)):
        cmul(k, 40 + 2*i, 24 + 2*r, 20); put(40 + 2*i, 8 + i, True)
    cmul(k, 48, 40, 20); put(48, 12, True)
    cmul(k, 50, 44, 20); put(50, 13, True)
    cmul(k, 52, 48, 20); put(52, 14, True)
    cmul(k, 54, 50, 20); put(54, 15, True)
    prev = 52
    for i in range(5):
        dst = 24 + 2*i
        cmul(k, dst, prev, 20); put(dst, 16 + i, True); prev = dst
    k("  s_waitcnt lgkmcnt(0)")
    for s in range(8): k(f"  ds_read_b128 v[{136+4*s}:{139+4*s}], v7 offset:{32*s}")
    k("  v_mov_b32 v9, 0x3f80\n  ds_write_b32 v6, v9 offset:0")
    put(18, 1, False)
    prev = 18
    for j in range(2, 32):
        dst = 24 + 2*(j & 1)
        cmul(k, dst, prev, 18); put(dst, j, False); prev = dst
    k("  s_waitcnt lgkmcnt(0)")
    for s in range(8): k(f"  ds_read_b128 v[{56+4*s}:{59+4*s}], v7 offset:{32*s}")
    for s in range(8):
        k(f"  s_waitcnt lgkmcnt({7-s})")
        k(f"  v_mfma_f32_32x32x16_bf16 v[96:111], v[{136+4*s}:{139+4*s}], v[{56+4*s}:{59+4*s}], v[96:111]")
    k("  s_add_u32 s15, s15, 1\n  s_cmp_lt_u32 s15, 2\n  s_cbranch_scc1 F_unit")
    k("  s_nop 7\n  s_nop 3")
    for g in range(3): k(f"  ds_write_b128 v130, v[{96+4*g}:{99+4*g}] offset:{32*g}")
    k.stamp(3)
    k("  s_cmp_eq_u32 s59, 0\n  s_cbranch_scc1 F_k1")
    k(f"  v_add_u32 v9, {UOFF}, v3")
    k(f"  v_bfe_u32 v10, v2, 1, 2\n  v_mul_u32_u24 v10, {CST}, v10\n  v_and_b32 v11, 1, v2\n  v_lshl_add_u32 v10, v11, 4, v10\n  v_add_u32 v10, 4096, v10")
    k("  v_cmp_gt_u32 vcc, 32, v2\n  v_cndmask_b32 v9, v10, v9, vcc\n  v_add_u32 v9, s6, v9")
    k("  v_mov_b32 v12, 0\n  v_mov_b32 v13, 0\n  v_mov_b32 v14, 0\n  v_mov_b32 v15, 0\n  ds_write_b128 v9, v[12:15]")
    k(f"  s_mul_i32 s10, s58, {TBS}\n  s_add_u32 s10, s10, {TBL+1536}\n  v_mov_b32 v9, s10\n  ds_write_b32 v9, v12")
    k("  v_mov_b32 v252, 0\n  global_load_dword v253, v252, s[34:35] sc1")
    k("F_k1:")
    k("  s_waitcnt lgkmcnt(0)\n  s_barrier")
    k(f"  s_mul_i32 s10, s58, {WREG}\n  s_lshl_b32 s12, s59, 11\n  s_add_u32 s10, s10, s12\n  s_add_u32 s10, s10, {RB}\n  v_add_u32 v9, s10, v3")
    k(f"  s_mul_i32 s10, s58, {TBS}\n  s_lshl_b32 s12, s59, 10\n  s_add_u32 s10, s10, s12\n  s_add_u32 s10, s10, {TBL}\n  v_lshl_add_u32 v10, v2, 3, s10")
    for r in range(2):
        k(f"  ds_read_b128 v[{12+8*r}:{15+8*r}], v9 offset:{1024*r}\n  ds_read_b128 v[{16+8*r}:{19+8*r}], v9 offset:{1024*r+4*WREG}")
    for r in range(2):
        k(f"  s_waitcnt lgkmcnt({2-2*r})")
        b = 12 + 8*r
        k(f"  v_pk_add_f32 v[{b}:{b+1}], v[{b}:{b+1}], v[{b+4}:{b+5}]\n  v_pk_add_f32 v[{b+2}:{b+3}], v[{b+2}:{b+3}], v[{b+6}:{b+7}]")
        k(f"  v_cvt_pk_bf16_f32 v{b}, v{b}, v{b+1}\n  v_cvt_pk_bf16_f32 v{b+1}, v{b+2}, v{b+3}")
        if r == 1: k("  s_cmp_lg_u32 s59, 0\n  s_cbranch_scc1 F_k2")
        k(f"  ds_write_b64 v10, v[{b}:{b+1}] offset:{512*r}")
    k("F_k2:")
    k("  s_waitcnt lgkmcnt(0)\n  s_barrier")
    k("  s_cmp_lg_u32 s59, 0\n  s_cbranch_scc1 F_help")
    k("  s_mov_b32 s15, 0")
    k("  v_mov_b32 v52, v4")
    for i in range(11): k(f"  ds_read_u16 v{56+i}, v{208+i}")
    k("F_ex:")
    k("  s_waitcnt lgkmcnt(0)")
    for sg, st in ((3, 0), (2, 1), (1, 2), (0, 3)):
        for j in range(4): k(f"  v_lshl_or_b32 v{80+4*sg+j}, v{56+st+2*j+1}, 16, v{56+st+2*j}")
    for i in range(11): k(f"  v_add_u32 v{208+i}, {TBS}, v{208+i}\n  ds_read_u16 v{56+i}, v{208+i}")
    for sg in range(4): k(f"  ds_write_b128 v52, v[{80+4*sg}:{83+4*sg}] offset:{sg*CST}")
    k(f"  v_add_u32 v52, {DREG}, v52\n  s_add_u32 s15, s15, 1\n  s_cmp_lt_u32 s15, 4\n  s_cbranch_scc1 F_ex")
    k.stamp(4)
    k("  v_and_b32 v6, 15, v2\n  v_lshrrev_b32 v7, 4, v2")
    k(f"  v_and_b32 v8, 3, v6\n  v_mul_u32_u24 v8, {CST}, v8\n  v_lshrrev_b32 v9, 2, v6\n  v_lshlrev_b32 v9, 3, v9\n  v_sub_u32 v8, v8, v9\n  v_lshl_add_u32 v8, v7, 4, v8\n  v_add_u32 v8, {24+384}, v8\n  v_add_u32 v12, s6, v8")
    k(f"  v_lshlrev_b32 v8, 5, v6\n  v_lshl_add_u32 v8, v7, 4, v8\n  v_add_u32 v8, {UOFF+32+384}, v8\n  v_add_u32 v13, s6, v8")
    k(f"  s_lshl_b32 s10, s58, 12\n  s_add_u32 s10, s10, {RB}\n  v_lshlrev_b32 v8, 5, v6\n  v_lshl_add_u32 v8, v7, 3, v8\n  v_add_u32 v14, s10, v8")
    for i in range(32): k(f"  v_mov_b32 v{16+i}, 0")
    k("  s_waitcnt lgkmcnt(0)\n  s_barrier")
    k.stamp(5)
    SETS = ((48, 80), (112, 144))
    def reads(st, extra):
        A, B = SETS[st]; out = []
        for n in range(8):
            off = 512 * (7 - n) + 64 - extra
            out.append(f"  ds_read_b64 v[{A+4*n}:{A+4*n+1}], v12 offset:{off}")
            out.append(f"  ds_read_b64 v[{A+4*n+2}:{A+4*n+3}], v12 offset:{off+8}")
            out.append(f"  ds_read_b128 v[{B+4*n}:{B+4*n+3}], v13 offset:{512*n + 64 - extra}")
        return out
    def mfmas(st):
        A, B = SETS[st]; out = []
        for J in range(8):
            for n in range(J + 1):
                m = J - n
                out.append(f"  v_mfma_f32_16x16x32_bf16 v[{16+4*J}:{19+4*J}], v[{A+4*n}:{A+4*n+3}], v[{B+4*m}:{B+4*m+3}], v[{16+4*J}:{19+4*J}]")
        return out
    def inter(mf, rd):
        out = []
        for i, m in enumerate(mf):
            out.append(m)
            if i < len(rd): out.append(rd[i])
        return out
    k("  s_setprio 3")
    for l in reads(0, 0): k(l)
    k("  s_mov_b32 s15, 0")
    k("F_loop:")
    k("  s_waitcnt lgkmcnt(0)")
    for l in inter(mfmas(0), reads(1, 64)): k(l)
    k("  v_subrev_u32 v12, 128, v12\n  v_subrev_u32 v13, 128, v13")
    k("  s_waitcnt lgkmcnt(0)")
    k("  s_cmp_eq_u32 s15, 3\n  s_cbranch_scc1 F_last")
    for l in inter(mfmas(1), reads(0, 0)): k(l)
    k("  s_add_u32 s15, s15, 1\n  s_branch F_loop")
    k("F_last:")
    for l in mfmas(1): k(l)
    k.stamp(6)
    for J in range(8):
        k(f"  v_cvt_pk_bf16_f32 v{48+2*J}, v{16+4*J}, v{17+4*J}\n  v_cvt_pk_bf16_f32 v{49+2*J}, v{18+4*J}, v{19+4*J}")
        k(f"  ds_write_b64 v14, v[{48+2*J}:{49+2*J}] offset:{512*J}")
    k("  s_waitcnt lgkmcnt(0)\n  s_barrier")
    k("  s_branch F_fin")
    k("F_help:")
    k(f"  s_waitcnt vmcnt(0)\n  v_readfirstlane_b32 s79, v253\n  s_cmp_ge_u32 s79, {N_LN}\n  s_cbranch_scc1 F_st")
    poll_dbg("F_pl1", 0, N_LN)
    k("F_st:")
    k.stamp(1)
    k(f"  s_mov_b32 s10, {WS_ST0}")
    for i in range(4): k(f"  buffer_load_dwordx4 v[{192+4*i}:{195+4*i}], v4, s[36:39], s10 offen sc1\n  s_add_u32 s10, s10, 4096")
    for i in range(16): k(f"  v_lshlrev_b32 v{64+2*i}, 16, v{176+i}\n  v_and_b32 v{65+2*i}, s40, v{176+i}")
    k(f"  v_lshrrev_b32 v5, 2, v4\n  v_add_u32 v6, {UOFF+512}, v5\n  v_add_u32 v7, {2*DREG}, v6\n  v_add_u32 v5, {RB}, v5\n  v_lshlrev_b32 v8, 1, v4")
    k("  s_lshl_b32 s66, s62, 16\n  s_and_b32 s67, s62, s40\n  s_lshl_b32 s68, s63, 16\n  s_and_b32 s69, s63, s40\n  s_mov_b32 s41, 0x07060302")
    k("  s_waitcnt vmcnt(0)")
    k.stamp(2)
    for i in range(4):
        for r in range(2):
            o = 96 + 8*i + 4*r; x = 64 + 8*i + 4*r; st = 192 + 4*i + 2*r
            for h in range(2):
                a = o + 2*h
                k(f"  v_pk_add_f32 v[{a}:{a+1}], v[{x+2*h}:{x+2*h+1}], v[{st}:{st+1}] op_sel_hi:[1,0] neg_lo:[0,1] neg_hi:[0,1]\n  v_cvt_pk_bf16_f32 v9, v{a}, v{a+1}\n  v_lshlrev_b32 v{a}, 16, v9\n  v_and_b32 v{a+1}, s40, v9")
                k(f"  v_pk_mul_f32 v[{a}:{a+1}], v[{a}:{a+1}], v[{st}:{st+1}] op_sel:[0,1] op_sel_hi:[1,1]")
        for w in range(4):
            k(f"  v_cvt_pk_bf16_f32 v{48+4*i+w}, v{96+8*i+w}, v{100+8*i+w}\n  ds_write_b32 v{6 + (w >> 1)}, v{48+4*i+w} offset:{(w & 1)*DREG + 1024*i}")
    k("  s_waitcnt lgkmcnt(0)\n  s_barrier")
    k.stamp(5)
    for i in range(4):
        for r in range(2):
            o = 96 + 8*i + 4*r
            for w in range(4): k(f"  v_and_b32 v{o+w}, s40, v{48+4*i+w}" if r else f"  v_lshlrev_b32 v{o+w}, 16, v{48+4*i+w}")
            for h in range(2):
                k(f"  v_pk_mul_f32 v[{o+2*h}:{o+2*h+1}], v[{o+2*h}:{o+2*h+1}], s[{66+2*h}:{67+2*h}]\n  v_cvt_pk_bf16_f32 v9, v{o+2*h}, v{o+2*h+1}\n  v_lshlrev_b32 v{o+2*h}, 16, v9\n  v_and_b32 v{o+2*h+1}, s40, v9")
    k(f"  s_lshr_b32 s64, s4, 3\n  s_mul_i32 s64, s64, {OS}\n  s_add_u32 s64, s64, {WS_HO}")
    k("  s_and_b32 s10, s4, 4\n  s_add_u32 s10, s10, s58\n  s_lshl_b32 s10, s10, 12\n  s_add_u32 s10, s10, s64\n  v_and_b32 v9, 31, v2\n  v_lshlrev_b32 v9, 7, v9")
    k("  buffer_load_dword v16, v9, s[36:39], s10 offen")
    k("  s_and_b32 s10, s4, 4\n  s_lshl_b32 s10, s10, 1\n  s_add_u32 s64, s64, s10")
    poll_dbg("F_pl2", 128, PK_FIRST // 8)
    k("  s_mov_b32 s70, s3\n  s_mov_b32 s3, s58")
    for off, L in TOUCH:
        for t, _ in touch_share(off, L, 10, 11, 12): k(t)
    k("  s_mov_b32 s3, s70")
    k("  s_barrier")
    k.stamp(6)
    for i in range(4):
        for w in range(4): k(f"  ds_read_b32 v{48+4*i+w}, v5 offset:{4096*w + 1024*i}")
    for i in range(4):
        k(f"  s_waitcnt lgkmcnt({12-4*i})")
        for r in range(2):
            o = 128 + 4*r; u = 96 + 8*i + 4*r; x = 64 + 8*i + 4*r; d = 136 + 4*i + 2*r
            for w in range(4): k(f"  v_and_b32 v{o+w}, s40, v{48+4*i+w}" if r else f"  v_lshlrev_b32 v{o+w}, 16, v{48+4*i+w}")
            for h in range(2):
                a = o + 2*h
                k(f"  v_pk_add_f32 v[{a}:{a+1}], v[{a}:{a+1}], v[{u+2*h}:{u+2*h+1}]\n  v_cvt_pk_bf16_f32 v9, v{a}, v{a+1}\n  v_lshlrev_b32 v{a}, 16, v9\n  v_and_b32 v{a+1}, s40, v9")
                k(f"  v_pk_add_f32 v[{a}:{a+1}], v[{a}:{a+1}], v[{x+2*h}:{x+2*h+1}]\n  v_cvt_pk_bf16_f32 v{d+h}, v{a}, v{a+1}")
            k(f"  buffer_store_dwordx2 v[{d}:{d+1}], v8, s[36:39], s64 offen offset:{16*r}")
        k("  s_add_u32 s64, s64, 8192")
    k.stamp(4)
    k("  s_branch F_fin")
    k("F_aux:")
    k("  s_sub_u32 s72, s2, 160")
    k(f"  s_cmp_ge_u32 s72, {N_LN}\n  s_cbranch_scc1 F_pk0")
    US = 1344
    k("  s_and_b32 s5, s72, 7\n  s_lshl_b32 s5, s5, 3\n  s_lshr_b32 s4, s72, 3\n  s_add_u32 s4, s4, s5")
    k("  v_lshrrev_b32 v4, 4, v0\n  v_and_b32 v5, 15, v0")
    k("  v_mul_u32_u24 v6, 1280, v4\n  v_lshl_add_u32 v6, v5, 4, v6\n  s_mul_i32 s5, s4, 40960\n  v_add_u32 v6, s5, v6")
    after_kernarg()
    k.stamp(1)
    for i in range(5): k(f"  global_load_dwordx4 v[{12+4*i}:{15+4*i}], v6, s[16:17] offset:{256*i}")
    k(f"  s_lshl_b32 s5, s4, 8\n  s_add_u32 s5, s5, {WS_ST0}\n  v_lshlrev_b32 v7, 3, v4\n  v_lshlrev_b32 v8, 3, v2")
    for i in range(5):
        k(f"  s_waitcnt vmcnt({4-i})")
        for h in range(4):
            r = 12 + 4*i + h; o = 32 + 8*i + 2*h
            k(f"  v_lshlrev_b32 v{o}, 16, v{r}\n  v_and_b32 v{o+1}, s40, v{r}")
    k.stamp(2)
    def reduce16(r):
        for sh in (8, 4, 2, 1): k(f"  v_add_f32_dpp v{r}, v{r}, v{r} row_ror:{sh} row_mask:0xf bank_mask:0xf")
    k("  v_pk_add_f32 v[72:73], v[32:33], v[34:35]")
    for i in range(2, 20): k(f"  v_pk_add_f32 v[72:73], v[72:73], v[{32+2*i}:{33+2*i}]")
    k("  v_add_f32 v72, v72, v73")
    reduce16(72)
    k("  v_mul_f32 v72, 0x3acccccd, v72\n  v_mov_b32 v73, v72\n  v_mov_b32 v74, 0\n  v_mov_b32 v75, 0")
    for i in range(20):
        k(f"  v_pk_add_f32 v[76:77], v[{32+2*i}:{33+2*i}], v[72:73] neg_lo:[0,1] neg_hi:[0,1]\n  v_pk_fma_f32 v[74:75], v[76:77], v[76:77], v[74:75]")
    k("  v_add_f32 v74, v74, v75")
    reduce16(74)
    k("  v_mul_f32 v74, 0x3acccccd, v74")
    k("  v_cvt_pk_bf16_f32 v76, v72, v74\n  v_lshlrev_b32 v72, 16, v76\n  v_and_b32 v74, s40, v76\n  v_mov_b32 v73, v72")
    k("  v_add_f32 v74, 0x3727c5ac, v74\n  v_cvt_pk_bf16_f32 v74, v74, v74\n  v_lshlrev_b32 v74, 16, v74")
    k("  v_sqrt_f32 v74, v74\n  v_cvt_pk_bf16_f32 v74, v74, v74\n  v_lshlrev_b32 v74, 16, v74\n  v_rcp_f32 v73, v74")
    k("  ds_write_b64 v7, v[72:73]")
    k.stamp(3)
    k("  s_waitcnt lgkmcnt(0)\n  s_barrier")
    k("  s_cmp_lg_u32 s3, 0\n  s_cbranch_scc1 F_ln3")
    k("  s_mov_b32 exec_hi, 0\n  ds_read_b64 v[72:73], v8\n  s_waitcnt lgkmcnt(0)\n  buffer_store_dwordx2 v[72:73], v8, s[36:39], s5 offen sc1\n  s_mov_b64 exec, -1\n  s_waitcnt vmcnt(0)")
    add_dbg(0, 1)
    k.stamp(4)
    k("F_ln3:")
    k("  s_barrier")
    k("  s_sub_u32 s75, s72, 21\n  s_cmp_lt_u32 s72, 53\n  s_cbranch_scc0 F_cs")
    k("  s_lshl_b32 s73, s72, 3\n  s_add_u32 s73, s73, s3\n  s_add_u32 s73, s73, 256\n  s_mov_b32 s75, 99\n  s_branch F_pk")
    k("F_pk0:")
    after_kernarg()
    k(f"  s_sub_u32 s75, s72, {N_LN}\n  s_lshl_b32 s73, s75, 3\n  s_add_u32 s73, s73, s3")
    k("F_pk:")
    k("  s_mov_b32 s4, s73")
    k(f"  s_mov_b32 s44, s48\n  s_mov_b32 s45, s49\n  s_mov_b32 s46, {640*640*2}\n  s_mov_b32 s47, 0x00020000\n  s_mov_b32 s8, {WS_W1P}")
    k("  s_movk_i32 s6, 1280\n  s_mov_b32 s12, 1\n  s_movk_i32 s14, 6554\n  s_mov_b32 s15, 10\n  s_mov_b32 s9, 102400\n  s_movk_i32 s10, 20480\n  s_movk_i32 s7, 4096")
    k("  s_cmp_lt_u32 s4, 100\n  s_cbranch_scc1 F_go")
    k(f"  s_mov_b32 s44, s50\n  s_mov_b32 s45, s51\n  s_sub_u32 s4, s4, 100\n  s_mov_b32 s8, {WS_W2P}")
    k("  s_cmp_lt_u32 s4, 100\n  s_cbranch_scc1 F_go")
    k(f"  s_mov_b32 s46, {640*1536*2}\n  s_sub_u32 s4, s4, 100\n  s_cmp_lt_u32 s4, 240\n  s_cbranch_scc0 F_w4")
    k(f"  s_mov_b32 s44, s52\n  s_mov_b32 s45, s53\n  s_mov_b32 s8, {WS_W3P}\n  s_movk_i32 s6, 3072\n  s_mov_b32 s12, 0\n  s_movk_i32 s14, 2731\n  s_mov_b32 s15, 24\n  s_branch F_go")
    k("F_w4:")
    k(f"  s_mov_b32 s44, s54\n  s_mov_b32 s45, s55\n  s_sub_u32 s4, s4, 240\n  s_mov_b32 s8, {WS_W4P}\n  s_mov_b32 s9, 245760\n  s_movk_i32 s10, 4096\n  s_movk_i32 s7, 20480")
    k("F_go:")
    k("  s_mul_i32 s11, s4, s14\n  s_lshr_b32 s11, s11, 16\n  s_mul_i32 s13, s11, s15\n  s_sub_u32 s5, s4, s13")
    pack_item(k, "F", " sc1")
    k(f"  s_cmp_ge_u32 s73, {PK_FIRST}\n  s_cbranch_scc1 F_pkn\n  s_waitcnt vmcnt(0)\n  s_barrier\n  s_cmp_lg_u32 s3, 0\n  s_cbranch_scc1 F_pkn")
    add_dbg(128, 1)
    k("F_pkn:")
    k("  s_barrier")
    k("F_cs:")
    k("  s_cmp_lt_u32 s75, 34\n  s_cbranch_scc0 F_fl")
    k("  s_mov_b32 s4, s75")
    k(f"  s_mov_b32 s44, s48\n  s_mov_b32 s45, s49\n  s_mov_b32 s46, {640*640*2}\n  s_mov_b32 s47, 0x00020000")
    k(f"  s_mov_b32 s5, s4\n  s_movk_i32 s6, 1280\n  s_mov_b32 s11, {WS_CS1}")
    k("  s_cmp_lt_u32 s4, 10\n  s_cbranch_scc1 F_cg")
    k(f"  s_mov_b32 s44, s52\n  s_mov_b32 s45, s53\n  s_mov_b32 s46, {640*1536*2}\n  s_sub_u32 s5, s4, 10\n  s_movk_i32 s6, 3072\n  s_mov_b32 s11, {WS_CS3}")
    k("F_cg:")
    k("  v_lshrrev_b32 v4, 3, v0\n  v_and_b32 v5, 7, v2")
    k("  v_mul_lo_u32 v6, s6, v4\n  s_lshl_b32 s14, s5, 7\n  v_lshl_add_u32 v6, v5, 4, v6\n  v_add_u32 v6, s14, v6")
    k("  s_lshl_b32 s15, s6, 6\n  s_mov_b32 s29, 0")
    for i in range(10): k(f"  buffer_load_dwordx4 v[{32+4*i}:{35+4*i}], v6, s[44:47], s29 offen\n  s_add_u32 s29, s29, s15")
    k("  s_mov_b32 s41, 0x00003f80\n  s_mov_b32 s42, 0x3f800000")
    for n in range(8): k(f"  v_mov_b32 v{16+n}, 0")
    for i in range(10):
        k(f"  s_waitcnt vmcnt({9-i})")
        for n in range(8): k(f"  v_dot2_f32_bf16 v{16+n}, v{32+4*i+(n>>1)}, s{42 if n & 1 else 41}, v{16+n}")
    for n in range(8):
        r = 16 + n
        k(f"  v_add_f32_dpp v{r}, v{r}, v{r} row_ror:8 row_mask:0xf bank_mask:0xf")
        k(f"  v_mov_b32 v24, v{r}\n  v_permlane16_swap_b32 v{r}, v24\n  v_add_f32 v{r}, v{r}, v24")
        k(f"  v_mov_b32 v24, v{r}\n  v_permlane32_swap_b32 v{r}, v24\n  v_add_f32 v{r}, v{r}, v24")
    k("  s_lshl_b32 s12, s3, 8\n  v_lshlrev_b32 v9, 5, v5\n  v_add_u32 v9, s12, v9")
    k("  ds_write_b128 v9, v[16:19]\n  ds_write_b128 v9, v[20:23] offset:16")
    k("  s_waitcnt lgkmcnt(0)\n  s_barrier")
    k("  s_cmp_lg_u32 s3, 7\n  s_cbranch_scc1 F_ax")
    k("  v_lshlrev_b32 v9, 2, v2")
    for w in range(8): k(f"  ds_read_b32 v{16+w}, v9 offset:{256*w}")
    k("  s_lshl_b32 s12, s5, 8\n  s_add_u32 s12, s12, s11")
    k("  s_waitcnt lgkmcnt(0)")
    for w in range(1, 8): k(f"  v_add_f32 v16, v16, v{16+w}")
    k("  buffer_store_dword v16, v9, s[36:39], s12 offen")
    k("  s_branch F_ax")
    k("F_fl:")
    k("  s_cmp_lg_u32 s72, 63\n  s_cbranch_scc1 F_ax")
    k(f"  v_mov_b32 v16, 0\n  v_mov_b32 v17, 0\n  v_mov_b32 v18, 0\n  v_mov_b32 v19, 0\n  s_lshl_b32 s4, s3, 11\n  s_add_u32 s4, s4, {WS_FL1}")
    k("  buffer_store_dwordx4 v[16:19], v3, s[36:39], s4 offen\n  buffer_store_dwordx4 v[16:19], v3, s[36:39], s4 offen offset:1024")
    k("F_ax:")
    k.stamp(5)
    k("  s_cmp_ge_u32 s3, 4\n  s_cbranch_scc1 F_sl")
    poll_dbg("F_pl3", 128, PK_FIRST // 8)
    for off, L in TOUCH:
        for t, _ in touch_share(off, L, 10, 11, 12): k(t)
    k("  s_branch F_fin")
    k("F_sl:")
    if os.environ.get("NOSLAB"): k("  s_branch F_fin")
    NLN = 160 * KG_STRIDE // 128 // 48
    k(f"  s_lshr_b32 s12, s72, 3\n  s_lshl_b32 s12, s12, 2\n  s_add_u32 s12, s12, s3\n  s_sub_u32 s12, s12, 4\n  s_mul_i32 s12, s12, {NLN*128}\n  s_and_b32 s13, s2, 7\n  s_mul_i32 s13, s13, {SLAB}\n  s_add_u32 s12, s12, s13")
    k(f"  v_min_u32 v10, {NLN//2-1}, v2\n  v_lshlrev_b32 v10, 7, v10\n  buffer_load_dword v11, v10, s[36:39], s12 offen\n  s_add_u32 s12, s12, {NLN//2*128}\n  buffer_load_dword v11, v10, s[36:39], s12 offen")
    k("F_fin:")
    k.stamp_out(0, nw=8)
    k("F_done:\n  s_endpgm")
    tab = ktab_offsets()
    k.tail.append(".p2align 6\nF_tab:")
    for i in range(0, len(tab), 16):
        k.tail.append("  .short " + ", ".join(str(x) for x in tab[i:i+16]))
    return k
```

```python
from asmfw import K
from layout import *
from k_common import *

LOG2E = "0x3fb8aa3b"

def cmul(k, d, x, w):
    k(f"  v_pk_mul_f32 v[{d}:{d+1}], v[{x}:{x+1}], v[{w}:{w+1}] op_sel:[0,0] op_sel_hi:[1,0]")
    k(f"  v_pk_fma_f32 v[{d}:{d+1}], v[{x}:{x+1}], v[{w}:{w+1}], v[{d}:{d+1}] op_sel:[1,1,0] op_sel_hi:[0,1,1] neg_lo:[1,0,0]")

WREG = 8704
TB = 3 * WREG
PREP_LDS = 32768
N_LN = 128; N_PK = 110; N_KG = 640
PREP_GRID = N_LN + N_PK + N_KG

def gen_prep():
    k = K("prep_kernel", PREP_GRID, 256, PREP_LDS, vgpr=96, sgpr=64)
    k(f"  s_cmp_ge_u32 s2, {PREP_GRID}\n  s_cbranch_scc1 P_done")
    k.stamp(0); k.stamp(7, True)
    k("  s_load_dwordx16 s[16:31], s[0:1], 0")
    k(f"  s_load_dwordx2 s[32:33], s[0:1], {KA_WS}")
    k(f"  s_load_dwordx8 s[48:55], s[0:1], {KA_W1}")
    k("  v_lshrrev_b32 v1, 6, v0\n  v_and_b32 v2, 63, v0")
    k("  v_readfirstlane_b32 s3, v1")
    k("  s_mov_b32 s40, 0xffff0000")
    k(f"  s_cmp_lt_u32 s2, {N_LN}\n  s_cbranch_scc1 P_ln")
    k(f"  s_cmp_ge_u32 s2, {N_LN+N_KG}\n  s_cbranch_scc1 P_pack")
    k(f"  s_and_b32 s4, s2, 7\n  s_mul_i32 s4, s4, 80\n  s_lshr_b32 s5, s2, 3\n  s_sub_u32 s5, s5, {N_LN//8}\n  s_add_u32 s4, s4, s5")
    k("  s_getpc_b64 s[6:7]\nP_pc:\n  s_add_u32 s6, s6, P_tab-P_pc\n  s_addc_u32 s7, s7, 0")
    k("  v_lshlrev_b32 v3, 4, v0")
    k("  global_load_dwordx4 v[80:83], v3, s[6:7]\n  global_load_dword v84, v3, s[6:7] offset:16")
    k("  s_waitcnt lgkmcnt(0)")
    k.stamp(1)
    k("  s_cmp_eq_u32 s3, 3\n  s_cbranch_scc1 P_k_wait")
    k("  s_mul_i32 s5, s4, 384\n  v_lshl_add_u32 v4, v0, 1, s5")
    for i, sb in enumerate((18, 20, 22, 24, 26, 28)):
        k(f"  global_load_ushort v{10+i}, v4, s[{sb}:{sb+1}]")
    k("  s_lshr_b32 s8, s4, 1\n  s_lshl_b32 s8, s8, 2\n  s_load_dword s9, s[30:31], s8")
    k("  s_and_b32 s10, s4, 1\n  s_lshl_b32 s10, s10, 4")
    k(f"  s_mul_i32 s11, s3, {WREG}")
    k("  v_lshl_add_u32 v5, v2, 2, s11")
    k("  v_and_b32 v6, 31, v2\n  v_mul_u32_u24 v6, 272, v6\n  v_lshrrev_b32 v7, 5, v2\n  v_lshl_add_u32 v6, v7, 4, v6\n  v_add_u32 v6, s11, v6")
    k("  s_waitcnt lgkmcnt(0)")
    k("  s_lshr_b32 s9, s9, s10\n  s_lshl_b32 s9, s9, 16")
    k(f"  v_mov_b32 v8, {LOG2E}\n  v_mul_f32 v8, s9, v8\n  v_exp_f32 v8, v8\n  v_cvt_pk_bf16_f32 v8, v8, v8\n  v_lshlrev_b32 v8, 16, v8")
    k("  s_waitcnt vmcnt(0)")
    k.stamp(2)
    for i in range(6): k(f"  v_lshlrev_b32 v{10+i}, 16, v{10+i}")
    k("  v_mul_f32 v10, v8, v10\n  v_mul_f32 v11, v8, v11\n  v_mul_f32 v12, v8, v12\n  v_mul_f32 v13, v8, v13")
    k(f"  v_mul_f32 v10, {LOG2E}, v10\n  v_mul_f32 v11, 0.15915494, v11")
    for dst, e in ((16, None), (18, "0x41000000"), (20, "0x43800000")):
        if e is None:
            k(f"  v_exp_f32 v22, v10\n  v_fract_f32 v23, v11")
        else:
            k(f"  v_mul_f32 v22, {e}, v10\n  v_mul_f32 v23, {e}, v11\n  v_exp_f32 v22, v22\n  v_fract_f32 v23, v23")
        k(f"  v_cos_f32 v{dst}, v23\n  v_sin_f32 v{dst+1}, v23")
        k(f"  v_mul_f32 v{dst}, v22, v{dst}\n  v_mul_f32 v{dst+1}, v22, v{dst+1}")
    cmul(k, 24, 14, 12)
    def put(reg, row, neg):
        k(f"  v_cvt_pk_bf16_f32 v9, v{reg}, {'-' if neg else ''}v{reg+1}\n  ds_write_b32 v5, v9 offset:{row*272}")
    put(24, 0, True)
    for r in range(1, 8):
        cmul(k, 24 + 2*r, 24 + 2*(r-1), 16); put(24 + 2*r, r, True)
    for i, r in enumerate((0, 2, 4, 6)):
        cmul(k, 40 + 2*i, 24 + 2*r, 20); put(40 + 2*i, 8 + i, True)
    cmul(k, 48, 40, 20); put(48, 12, True)
    cmul(k, 50, 44, 20); put(50, 13, True)
    cmul(k, 52, 48, 20); put(52, 14, True)
    cmul(k, 54, 50, 20); put(54, 15, True)
    prev = 52
    for i in range(5):
        dst = 24 + 2*i
        cmul(k, dst, prev, 20); put(dst, 16 + i, True); prev = dst
    k("  s_waitcnt lgkmcnt(0)")
    for s in range(8): k(f"  ds_read_b128 v[{40+4*s}:{43+4*s}], v6 offset:{32*s}")
    k("  v_mov_b32 v9, 0x3f80\n  ds_write_b32 v5, v9 offset:0")
    put(18, 1, False)
    prev = 18
    for j in range(2, 32):
        dst = 24 + 2*(j & 1)
        cmul(k, dst, prev, 18); put(dst, j, False); prev = dst
    k("  s_waitcnt lgkmcnt(0)")
    k.stamp(3)
    breg = [8, 12, 16, 20, 72, 76, 88, 92]
    for s in range(8): k(f"  ds_read_b128 v[{breg[s]}:{breg[s]+3}], v6 offset:{32*s}")
    for s in range(8):
        k(f"  s_waitcnt lgkmcnt({7-s})")
        c = "0" if s == 0 else "v[24:39]"
        k(f"  v_mfma_f32_32x32x16_bf16 v[24:39], v[{40+4*s}:{43+4*s}], v[{breg[s]}:{breg[s]+3}], {c}")
    k("  v_and_b32 v6, 31, v2\n  v_mul_u32_u24 v6, 96, v6\n  v_lshl_add_u32 v6, v7, 4, v6\n  v_add_u32 v6, s11, v6")
    for g in range(3): k(f"  ds_write_b128 v6, v[{24+4*g}:{27+4*g}] offset:{32*g}")
    k("P_k_wait:")
    k("  s_waitcnt lgkmcnt(0)\n  s_barrier")
    k.stamp(4)
    k("  s_cmp_eq_u32 s3, 3\n  s_cbranch_scc1 P_k_zero")
    for w in range(3): k(f"  ds_read_b128 v[{8+4*w}:{11+4*w}], v3 offset:{w*WREG}")
    k("  v_lshlrev_b32 v4, 3, v0")
    k("  s_waitcnt lgkmcnt(0)")
    for i in range(4): k(f"  v_add_f32 v{8+i}, v{8+i}, v{12+i}\n  v_add_f32 v{8+i}, v{8+i}, v{16+i}")
    k("  v_cvt_pk_bf16_f32 v8, v8, v9\n  v_cvt_pk_bf16_f32 v9, v10, v11")
    k(f"  ds_write_b64 v4, v[8:9] offset:{TB}")
    k("  s_branch P_k_gather")
    k("P_k_zero:")
    k(f"  v_mov_b32 v8, 0\n  v_mov_b32 v4, {TB+1536}\n  ds_write_b32 v4, v8")
    k("P_k_gather:")
    k("  s_waitcnt vmcnt(0)")
    for i in range(4):
        k(f"  v_and_b32 v{20+2*i}, 0xffff, v{80+i}\n  v_lshrrev_b32 v{21+2*i}, 16, v{80+i}")
    k("  v_and_b32 v28, 0xffff, v84")
    k(f"  s_mul_i32 s8, s4, {KG_STRIDE}\n  s_and_b32 s9, s2, 7\n  s_mul_i32 s9, s9, {SLAB - 80*KG_STRIDE}\n  s_add_u32 s8, s8, s9\n  v_add_u32 v4, s8, v3")
    k(f"  s_add_u32 s34, s32, {SL_KG1}\n  s_addc_u32 s35, s33, 0\n  s_add_u32 s36, s32, {SL_KG0}\n  s_addc_u32 s37, s33, 0")
    k("  s_waitcnt lgkmcnt(0)\n  s_barrier")
    k.stamp(5)
    for i in range(9): k(f"  ds_read_u16 v{30+i}, v{20+i} offset:{TB}")
    k("  s_waitcnt lgkmcnt(0)")
    for i in range(4):
        k(f"  v_lshl_or_b32 v{40+i}, v{31+2*i}, 16, v{30+2*i}\n  v_lshl_or_b32 v{44+i}, v{32+2*i}, 16, v{31+2*i}")
    k("  global_store_dwordx4 v4, v[40:43], s[34:35]\n  global_store_dwordx4 v4, v[44:47], s[36:37]")
    k("  v_mov_b32 v48, 0\n  v_mov_b32 v49, 0\n  v_mov_b32 v50, 0\n  v_mov_b32 v51, 0\n  v_add_u32 v4, 4096, v4")
    k("  s_cmp_lg_u32 s3, 0\n  s_cbranch_scc1 P_fin")
    k("  v_cmp_eq_u32 vcc, 0, v0\n  s_and_saveexec_b64 s[38:39], vcc")
    k("  global_store_dwordx4 v4, v[48:51], s[34:35]\n  global_store_dwordx4 v4, v[48:51], s[36:37]")
    k("  s_branch P_fin")
    k("P_pack:")
    k(f"  s_sub_u32 s4, s2, {N_LN+N_KG}\n  s_lshl_b32 s4, s4, 2\n  s_add_u32 s4, s4, s3")
    k("  s_waitcnt lgkmcnt(0)")
    k.stamp(1)
    k(f"  s_mov_b32 s44, s48\n  s_mov_b32 s45, s49\n  s_mov_b32 s46, {640*640*2}\n  s_mov_b32 s47, 0x00020000\n  s_mov_b32 s8, {WS_W1P}")
    k("  s_movk_i32 s6, 1280\n  s_mov_b32 s12, 1\n  s_movk_i32 s14, 6554\n  s_mov_b32 s15, 10")
    k("  s_cmp_lt_u32 s4, 100\n  s_cbranch_scc1 P_go")
    k(f"  s_mov_b32 s44, s50\n  s_mov_b32 s45, s51\n  s_sub_u32 s4, s4, 100\n  s_mov_b32 s8, {WS_W2P}")
    k("  s_cmp_lt_u32 s4, 100\n  s_cbranch_scc1 P_go")
    k(f"  s_mov_b32 s44, s52\n  s_mov_b32 s45, s53\n  s_mov_b32 s46, {640*1536*2}\n  s_sub_u32 s4, s4, 100\n  s_mov_b32 s8, {WS_W3P}")
    k("  s_movk_i32 s6, 3072\n  s_mov_b32 s12, 0\n  s_movk_i32 s14, 2731\n  s_mov_b32 s15, 24")
    k("P_go:")
    k("  s_mov_b32 s9, 102400\n  s_movk_i32 s10, 20480\n  s_movk_i32 s7, 4096")
    k("  s_mul_i32 s11, s4, s14\n  s_lshr_b32 s11, s11, 16\n  s_mul_i32 s13, s11, s15\n  s_sub_u32 s5, s4, s13")
    k(f"  s_mov_b32 s36, s32\n  s_mov_b32 s37, s33\n  s_mov_b32 s38, {WS_SPAN}\n  s_mov_b32 s39, 0x00020000")
    pack_item(k, "P")
    k("  s_branch P_fin")
    US = 1344
    k("P_ln:")
    k("  s_and_b32 s5, s2, 7\n  s_lshl_b32 s5, s5, 4\n  s_lshr_b32 s4, s2, 3\n  s_add_u32 s4, s4, s5")
    k("  v_lshrrev_b32 v3, 4, v0\n  v_and_b32 v4, 15, v0")
    k("  v_mul_u32_u24 v5, 1280, v3\n  v_lshl_add_u32 v5, v4, 4, v5\n  s_mul_i32 s5, s4, 20480\n  v_add_u32 v5, s5, v5")
    k(f"  v_mul_u32_u24 v7, {US}, v3\n  v_lshl_add_u32 v7, v4, 4, v7")
    k("  s_waitcnt lgkmcnt(0)")
    k.stamp(1)
    for i in range(5): k(f"  global_load_dwordx4 v[{12+4*i}:{15+4*i}], v5, s[16:17] offset:{256*i}")
    k(f"  v_bfe_u32 v8, v2, 2, 2\n  v_mul_u32_u24 v8, {US}, v8\n  v_lshrrev_b32 v9, 4, v2\n  v_lshl_add_u32 v8, v9, 5, v8\n  v_and_b32 v9, 3, v2\n  v_lshl_add_u32 v8, v9, 3, v8")
    k(f"  s_lshl_b32 s6, s3, 7\n  v_add_u32 v8, s6, v8")
    k(f"  s_movk_i32 s7, {UT_STRIDE}\n  s_mov_b32 s8, {SLAB - 80*UT_STRIDE}\n  s_lshl_b32 s5, s4, 5")
    for i, r in enumerate((9, 78, 79)):
        k(f"  v_add_u32 v88, {256*i}, v0\n  v_mul_lo_u32 v{r}, s7, v88\n  v_mul_u32_u24 v88, 205, v88\n  v_lshrrev_b32 v88, 14, v88\n  v_mul_lo_u32 v88, s8, v88\n  v_add3_u32 v{r}, v{r}, v88, s5")
    k(f"  v_and_b32 v10, 7, v2\n  v_lshrrev_b32 v11, 3, v0\n  v_mul_u32_u24 v6, {2*US}, v10\n  v_lshl_add_u32 v6, v11, 3, v6")
    k(f"  s_movk_i32 s7, {QS}\n  s_mov_b32 s8, {SLAB - 20*QS}\n  s_lshl_b32 s5, s4, 7\n  v_lshl_add_u32 v10, v10, 4, s5")
    for i in range(5):
        k(f"  v_add_u32 v88, {32*i}, v11\n  v_mul_lo_u32 v{90+i}, s7, v88\n  v_mul_u32_u24 v88, 205, v88\n  v_lshrrev_b32 v88, 12, v88\n  v_mul_lo_u32 v88, s8, v88\n  v_add3_u32 v{90+i}, v{90+i}, v88, v10")
    k(f"  s_add_u32 s34, s32, {SL_UT}\n  s_addc_u32 s35, s33, 0\n  s_add_u32 s36, s32, {SL_XQ}\n  s_addc_u32 s37, s33, 0")
    for i in range(5):
        k(f"  s_waitcnt vmcnt({4-i})")
        k(f"  ds_write_b128 v7, v[{12+4*i}:{15+4*i}] offset:{256*i}")
        for h in range(4):
            r = 12 + 4*i + h; o = 32 + 8*i + 2*h
            k(f"  v_lshlrev_b32 v{o}, 16, v{r}\n  v_and_b32 v{o+1}, s40, v{r}")
    k.stamp(2)
    k("  s_waitcnt lgkmcnt(0)\n  s_barrier")
    for i in range(5):
        k(f"  ds_read_b64 v[{12+4*i}:{13+4*i}], v6 offset:{256*i}\n  ds_read_b64 v[{14+4*i}:{15+4*i}], v6 offset:{256*i+US}")
    def reduce16(r):
        for sh in (8, 4, 2, 1): k(f"  v_add_f32_dpp v{r}, v{r}, v{r} row_ror:{sh} row_mask:0xf bank_mask:0xf")
    k("  v_pk_add_f32 v[72:73], v[32:33], v[34:35]")
    for i in range(2, 20): k(f"  v_pk_add_f32 v[72:73], v[72:73], v[{32+2*i}:{33+2*i}]")
    k("  v_add_f32 v72, v72, v73")
    reduce16(72)
    k("  v_mul_f32 v72, 0x3acccccd, v72")
    k("  v_mov_b32 v73, v72\n  v_mov_b32 v74, 0\n  v_mov_b32 v75, 0")
    k("  s_waitcnt lgkmcnt(0)")
    for i in range(5):
        k(f"  global_store_dwordx4 v{90+i}, v[{12+4*i}:{15+4*i}], s[36:37]")
    for i in range(20):
        k(f"  v_pk_add_f32 v[76:77], v[{32+2*i}:{33+2*i}], v[72:73] neg_lo:[0,1] neg_hi:[0,1]\n  v_pk_fma_f32 v[74:75], v[76:77], v[76:77], v[74:75]")
    k("  v_add_f32 v74, v74, v75")
    reduce16(74)
    k("  v_mul_f32 v74, 0x3acccccd, v74")
    k("  v_cvt_pk_bf16_f32 v76, v72, v74\n  v_lshlrev_b32 v72, 16, v76\n  v_and_b32 v74, s40, v76\n  v_mov_b32 v73, v72")
    k("  v_add_f32 v74, 0x3727c5ac, v74\n  v_cvt_pk_bf16_f32 v74, v74, v74\n  v_lshlrev_b32 v74, 16, v74")
    k("  v_sqrt_f32 v74, v74\n  v_cvt_pk_bf16_f32 v74, v74, v74\n  v_lshlrev_b32 v74, 16, v74\n  v_rcp_f32 v74, v74\n  v_mov_b32 v75, v74")
    k("  s_barrier")
    for i in range(20):
        o = 32 + 2*i
        k(f"  v_pk_add_f32 v[{o}:{o+1}], v[{o}:{o+1}], v[72:73] neg_lo:[0,1] neg_hi:[0,1]")
        k(f"  v_cvt_pk_bf16_f32 v76, v{o}, v{o+1}\n  v_lshlrev_b32 v{o}, 16, v76\n  v_and_b32 v{o+1}, s40, v76")
        k(f"  v_pk_mul_f32 v[{o}:{o+1}], v[{o}:{o+1}], v[74:75]")
        k(f"  v_cvt_pk_bf16_f32 v{80+(i&7)}, v{o}, v{o+1}")
        if i % 4 == 3: k(f"  ds_write_b128 v7, v[{80+(i&4)}:{83+(i&4)}] offset:{256*(i//4)}")
    k.stamp(3)
    k("  s_waitcnt lgkmcnt(0)\n  s_barrier")
    for i in range(2):
        for g in range(4): k(f"  ds_read_b64_tr_b16 v[{32+8*i+2*g}:{33+8*i+2*g}], v8 offset:{512*i+4*g*US}")
    for i in range(2):
        k(f"  s_waitcnt lgkmcnt({4-4*i})")
        k(f"  global_store_dwordx4 v{(9, 78)[i]}, v[{32+8*i}:{35+8*i}], s[34:35]\n  global_store_dwordx4 v{(9, 78)[i]}, v[{36+8*i}:{39+8*i}], s[34:35] offset:16")
    k("  s_cmp_ge_u32 s3, 2\n  s_cbranch_scc1 P_fin")
    for g in range(4): k(f"  ds_read_b64_tr_b16 v[{48+2*g}:{49+2*g}], v8 offset:{1024+4*g*US}")
    k("  s_waitcnt lgkmcnt(0)")
    k(f"  global_store_dwordx4 v79, v[48:51], s[34:35]\n  global_store_dwordx4 v79, v[52:55], s[34:35] offset:16")
    k("P_fin:")
    k.stamp_out(0)
    k("P_done:\n  s_endpgm")
    tab = ktab_offsets()
    k.tail.append(".p2align 6\nP_tab:")
    for i in range(0, len(tab), 16):
        k.tail.append("  .short " + ", ".join(str(x) for x in tab[i:i+16]))
    return k
```

```python
MB = 1 << 20
L = 2048; D = 640; NS = 192; F = 1536
UT_STRIDE = 4352
KG_STRIDE = 4224
QS = 16640
OS = 33024
SLAB = 1536 * 1024
SL_KG0 = 0
SL_KG1 = 80 * KG_STRIDE
SL_UT = 160 * KG_STRIDE
SL_XQ = SL_UT + 80 * UT_STRIDE
SL_END = SL_XQ + 20 * QS
SL_G = SL_UT
SL_ST1 = 1466368
SL_ST2 = 1470464
assert SL_G % 1024 == 0 and SL_G + 786432 <= SL_ST1 and SL_ST2 + 16384 <= SLAB
WS_HO = 12 * MB + 4096
WS_FL1 = 31 * MB + 8 * 65536
WS_FL2 = WS_FL1 + 4096
WS_FL3 = WS_FL1 + 8192
WS_XID = WS_FL1 + 12288
WS_SPAN = 32 * MB
WS_W1P = 25 * MB
WS_W2P = 26 * MB
WS_W3P = 27 * MB
WS_W4P = 29 * MB
WS_CS1 = 31 * MB
WS_CS3 = 31 * MB + 65536
WS_ST0 = 31 * MB + 2 * 65536
WS_ST2 = 31 * MB + 4 * 65536
ACT_BYTES = L * D * 2
GF_BYTES = L * F * 2
KA_X = 0; KA_ARE = 8; KA_AIM = 16; KA_BRE = 24; KA_BIM = 32; KA_CRE = 40; KA_CIM = 48; KA_LDT = 56; KA_DSK = 64
KA_BX = 72; KA_W1 = 80; KA_W2 = 88; KA_W3 = 96; KA_W4 = 104; KA_OUT = 112; KA_DBG = 120; KA_WS = 128

import struct
def bf16_round_int(l):
    u = struct.unpack("<I", struct.pack("<f", float(l)))[0]
    u = (u + 0x7FFF + ((u >> 16) & 1)) & 0xFFFF0000
    return int(struct.unpack("<f", struct.pack("<I", u))[0])

ROWS = list(range(8)) + [256, 258, 260, 262, 512, 516, 768, 772, 1024, 1280, 1536, 1792, 2048]
def k_lut():
    lut = {}
    for ri, rv in enumerate(ROWS):
        for c in range(32):
            lut.setdefault(rv + 8 * c, (ri, c))
    return lut
def ktab_offsets():
    lut = k_lut(); out = []
    for p in range(2064):
        lag = 2047 - p
        if lag < 0: out.append(1536)
        else:
            ri, c = lut[bf16_round_int(lag)]
            out.append(2 * (24 * c + ri))
    return out
```

```python
import sys
from asmfw import emit_file
import k_prep
hdr = "".join(l for l in open("sequential_preLN__ssm_conv_s4__mixer_s_mlp__prompt.s.ref").readlines() if l.startswith(";") and "@launch" not in l)
import k_pc, k_gg
ks = [k_pc.gen_pc(), k_gg.gen_gg()]
out = sys.argv[1] if len(sys.argv) > 1 else "sequential_preLN__ssm_conv_s4__mixer_s_mlp__prompt.s"
open(out, "w").write(emit_file(ks, hdr))
```

```python
def touch_share(off, L, vtmp, vdst, stmp):
    n = (L + 63) // 64; per = L // n; assert per * n == L
    out = [(f"  v_min_u32 v{vtmp}, {per-1}, v2\n  v_lshlrev_b32 v{vtmp}, 7, v{vtmp}\n  s_lshr_b32 s{stmp}, s2, 3\n  s_lshl_b32 s{stmp}, s{stmp}, 2\n  s_add_u32 s{stmp}, s{stmp}, s3\n  s_mul_i32 s{stmp}, s{stmp}, {L*128}\n  s_add_u32 s{stmp}, s{stmp}, {off}", False)]
    for i in range(n):
        out.append((f"  buffer_load_dword v{vdst}, v{vtmp}, s[36:39], s{stmp} offen sc1", True))
        if i < n - 1: out.append((f"  s_add_u32 s{stmp}, s{stmp}, {per*128}", False))
    return out

def pack_load(k, ldsbase, va=6, vb=4, vc=5, vd=7, so=56):
    k(f"  v_lshrrev_b32 v{va}, 3, v2\n  v_mul_lo_u32 v{va}, s6, v{va}\n  v_and_b32 v{vb}, 7, v2\n  v_lshl_add_u32 v{va}, v{vb}, 4, v{va}")
    k("  s_lshl_b32 s13, s6, 3\n  s_lshl_b32 s14, s13, 3\n  s_mul_i32 s14, s14, s11\n  s_lshl_b32 s15, s5, 7\n  s_add_u32 s14, s14, s15")
    for e in range(8):
        k(f"  s_add_u32 m0, s{ldsbase}, {1024*e}\n  s_nop 0\n  buffer_load_dwordx4 v{va}, s[44:47], s14 offen lds")
        if e < 7: k("  s_add_u32 s14, s14, s13")
    k(f"  v_lshrrev_b32 v{vb}, 4, v2\n  v_bfe_u32 v{vc}, v2, 2, 2\n  v_lshl_add_u32 v{vb}, v{vb}, 3, v{vc}\n  v_lshlrev_b32 v{vb}, 7, v{vb}\n  v_and_b32 v{vc}, 3, v2\n  v_lshl_add_u32 v{vb}, v{vc}, 4, v{vb}\n  v_add_u32 v{vb}, s{ldsbase}, v{vb}")
    k(f"  v_lshlrev_b32 v{vc}, 4, v2\n  v_add_u32 v{vd}, s41, v{vc}")
    k("  s_lshr_b32 s14, s11, 1\n  s_mul_i32 s14, s14, s7\n  s_and_b32 s15, s11, 1\n  s_mul_i32 s15, s15, s41\n  s_lshl_b32 s15, s15, 1\n  s_add_u32 s14, s14, s15\n  s_add_u32 s14, s14, s8")
    for tt in range(4):
        k(f"  s_lshl_b32 s15, s5, 2\n  s_add_u32 s15, s15, {tt}\n  s_mul_i32 s13, s15, s43\n  s_lshr_b32 s13, s13, 10\n  s_mul_i32 s{so+tt}, s13, s42\n  s_sub_u32 s15, s15, s{so+tt}")
        k(f"  s_and_b32 s{so+tt}, s13, s12\n  s_sub_u32 s15, s15, s{so+tt}\n  s_cmp_lt_i32 s15, 0\n  s_cselect_b32 s15, 4, s15")
        k(f"  s_mul_i32 s13, s13, s9\n  s_mul_i32 s15, s15, s10\n  s_add_u32 s{so+tt}, s15, s13\n  s_add_u32 s{so+tt}, s{so+tt}, s14")

def pack_store(k, flags="", vb=4, vc=5, vd=7, so=56, R=16):
    for tt in range(4):
        for kk in range(2):
            for hf in range(2):
                r = R + 8*tt + 4*kk + 2*hf
                k(f"  ds_read_b64_tr_b16 v[{r}:{r+1}], v{vb} offset:{kk*4096 + hf*512 + 64*(tt>>1) + 8*(tt&1)}")
    for tt in range(4):
        for kk in range(2):
            r = R + 8*tt + 4*kk
            k(f"  s_waitcnt lgkmcnt({14 - 4*tt - 2*kk})")
            k(f"  buffer_store_dwordx4 v[{r}:{r+3}], v{vd if kk else vc}, s[36:39], s{so+tt} offen{flags}")
```

```python
from asmfw import K
from layout import *
from k_common import *
from k_gemm import VM, red_q, zip_lists, f32, K1, K2, P, INV640, EPS

SLOT = 20480
WR = 8; WB = 16
NSL = 7; FLG = NSL * SLOT
ACC = 48; CS = 96; ST = 120; TMP = 128; DR = 136; AL2 = 144; BE2 = 146; PT = 148; V128K = 152
HP = 154; X1P = 164; MR = 174; XV = 176
CK1, CONE = 8, 10
SPIN_LIMIT = 400000
LDS_SPIN = 1 << 23
SLACK = 4
GS = 68; GQ = 72

def cost(t):
    t = t.lstrip()
    if t.startswith("s_") or t.startswith("@VW"): return 0
    return 2 if t.split()[0] in ("v_exp_f32", "v_rcp_f32", "v_sqrt_f32") else 1

def gelu4(a, cs, C, D, pk):
    T = TMP; o = []
    if pk:
        ls = []
        for h in range(2):
            x = T + 4*h; y = x + 2; A = a + 2*h; c = cs + 2*h
            ls.append([f"  v_pk_fma_f32 v[{x}:{x+1}], v[{C}:{C+1}], v[{c}:{c+1}], v[{A}:{A+1}] op_sel_hi:[0,1,1]",
                       f"  v_pk_mul_f32 v[{y}:{y+1}], v[{x}:{x+1}], v[{x}:{x+1}]",
                       f"  v_pk_fma_f32 v[{y}:{y+1}], v[{C+2}:{C+3}], v[{y}:{y+1}], v[{C}:{C+1}] op_sel:[0,0,1] op_sel_hi:[0,1,1]",
                       f"  v_pk_mul_f32 v[{y}:{y+1}], v[{y}:{y+1}], v[{x}:{x+1}]",
                       f"  v_exp_f32 v{y}, v{y}", f"  v_exp_f32 v{y+1}, v{y+1}",
                       f"  v_pk_fma_f32 v[{y}:{y+1}], v[{y}:{y+1}], v[{C+2}:{C+3}], v[{C+2}:{C+3}] op_sel:[0,1,1] op_sel_hi:[1,1,1]",
                       f"  v_rcp_f32 v{y}, v{y}", f"  v_rcp_f32 v{y+1}, v{y+1}",
                       f"  v_pk_mul_f32 v[{x}:{x+1}], v[{x}:{x+1}], v[{y}:{y+1}]",
                       f"  v_cvt_pk_bf16_f32 v{D+h}, v{x}, v{x+1}"])
        return zip_lists(*ls)
    ls = []
    for e in range(4):
        x = T + e; y = T + 4 + e
        ls.append([f"  v_fma_f32 v{x}, v{C}, v{cs+e}, v{a+e}", f"  v_mul_f32 v{y}, v{x}, v{x}", f"  v_fma_f32 v{y}, v{C+2}, v{y}, v{C+1}",
                   f"  v_mul_f32 v{y}, v{y}, v{x}", f"  v_exp_f32 v{y}, v{y}", f"  v_fma_f32 v{y}, v{y}, v{C+3}, v{C+3}", f"  v_rcp_f32 v{y}, v{y}",
                   f"  v_mul_f32 v{x}, v{x}, v{y}"])
    for i in range(8):
        for l in ls: o.append(l[i])
    return o + [f"  v_cvt_pk_bf16_f32 v{D}, v{T}, v{T+1}", f"  v_cvt_pk_bf16_f32 v{D+1}, v{T+2}, v{T+3}"]

def ln_s(out, mean, var, m, s, t):
    out += [f"  v_cvt_pk_bf16_f32 v{t}, v{mean}, v{var}", f"  v_lshlrev_b32 v{m}, 16, v{t}", f"  v_and_b32 v{s}, s40, v{t}",
            f"  v_add_f32 v{s}, {EPS}, v{s}", f"  v_cvt_pk_bf16_f32 v{s}, v{s}, v{s}", f"  v_lshlrev_b32 v{s}, 16, v{s}",
            f"  v_sqrt_f32 v{s}, v{s}", f"  v_cvt_pk_bf16_f32 v{s}, v{s}, v{s}", f"  v_lshlrev_b32 v{s}, 16, v{s}"]
def mean_var(out, s1, s2):
    out += [f"  v_mul_f32 v{s1}, {INV640}, v{s1}", f"  v_mul_f32 v{s2}, {INV640}, v{s2}", f"  v_fma_f32 v{s2}, -v{s1}, v{s1}, v{s2}", f"  v_max_f32 v{s2}, 0, v{s2}"]
def gelu_consts(out, C, t):
    out += [f"  v_rcp_f32 v{t}, v{C+3}", f"  v_mul_f32 v{C+1}, {f32(K1)}, v{t}", f"  v_mul_f32 v{C+2}, v{t}, v{t}", f"  v_mul_f32 v{C+2}, v{C+2}, v{t}", f"  v_mul_f32 v{C+2}, {f32(K2)}, v{C+2}"]

class Stream:
    def __init__(self, k, vm): self.k = k; self.vm = vm; self.uid = 0; self.t = 90; self.ring = [WB + 4*i for i in range(8)]
    def need_ready(self, n):
        self.uid += 1; u = self.uid; k = self.k
        k(f"  s_cmp_ge_u32 s77, {n}\n  s_cbranch_scc1 GG_ro{u}")
        k(f"GG_rd{u}:\n  ds_read_b128 v[{RT4}:{RT4+3}], v{VFL}\n  s_add_u32 s76, s76, 1\n  s_waitcnt lgkmcnt(0)\n  v_min_u32 v{RT4}, v{RT4}, v{RT4+1}\n  v_min3_u32 v{RT4}, v{RT4}, v{RT4+2}, v{RT4+3}\n  v_readfirstlane_b32 s77, v{RT4}\n  s_cmp_ge_u32 s77, {n}\n  s_cbranch_scc1 GG_ro{u}\n  s_cmp_lt_u32 s76, {LDS_SPIN}\n  s_cbranch_scc1 GG_rd{u}\nGG_ro{u}:")
    def free_text(self, n): return f"  v_mov_b32 v{self.t+1}, {n}\n  ds_write_b32 v{VFW}, v{self.t+1}"
    def run(self, N, mfma_of, lds_off_of, ready_before, free_after, xwait_of, vtarget, fillers, extra_of, GW=2, FPER=2, stamps={}, bases=(3, 1, V128K), hook=None):
        PD = len(self.ring) - 1; k = self.k; vm = self.vm; fi = [0]; ops = []; st = {"nrd": 0, "cov": -1}
        def rd():
            j = st["nrd"]; st["nrd"] += 1
            if j in ready_before: self.need_ready(ready_before[j])
            off = lds_off_of(j); r = self.ring[j % len(self.ring)]
            k(f"  ds_read_b128 v[{r}:{r+3}], v{bases[off >> 16]} offset:{off & 65535}"); ops.append(j)
        def fill(i, n):
            while n > 0 and fi[0] < len(fillers) and fillers[fi[0]][0] <= i:
                t = fillers[fi[0]][1]; fi[0] += 1
                if t.startswith("@ST") or t.startswith("@HS"): vm.issue(t[3:], "S")
                elif t.startswith("@VW"): vm.wait(t[3:]); continue
                else: k(t)
                n -= cost(t)
        pend = []
        def shadow(i, last_of_step):
            lim = min(N, i + PD + (1 if last_of_step else 0))
            if st["nrd"] < lim and st["nrd"] <= i + PD - 1 + (1 if last_of_step else 0) and (st["nrd"] < i + PD - 1 or not (vm.qpos < min(vtarget(i), len(vm.q)) or pend) or last_of_step): rd()
            elif vm.qpos < min(vtarget(i), len(vm.q)): vm.upto(vm.qpos + 1)
            elif pend: k(pend.pop(0)); ops.append(None)
            else: fill(i, FPER)
        while st["nrd"] < min(PD, N): rd()
        if hook: hook()
        for i in range(N):
            if i in stamps: k.stamp(stamps[i])
            while st["nrd"] <= i: rd()
            if st["cov"] < i:
                last = min(st["nrd"] - 1, i + GW - 1)
                idx = ops.index(last); k(f"  s_waitcnt lgkmcnt({min(15, len(ops) - 1 - idx)})"); del ops[:idx + 1]; st["cov"] = last
            xt = xwait_of(i)
            if xt and not P("NOXW", 0): vm.wait(xt)
            ms = mfma_of(i, self.ring[i % len(self.ring)]); ex = extra_of(i)
            for n, m in enumerate(ms + ex):
                k(m); shadow(i, n >= len(ms) - 1)
            if len(ms) + len(ex) == 1:
                if vm.qpos < min(vtarget(i), len(vm.q)): vm.upto(vm.qpos + 1)
                elif pend: k(pend.pop(0)); ops.append(None)
            if i in free_after: pend.append(self.free_text(free_after[i]))
        for p_ in pend: k(p_)
        vm.upto(10**9)
        fill(10**9, 10**9)

import os
STP = os.environ.get("STP", "g1,s1,g2,s2,g3,s3").split(",")
XF = os.environ.get('XF', ' sc1')
KGS = KG_STRIDE; PSL = P("PSLEEP", 2)
LSTAMP = bool(os.environ.get('STAMPS'))
VH = 151; RT4 = 140; VFL2 = 13; VFL = 153; VFW = 0
def gen_gg():
    k = K("gg_kernel", 256, 512, FLG + 64, vgpr=256, agpr=0, sgpr=80)
    def sp(name):
        if name in STP: k.stamp(1 + STP.index(name))
    def spd(d): return {i: 1 + STP.index(n) for i, n in d.items() if n in STP}
    vm = VM(k); st = Stream(k, vm)
    uid = [0]
    def hstore(text, pre="", post=""):
        return f"@HS{pre}{text} sc1{post}"
    k("  s_cmp_ge_u32 s2, 256\n  s_cbranch_scc1 GG_done")
    k.stamp(0); k.stamp(7, True)
    k(f"  s_load_dwordx2 s[32:33], s[0:1], {KA_WS}\n  s_load_dwordx2 s[34:35], s[0:1], {KA_OUT}")
    k("  v_lshrrev_b32 v1, 6, v0\n  v_and_b32 v2, 63, v0\n  v_readfirstlane_b32 s3, v1")
    k(f"  v_lshlrev_b32 v3, 4, v2\n  v_mov_b32 v{VFL}, {FLG}")
    k(f"  s_and_b32 s19, s2, 7\n  s_lshl_b32 s4, s19, 2\n  s_bfe_u32 s5, s2, 0x20003\n  s_add_u32 s4, s4, s5\n  s_lshr_b32 s5, s2, 5\n  s_lshr_b32 s25, s2, 4")
    k("  s_and_b32 s74, s4, 3\n  s_lshl_b32 s74, s74, 1\n  s_add_u32 s74, s74, s5\n  s_mul_i32 s74, s74, 3\n  s_lshr_b32 s74, s74, 1\n  s_sub_u32 s12, s74, 12\n  s_cmp_ge_u32 s74, 12\n  s_cselect_b32 s74, s12, s74")
    k("  s_add_u32 s65, s4, s5\n  s_and_b32 s65, s65, 3\n  s_bfe_u32 s66, s2, 0x10003\n  s_lshl_b32 s66, s66, 1\n  s_add_u32 s66, s66, s25\n  s_and_b32 s66, s66, 3")
    k("  s_mov_b32 s76, 0\n  s_cmp_ge_u32 s3, 4\n  s_cbranch_scc1 GG_loader")
    k(f"  v_and_b32 v6, 15, v2\n  v_lshrrev_b32 v7, 4, v2\n  v_add_u32 v1, 0x10000, v3\n  v_add_u32 v{V128K}, 0x20000, v3")
    k(f"  s_lshl_b32 s12, s3, 2\n  s_add_u32 s12, s12, {FLG+16}\n  v_mov_b32 v{VFW}, s12")
    k(f"  v_mul_u32_u24 v4, {OS}, v7\n  v_lshl_add_u32 v4, v6, 4, v4\n  v_mul_u32_u24 v5, {KGS}, v7\n  v_lshl_add_u32 v5, v6, 4, v5")
    k("  s_mov_b32 s40, 0xffff0000\n  s_mov_b32 s41, 0x3f803f80")
    k("  v_mov_b32 v8, s41\n  v_mov_b32 v9, s41\n  v_mov_b32 v10, s41\n  v_mov_b32 v11, s41")
    k(f"  s_mul_i32 s67, s19, {SLAB}")
    k("  s_mul_i32 s20, s5, 5\n  s_add_u32 s20, s20, 1\n  s_lshr_b32 s20, s20, 1\n  s_lshr_b32 s21, s5, 1\n  s_mul_i32 s21, s21, 5\n  s_add_u32 s21, s21, 2\n  s_and_b32 s22, s5, 1")
    k(f"  s_mul_i32 s48, s20, {4*OS}\n  s_add_u32 s49, s48, {4*OS}\n  s_mul_i32 s50, s21, {4*OS}\n  s_lshl_b32 s23, s22, 3\n  s_add_u32 s50, s50, s23")
    k(f"  s_mul_i32 s62, s20, {4*KGS}\n  s_add_u32 s63, s62, {4*KGS}\n  s_mul_i32 s64, s21, {4*KGS}\n  s_lshl_b32 s12, s22, 11\n  s_add_u32 s64, s64, s12")
    k("  s_lshl_b32 s6, s4, 2\n  s_add_u32 s6, s6, s3\n  s_lshl_b32 s18, s6, 8\n  s_and_b32 s68, s6, 15")
    k("  s_lshl_b32 s69, s68, 8\n  s_add_u32 s69, s69, s67\n  s_lshl_b32 s12, s68, 7\n  s_sub_u32 s64, s64, s12")
    k(f"  v_mul_u32_u24 v{VH}, {KGS}, v7\n  v_lshl_add_u32 v{VH}, v6, 3, v{VH}")
    k("  s_lshl_b32 s24, s19, 1\n  s_bfe_u32 s27, s2, 0x10003\n  s_add_u32 s24, s24, s27")
    k("  s_lshl_b32 s26, s24, 3\n  s_lshl_b32 s12, s3, 1\n  s_add_u32 s26, s26, s12\n  s_and_b32 s27, s26, 15")
    k("  s_sub_u32 s31, s74, 1")
    SLO = lambda j: (j % NSL) * SLOT
    def emit_hs(t): vm.issue(t[3:], "S")
    def publish(n, flag_off):
        vm.wait("S"); sp(f"s{n}a")
        k(flag_off)
        k(f"  v_mov_b32 v{PT}, 1\n  v_mov_b32 v{PT+1}, 0\n  s_mov_b64 exec, 1")
        t = f"  buffer_store_dword v{PT}, v{PT+1}, s[36:39], s12 offen"
        vm.issue(f"  s_cmp_lg_u32 s75, 0\n  s_cbranch_scc1 GG_ff{n}\n{t} sc1\n  s_branch GG_fe{n}\nGG_ff{n}:\n{t}\nGG_fe{n}:", "F")
        k("  s_mov_b64 exec, -1")
    def poll(n, setup):
        k(setup)
        k("  s_mov_b32 s13, 0\n  s_mov_b64 exec, 0xffff")
        k(f"GG_poll{n}:")
        k(f"  buffer_load_dword v{PT}, v{PT+1}, s[36:39], 0 offen sc1\n  s_waitcnt vmcnt(0)\n  v_cmp_ne_u32 vcc, 0, v{PT}\n  s_add_u32 s13, s13, 1")
        k(f"  s_cmp_eq_u64 vcc, exec\n  s_cbranch_scc1 GG_np{n}\n  s_sleep {PSL}\n  s_cmp_lt_u32 s13, {SPIN_LIMIT}\n  s_cbranch_scc1 GG_poll{n}")
        k(f"GG_np{n}:\n  s_mov_b64 exec, -1")
        vm.done = len(vm.ops) - 1

    def xrot_setup(stride, rreg):
        k(f"  s_mov_b32 s8, s7\n  s_add_u32 s9, s7, {20*stride}\n  s_mul_i32 s12, s{rreg}, {5*stride}\n  s_add_u32 s7, s7, s12\n  s_sub_u32 s7, s7, {stride}")
    def xadv(i, stride):
        return f"  s_add_u32 s7, s7, {stride}" + ("\n  s_cmp_eq_u32 s7, s9\n  s_cselect_b32 s7, s8, s7" if (i % 5 == 0 and i) else "")
    def xpush_s(which, i, rt, reg, lrt_reg):
        pre = xadv(i, 4*KGS) if rt == 0 else None
        if i % 5 != 2:
            vm.push(pre, f"  buffer_load_dwordx4 v[{reg}:{reg+3}], v5, s[36:39], s7 offen offset:{256*rt}{XF}", f"X{which}_{i}")
        else:
            if rt == 0: pre += f"\n  s_lshl_b32 s11, s{lrt_reg}, 7\n  s_sub_u32 s11, s7, s11"
            vm.push(pre, f"  buffer_load_dwordx2 v[{reg}:{reg+1}], v{VH}, s[36:39], s11 offen offset:{128*rt}{XF}", f"X{which}_{i}")
            vm.push(None, f"  buffer_load_dwordx2 v[{reg+2}:{reg+3}], v{VH}, s[36:39], s11 offen offset:{2048+128*rt}{XF}", f"X{which}_{i}")

    def gemm_phase(which, J0, NT, RT, NB, XR, pre_fill, epi_tile, store, extra, LOOK, FPER, stamps, before=None):
        KS = 20
        steps = [(nt, ks) for ks in range(KS) for nt in range(NB)] + [(nt, ks) for nt in range(NB, NT) for ks in range(KS)]
        last_step = {nt: max(i for i, s in enumerate(steps) if s[0] == nt) for nt in range(NT)}
        NBS = NB * KS
        fillers = list(pre_fill(NBS))
        N = len(steps); cur = 0.0
        for e, x in fillers: cur = max(cur, e) + cost(x) / (FPER * RT)
        inside = True
        for j in range(3):
            tiles = [t for t in (2*j, 2*j+1) if t < NT]
            for t in tiles:
                for rt in range(RT):
                    e = max(last_step[t], NBS - 1) + 3
                    u = epi_tile(t, rt, False)
                    need = sum(cost(x) for x in u) / (FPER * RT)
                    if inside and max(cur, e) + need <= N + SLACK: cur = max(cur, e) + need
                    else: inside = False; u = epi_tile(t, rt, True); e = 10**8
                    fillers += [(e, x) for x in u]
                    if t == tiles[-1]: fillers += [(e, x) for x in store(j, rt)]
        def mfma_of(i, w):
            nt, ks = steps[i]; out = []
            for rt in range(RT):
                a = ACC + (nt * RT + rt) * 4
                c = "0" if ks == 0 else f"v[{a}:{a+3}]"
                out.append(f"  v_mfma_f32_16x16x32_bf16 v[{a}:{a+3}], v[{w}:{w+3}], {XR(rt, ks)}, {c}")
            return out
        xt = lambda ks: f"X{which}_{ks}"
        def xwait(i): return xt(steps[i][1]) if (i < NBS and steps[i][0] == 0) else None
        def vtarget(i): return vm.index_of(xt(steps[i][1])) + 1 + LOOK if i < NBS else vm.qpos + 1
        assert NB == NT
        ready = {20 * c: J0 + c + 1 for c in range(NT)}; free = {20 * c + 19: J0 + c + 1 for c in range(NT)}
        def hook():
            if before: before()
            vm.upto(vm.index_of(xt(P("XFIRST", 4))) + 1)
        if before is None: hook()
        st.run(N, mfma_of, lambda j: SLO(J0 + j // 20) + (j % 20) * 1024, ready, free, xwait, vtarget, fillers,
               lambda i: extra(steps[i], i < NBS), GW=P('GW', 4) if RT == 1 else 2, FPER=FPER, stamps=stamps(NBS), hook=hook if before else None)

    VS1 = 88
    k("  s_lshr_b32 s12, s5, 1\n  s_lshr_b32 s13, s12, 1\n  s_add_u32 s13, s13, 1\n  s_sub_u32 s14, 0, s13\n  s_and_b32 s12, s12, 1\n  s_cmp_eq_u32 s12, 0\n  s_cselect_b32 s13, s14, s13")
    k(f"  s_lshl_b32 s12, s13, 4\n  s_add_u32 s7, s18, s12\n  s_add_u32 s7, s7, {WS_HO}")
    xrot_setup(4*OS, 65)
    k(f"  s_lshl_b32 s12, s6, 4\n  s_add_u32 s12, s12, s13\n  v_add_u32 v{TMP+1}, s12, v6\n  s_movk_i32 s12, 0x800\n  v_cmp_gt_u32 s[60:61], s12, v{TMP+1}")
    k(f"  v_add_u32 v{VS1}, s13, v6\n  v_cmp_gt_u32 s[70:71], 16, v{VS1}\n  v_cmp_eq_u32 s[72:73], 15, v{VS1}\n  v_lshlrev_b32 v{VS1}, 3, v{VS1}")
    k("  s_cmp_eq_u32 s5, 2\n  s_cselect_b64 s[72:73], s[72:73], 0\n  s_cmp_eq_u32 s5, 0\n  s_cselect_b64 s[70:71], s[70:71], s[72:73]\n  s_and_b64 s[70:71], s[70:71], 0xffff")
    k(f"  v_lshlrev_b32 v{TMP}, 5, v7\n  s_lshl_b32 s51, s20, 7\n  s_add_u32 s51, s51, {WS_CS1}\n  s_lshl_b32 s52, s21, 7\n  s_lshl_b32 s12, s22, 4\n  s_add_u32 s52, s52, s12\n  s_add_u32 s52, s52, {WS_CS1}")
    k(f"  v_and_b32 v{ST}, 3, v6\n  v_cmp_eq_u32 s[42:43], 1, v{ST}\n  v_cmp_eq_u32 s[58:59], 2, v{ST}\n  v_cmp_eq_u32 s[78:79], 3, v{ST}\n  v_lshrrev_b32 v{ST}, 2, v6\n  v_cmp_eq_u32 s[56:57], v7, v{ST}")
    k(f"  s_add_u32 s17, s69, {SL_KG1}")
    for j in range(3): k(f"  s_add_u32 s{53+j}, s{62+j}, s17")
    k(f"  s_add_u32 s16, s18, {WS_HO}")
    for j in range(3): k(f"  s_add_u32 s{72+j}, s16, s{48+j}")
    k("  s_getreg_b32 s30, hwreg(HW_REG_XCC_ID, 0, 4)\n  s_or_b32 s30, s30, 0x100")
    k(f"  s_lshl_b32 s75, s19, 7\n  s_add_u32 s75, s75, {WS_XID}\n  s_lshr_b32 s14, s2, 3\n  s_lshl_b32 s14, s14, 2\n  v_mov_b32 v{TMP+2}, s14\n  v_mov_b32 v{TMP+3}, s30")
    k(f"  s_cmp_eq_u32 s3, 0\n  s_cselect_b32 s10, 1, 0\n  s_mov_b32 s11, 0\n  v_and_b32 v89, 31, v2\n  v_lshlrev_b32 v89, 2, v89")
    vm.push("  s_mov_b64 exec, s[10:11]", f"  buffer_store_dword v{TMP+3}, v{TMP+2}, s[36:39], s75 offen sc1\n  s_mov_b64 exec, -1", "I")
    for ks in range(20): vm.push(xadv(ks, 4*OS), f"  buffer_load_dwordx4 v[{XV+4*ks}:{XV+4*ks+3}], v4, s[36:39], s7 offen", f"X1_{ks}")
    for lt in range(5):
        vm.push(None, f"  buffer_load_dwordx4 v[{CS+4*lt}:{CS+4*lt+3}], v{TMP}, s[36:39], s{51 if lt < 4 else 52} offen offset:{(128*(lt>>1) + 16*(lt&1)) if lt < 4 else 0}", "CS")
    for j in range(3):
        w = 4 if j < 2 else 2
        vm.push(None, f"  buffer_load_dwordx{w} v[{HP+4*j}:{HP+4*j+w-1}], v4, s[36:39], s{72+j} offen", "H")
    vm.push(None, f"  buffer_load_dword v{PT+2}, v89, s[36:39], s75 offen sc1", "XID")
    k(f"  s_lshl_b32 s12, s5, 2\n  s_add_u32 s12, s12, s3\n  s_mul_i32 s12, s12, 20\n  v_min_u32 v{PT}, 19, v2\n  v_add_u32 v{PT}, s12, v{PT}")
    k(f"  v_lshrrev_b32 v{PT+1}, 3, v{PT}\n  v_mul_u32_u24 v{PT+1}, {OS}, v{PT+1}\n  v_and_b32 v{PT}, 7, v{PT}\n  v_lshl_add_u32 v{PT}, v{PT}, 7, v{PT+1}")
    k(f"  s_lshl_b32 s12, s4, 10\n  s_add_u32 s12, s12, {WS_HO}")
    k(f"  s_mul_i32 s13, s25, 384\n  s_min_u32 s14, s3, 2\n  s_lshl_b32 s14, s14, 7\n  s_add_u32 s13, s13, s14\n  s_add_u32 s13, s13, {WS_CS3}\n  s_add_u32 s28, s13, 64")
    k(f"  s_mul_i32 s15, s5, 320\n  s_and_b32 s15, s15, 0xffffff80\n  s_lshl_b32 s14, s3, 7\n  s_add_u32 s15, s15, s14\n  s_add_u32 s15, s15, {WS_CS1}\n  s_add_u32 s29, s15, 64")
    k("  s_barrier")
    k("  s_waitcnt lgkmcnt(0)")
    k(f"  s_mov_b32 s36, s32\n  s_mov_b32 s37, s33\n  s_mov_b32 s38, {WS_SPAN}\n  s_mov_b32 s39, 0x00020000")
    if P("G1_CT", 1): vm.issue(f"  buffer_load_dword v{PT+1}, v{PT}, s[36:39], s12 offen sc1", "T")
    k(f"  s_mov_b32 s44, s34\n  s_mov_b32 s45, s35\n  s_mov_b32 s46, {ACT_BYTES}\n  s_mov_b32 s47, 0x00020000")
    if P("FLT", 1):
        k(f"  v_and_b32 v{TMP+4}, 15, v2\n  v_lshrrev_b32 v{TMP+5}, 4, v2\n  v_min_u32 v{TMP+5}, 2, v{TMP+5}\n  v_lshrrev_b32 v{TMP+6}, 1, v{TMP+5}\n  s_lshl_b32 s12, s19, 4\n  v_add_u32 v{TMP+4}, s12, v{TMP+4}\n  v_lshrrev_b32 v{TMP+4}, v{TMP+6}, v{TMP+4}")
        k(f"  v_lshlrev_b32 v{TMP+4}, 7, v{TMP+4}\n  v_lshl_add_u32 v{TMP+4}, v{TMP+5}, 14, v{TMP+4}\n  s_mov_b32 s12, {WS_FL1}")
        vm.issue(f"  buffer_load_dword v{PT+1}, v{TMP+4}, s[36:39], s12 offen sc1", "T")
    vm.upto(1)
    for r in (15, 29, 13, 28): k(f"  s_load_dword s77, s[32:33], s{r}")
    if P("GG_PRIO", 1): k("  s_setprio 2")
    if P("G1_TW", 0): vm.wait("T")
    k("  s_waitcnt lgkmcnt(0)\n  s_mov_b32 s77, 0")
    sp("g1t")
    def pre1(NBS):
        o = [f"  v_cndmask_b32 v{ST+1}, v{GQ}, v{GQ+1}, s[42:43]", f"  v_cndmask_b32 v{ST+1}, v{ST+1}, v{GQ+2}, s[58:59]", f"  v_cndmask_b32 v{ST+1}, v{ST+1}, v{GQ+3}, s[78:79]",
             f"  v_cndmask_b32 v{ST+1}, 0, v{ST+1}, s[56:57]", f"  v_mov_b32 v{ST}, v{GS}"]
        red_q(o, ST+1, ST+2)
        mean_var(o, ST, ST+1)
        ln_s(o, ST, ST+1, MR, ST+3, ST+2)
        o += [f"  v_rcp_f32 v{MR+1}, v{ST+3}", f"  v_sub_f32 v{ST}, v{ST}, v{MR}", f"  v_mul_f32 v{ST}, v{ST}, v{MR+1}", f"  v_mul_f32 v{ST+1}, v{ST+1}, v{MR+1}", f"  v_mul_f32 v{ST+1}, v{ST+1}, v{MR+1}"]
        ln_s(o, ST, ST+1, ST+4, ST+5, ST+2)
        o += [f"  v_fma_f32 v12, -v{ST+4}, v{ST+3}, -v{MR}", f"  v_mul_f32 v15, v{ST+3}, v{ST+5}"]
        gelu_consts(o, 12, ST+2)
        o += [f"  s_lshl_b32 s14, s6, 7\n  s_add_u32 s14, s14, {WS_ST1}",
              hstore(f"  buffer_store_dwordx2 v[{MR}:{MR+1}], v{VS1}, s[36:39], s14 offen", "  s_mov_b64 exec, s[70:71]\n", "\n  s_mov_b64 exec, -1"), "@VWCS"]
        return [(NBS + 3, t) for t in o]
    def epi1(nt, rt, pk):
        D = DR + 2 * (nt & 1)
        return gelu4(ACC + 4*nt, CS + 4*nt, 12, D, pk) + [f"  v_cndmask_b32 v{D}, 0, v{D}, s[60:61]", f"  v_cndmask_b32 v{D+1}, 0, v{D+1}, s[60:61]"]
    def store1(j, rt):
        w = 4 if j < 2 else 2
        return [hstore(f"  buffer_store_dwordx{w} v[{DR}:{DR+w-1}], v{5 if j < 2 else VH}, s[36:39], s{53+j} offen")]
    def extra1(step, inB):
        nt, ks = step
        if inB and nt < 2:
            x = XV + 4*ks
            if nt == 0: return [f"  v_mfma_f32_16x16x32_bf16 v[{GS}:{GS+3}], v[8:11], v[{x}:{x+3}], {'0' if ks == 0 else f'v[{GS}:{GS+3}]'}"]
            return [f"  v_mfma_f32_16x16x32_bf16 v[{GQ}:{GQ+3}], v[{x}:{x+3}], v[{x}:{x+3}], {'0' if ks == 0 else f'v[{GQ}:{GQ+3}]'}"]
        return []
    X1R = lambda rt, ks: f"v[{XV+4*ks}:{XV+4*ks+3}]"
    R8 = list(st.ring)
    st.ring = (R8 + [76, 80, 84, 92, 164, 168])[:P("G1_WR", 14)]
    gemm_phase(1, 0, 5, 1, P("G1_NB", 5), X1R, pre1, epi1, store1, extra1, P("G1_LOOK", 10), P("G1_FPER", 2),
               lambda NBS: spd({2: "g1a", NBS // 2: "g1h", NBS - 1: "g1b"}))
    sp("g1")
    vm.wait("XID")
    k(f"  s_mov_b32 s13, 0\nGG_xr:\n  v_cmp_ne_u32 vcc, 0, v{PT+2}\n  s_cmp_eq_u64 vcc, -1\n  s_cbranch_scc1 GG_xo\n  s_add_u32 s13, s13, 1\n  s_cmp_ge_u32 s13, {SPIN_LIMIT}\n  s_cbranch_scc1 GG_xo")
    k(f"  buffer_load_dword v{PT+2}, v89, s[36:39], s75 offen sc1\n  s_waitcnt vmcnt(0)\n  s_branch GG_xr\nGG_xo:")
    k(f"  v_cmp_eq_u32 vcc, s30, v{PT+2}\n  s_cmp_eq_u64 vcc, -1\n  s_cselect_b32 s75, {0 if os.environ.get('FORCE_SLOW') else 1}, 0")
    publish(1, f"  s_lshl_b32 s12, s6, 7\n  s_lshl_b32 s13, s5, 2\n  s_add_u32 s12, s12, s13\n  s_add_u32 s12, s12, {WS_FL1}")
    k(f"  s_mov_b32 s7, s17\n  s_add_u32 s17, s69, {SL_KG0}")
    xrot_setup(4*KGS, 65)
    for j in range(3): k(f"  s_add_u32 s{54+j}, s17, s{62+j}")
    k(f"  v_lshlrev_b32 v{ST+7}, 3, v6")
    st.t = 8
    st.ring = (R8 + [88, 92, 136, 144])[:P("G2_WR", 14)]
    for ks in range(20): xpush_s(2, ks, 0, XV + 4*ks, 68)
    k(f"  v_lshlrev_b32 v{ST+6}, 5, v7\n  s_mul_i32 s51, s25, 384\n  s_add_u32 s51, s51, {WS_CS3}")
    for nt in range(6): vm.push(None, f"  buffer_load_dwordx4 v[{CS+4*nt}:{CS+4*nt+3}], v{ST+6}, s[36:39], s51 offen offset:{128*(nt>>1) + 16*(nt&1)}", "CS")
    XB = 68
    def before2():
        k(f"  s_mov_b32 s13, 0\nGG_s1:\n  buffer_load_dwordx2 v[{MR}:{MR+1}], v{ST+7}, s[36:39], s14 offen sc1\n  s_waitcnt vmcnt(0)\n  v_cmp_ne_u32 vcc, 0, v{MR+1}\n  s_add_u32 s13, s13, 1")
        k(f"  s_cmp_eq_u64 vcc, -1\n  s_cbranch_scc1 GG_s1o\n  s_cmp_lt_u32 s13, {SPIN_LIMIT}\n  s_cbranch_scc1 GG_s1\nGG_s1o:")
        ls = []
        for i in range(10):
            o = XB + 2*i; r = HP + i; t = TMP + (i & 3)
            ls.append([f"  v_lshlrev_b32 v{o}, 16, v{r}", f"  v_and_b32 v{o+1}, s40, v{r}",
                    f"  v_pk_add_f32 v[{o}:{o+1}], v[{o}:{o+1}], v[{MR}:{MR+1}] op_sel_hi:[1,0] neg_lo:[0,1] neg_hi:[0,1]",
                    f"  v_cvt_pk_bf16_f32 v{t}, v{o}, v{o+1}", f"  v_lshlrev_b32 v{o}, 16, v{t}", f"  v_and_b32 v{o+1}, s40, v{t}",
                    f"  v_pk_mul_f32 v[{o}:{o+1}], v[{o}:{o+1}], v[{MR}:{MR+1}] op_sel:[0,1] op_sel_hi:[1,1]",
                    f"  v_cvt_pk_bf16_f32 v{t}, v{o}, v{o+1}", f"  v_lshlrev_b32 v{o}, 16, v{t}", f"  v_and_b32 v{o+1}, s40, v{t}"])
        for l in ls:
            for x in l: k(x)
        poll(1, f"  s_lshl_b32 s12, s6, 7\n  s_add_u32 s12, s12, {WS_FL1}\n  v_and_b32 v{PT+1}, 7, v2\n  v_lshl_add_u32 v{PT+1}, v{PT+1}, 2, s12")
        sp("s1")
    def epi2(nt, rt, pk):
        a = ACC + 4*nt; D = X1P + 2*nt; ls = []
        for h in range(2):
            t = TMP + 2*h; x = XB + 4*nt + 2*h
            add = [f"  v_pk_add_f32 v[{t}:{t+1}], v[{t}:{t+1}], v[{x}:{x+1}]"] if pk else [f"  v_add_f32 v{t}, v{t}, v{x}", f"  v_add_f32 v{t+1}, v{t+1}, v{x+1}"]
            ls.append([f"  v_cvt_pk_bf16_f32 v{D+h}, v{a+2*h}, v{a+2*h+1}", f"  v_lshlrev_b32 v{t}, 16, v{D+h}", f"  v_and_b32 v{t+1}, s40, v{D+h}"] + add + [f"  v_cvt_pk_bf16_f32 v{D+h}, v{t}, v{t+1}"])
        return zip_lists(*ls)
    def store2(j, rt):
        w = 4 if j < 2 else 2
        return [hstore(f"  buffer_store_dwordx{w} v[{X1P+4*j}:{X1P+4*j+w-1}], v{5 if j < 2 else VH}, s[36:39], s{54+j} offen")]
    gemm_phase(2, 5, 5, 1, P("G2_NB", 5), X1R, lambda NBS: [], epi2, store2, lambda s, b: [], P("G2_LOOK", 10), P("G2_FPER", 2),
               lambda NBS: spd({2: "g2a", NBS // 2: "g2h", NBS - 1: "g2b"}), before=before2)
    for i in range(10):
        k(f"  v_dot2_f32_bf16 v{ST+4}, v{X1P+i}, s41, {'0' if i == 0 else f'v{ST+4}'}\n  v_dot2_f32_bf16 v{ST+5}, v{X1P+i}, v{X1P+i}, {'0' if i == 0 else f'v{ST+5}'}")
    o = []; o2 = []; red_q(o, ST+4, TMP); red_q(o2, ST+5, TMP+1)
    for l in zip_lists(o, o2): k(l)
    k(f"  s_lshl_b32 s14, s68, 10\n  s_lshl_b32 s12, s5, 7\n  s_add_u32 s14, s14, s12\n  s_add_u32 s14, s14, s67\n  s_add_u32 s14, s14, {SL_ST2}\n  v_lshlrev_b32 v{TMP}, 3, v6")
    emit_hs(hstore(f"  buffer_store_dwordx2 v[{ST+4}:{ST+5}], v{TMP}, s[36:39], s14 offen", "  s_mov_b64 exec, 0xffff\n", "\n  s_mov_b64 exec, -1"))
    sp("g2")
    publish(2, f"  s_lshl_b32 s12, s6, 7\n  s_lshl_b32 s13, s5, 2\n  s_add_u32 s12, s12, s13\n  s_add_u32 s12, s12, {WS_FL2}")
    k(f"  s_lshl_b32 s7, s27, 8\n  s_add_u32 s7, s7, s67\n  s_add_u32 s7, s7, {SL_KG0}")
    xrot_setup(4*KGS, 66)
    k(f"  v_lshlrev_b32 v{TMP+1}, 3, v6\n  v_lshl_add_u32 v{TMP+1}, v7, 8, v{TMP+1}\n  s_lshl_b32 s14, s27, 10\n  s_add_u32 s14, s14, s67\n  s_add_u32 s14, s14, {SL_ST2}")
    k(f"  s_mul_i32 s17, s27, {48*1024}\n  s_mul_i32 s12, s25, 3072\n  s_add_u32 s17, s17, s12\n  s_add_u32 s17, s17, s67\n  s_add_u32 s17, s17, {SL_G}\n  s_add_u32 s16, s17, {48*1024}")
    st.ring = R8
    X3R = lambda rt, ks: f"v[{XV+((ks%10)*2+rt)*4}:{XV+((ks%10)*2+rt)*4+3}]"
    for ks in range(20):
        for rt in range(2):
            xpush_s(3, ks, rt, XV + ((ks % 10) * 2 + rt) * 4, 27)
        if ks == 3:
            for rt in range(2):
                for h in range(2): vm.push(None, f"  buffer_load_dwordx2 v[{ST+4*rt+2*h}:{ST+4*rt+2*h+1}], v{TMP+1}, s[36:39], s14 offen offset:{1024*rt+128*h} sc1", "ST")
    CN = [12, AL2]
    def before3():
        poll(2, f"  s_lshl_b32 s12, s26, 7\n  s_add_u32 s12, s12, {WS_FL2}\n  v_and_b32 v{PT+1}, 7, v2\n  v_lshl_add_u32 v{PT+1}, v{PT+1}, 2, s12\n  v_bfe_u32 v{PT}, v2, 3, 1\n  v_lshl_add_u32 v{PT+1}, v{PT}, 7, v{PT+1}")
        sp("s2")
    def pre3(NBS):
        pre = ["@VWST"]
        for rt in range(2):
            b = ST + 4*rt; C = CN[rt]
            pre += [f"  v_add_f32 v{b}, v{b}, v{b+2}", f"  v_add_f32 v{b+1}, v{b+1}, v{b+3}"]
            red_q(pre, b, b+2); red_q(pre, b+1, b+2)
            mean_var(pre, b, b+1)
            ln_s(pre, b, b+1, b+2, C+3, b+3)
            pre += [f"  v_sub_f32 v{C}, 0, v{b+2}"]
            gelu_consts(pre, C, b+3)
        return [(40, t) for t in pre]
    def epi3(nt, rt, pk): return gelu4(ACC + (nt*2+rt)*4, CS + 4*nt, CN[rt], DR + 4*rt + 2*(nt & 1), pk)
    def store3(j, rt):
        if P("G3_SC1", 1): return [f"@ST  buffer_store_dwordx4 v[{DR+4*rt}:{DR+4*rt+3}], v3, s[36:39], s{17-rt} offen offset:{1024*j} sc1"]
        return [hstore(f"  buffer_store_dwordx4 v[{DR+4*rt}:{DR+4*rt+3}], v3, s[36:39], s{17-rt} offen offset:{1024*j}")]
    gemm_phase(3, 10, 6, 2, 6, X3R, pre3, epi3, store3, lambda s, b: [], min(16, P("G3_LOOK", 12)), 2,
               lambda NBS: spd({2: "g3a", NBS // 2: "g3h", NBS - 1: "g3b"}), before=before3)
    sp("g3")
    publish(3, f"  s_lshr_b32 s12, s26, 1\n  s_lshl_b32 s12, s12, 7\n  s_lshl_b32 s13, s25, 2\n  s_add_u32 s12, s12, s13\n  s_add_u32 s12, s12, {WS_FL3}")
    k(f"  s_and_b32 s12, s3, 1\n  s_lshl_b32 s12, s12, 11\n  s_mul_i32 s7, s68, {48*1024}\n  s_add_u32 s7, s7, s67\n  s_add_u32 s7, s7, s12\n  s_add_u32 s7, s7, {SL_G}")
    k(f"  s_xor_b32 s13, s68, 1\n  s_sub_u32 s15, s13, s68\n  s_mul_i32 s15, s15, {48*1024}")
    k(f"  v_add_u32 v8, s12, v3\n  v_add_u32 v9, 0x10000, v8\n  v_add_u32 v10, 0x20000, v8")
    k("  s_lshl_b32 s57, s20, 6\n  s_add_u32 s58, s57, 64\n  s_lshl_b32 s59, s21, 6\n  s_add_u32 s59, s59, s23")
    k("  s_lshl_b32 s12, s6, 4\n  v_add_u32 v11, s12, v6\n  s_movk_i32 s12, 1280\n  v_mul_lo_u32 v11, s12, v11\n  v_lshl_add_u32 v11, v7, 4, v11")
    XSL = SLO(21)
    k(f"  s_mul_i32 s12, s3, 5120\n  s_add_u32 s12, s12, {XSL}\n  v_add_u32 v12, s12, v3\n  s_xor_b32 s13, s3, 1\n  s_mul_i32 s13, s13, 5120\n  s_add_u32 s13, s13, {XSL}\n  v_add_u32 v13, s13, v3")
    st.t = 90
    XLEAD = min(3, P("G4_XLEAD", 3))
    pos = {}
    X4R = lambda c, j, o: XV + ((c % 5) * 4 + 2*j + o) * 4
    def x4(c):
        for j in range(2):
            for o in range(2):
                pre = "  s_add_u32 s31, s31, 1\n  s_cmp_eq_u32 s31, 12\n  s_cselect_b32 s31, 0, s31\n  s_lshl_b32 s11, s31, 12\n  s_add_u32 s11, s11, s7\n  s_add_u32 s14, s11, s15" if (j == 0 and o == 0) else None
                x = X4R(c, j, o)
                vm.push(pre, f"  buffer_load_dwordx4 v[{x}:{x+3}], v3, s[36:39], s{14 if o else 11} offen offset:{j*1024}{XF}", f"X4_{c}_{j}")
    for c in range(XLEAD + 1): x4(c)
    for c in range(12):
        pos[c] = len(vm.q)
        if c + XLEAD + 1 < 12: x4(c + XLEAD + 1)
    pos[12] = len(vm.q)
    steps = [(c, j, nt) for c in range(12) for j in range(2) for nt in range(5)]
    def mfma4(i, w):
        c, j, nt = steps[i]; out = []
        for o in range(2):
            a = ACC + 20*o + 4*nt; x = X4R(c, j, o)
            cc = "0" if (c == 0 and j == 0) else f"v[{a}:{a+3}]"
            out.append(f"  v_mfma_f32_16x16x32_bf16 v[{a}:{a+3}], v[{w}:{w+3}], v[{x}:{x+3}], {cc}")
        return out
    ready4 = {c * 10: 16 + c + 1 for c in range(12)}
    free4 = {c * 10 + 9: 16 + c + 1 for c in range(5)}
    def vt4(i):
        c = i // 10; f = (i % 10 + 1) / 10
        return pos[c] + int(f * (pos[c+1] - pos[c]) + 0.999)
    UX = CS; UH = 120
    fill4 = []
    for i in range(10):
        fill4 += [(20, f"  v_lshlrev_b32 v{UX+2*i}, 16, v{X1P+i}"), (20, f"  v_and_b32 v{UX+2*i+1}, s40, v{X1P+i}"),
                  (20, f"  v_lshlrev_b32 v{UH+2*i}, 16, v{HP+i}"), (20, f"  v_and_b32 v{UH+2*i+1}, s40, v{HP+i}")]
    def before4():
        poll(3, f"  s_lshr_b32 s12, s6, 1\n  s_lshl_b32 s12, s12, 7\n  s_add_u32 s12, s12, {WS_FL3}\n  v_lshl_add_u32 v{PT+1}, v6, 2, s12")
        sp("s3")
        vm.upto(vm.index_of("X4_1_1") + 1)
    st.run(len(steps), mfma4, lambda j: SLO(16 + steps[j][0]) + (steps[j][2] * 4 + steps[j][1]) * 1024, ready4, free4,
           lambda i: f"X4_{steps[i][0]}_{steps[i][1]}" if steps[i][2] == 0 else None, vt4, fill4, lambda i: [], FPER=1, stamps=spd({2: "g4a", 40: "g4b", 80: "g4c"}), bases=(8, 9, 10), hook=before4)
    sp("g4")
    k("  s_barrier")
    for nt in range(5): k(f"  ds_write_b128 v12, v[{ACC+20+4*nt}:{ACC+23+4*nt}] offset:{1024*nt}")
    k("  s_waitcnt lgkmcnt(0)\n  s_barrier")
    for nt in range(5): k(f"  ds_read_b128 v[{WB+4*nt}:{WB+4*nt+3}], v13 offset:{1024*nt}")
    for nt in range(5):
        a = ACC + 4 * nt; ls = []
        k(f"  s_waitcnt lgkmcnt({4-nt})")
        for h in range(2):
            t = 140 + 2*h; D = XV + 2*nt + h; x = UX + 4*nt + 2*h; hh = UH + 4*nt + 2*h
            ls.append([f"  v_pk_add_f32 v[{a+2*h}:{a+2*h+1}], v[{a+2*h}:{a+2*h+1}], v[{WB+4*nt+2*h}:{WB+4*nt+2*h+1}]", f"  v_cvt_pk_bf16_f32 v{D}, v{a+2*h}, v{a+2*h+1}", f"  v_lshlrev_b32 v{t}, 16, v{D}", f"  v_and_b32 v{t+1}, s40, v{D}",
             f"  v_pk_add_f32 v[{t}:{t+1}], v[{t}:{t+1}], v[{x}:{x+1}]",
             f"  v_cvt_pk_bf16_f32 v{D}, v{t}, v{t+1}", f"  v_lshlrev_b32 v{t}, 16, v{D}", f"  v_and_b32 v{t+1}, s40, v{D}",
             f"  v_pk_add_f32 v[{t}:{t+1}], v[{t}:{t+1}], v[{hh}:{hh+1}]", f"  v_cvt_pk_bf16_f32 v{D}, v{t}, v{t+1}"])
        for l in zip_lists(*ls): k(l)
        if nt in (1, 3): k(f"  buffer_store_dwordx4 v[{XV+2*nt-2}:{XV+2*nt+1}], v11, s[44:47], s{57+(nt>>1)} offen")
        if nt == 4: k(f"  buffer_store_dwordx2 v[{XV+2*nt}:{XV+2*nt+1}], v11, s[44:47], s59 offen")
    k.stamp_out(1)
    k("  s_endpgm")
    k("GG_loader:")
    k(f"  s_sub_u32 s3, s3, 4\n  s_mul_i32 s9, s3, 5120\n  s_lshl_b32 s12, s3, 2\n  s_add_u32 s12, s12, {FLG}\n  v_mov_b32 v12, s12\n  v_mov_b32 v8, 0\n  ds_write_b32 v12, v8\n  ds_write_b32 v12, v8 offset:16\n  s_waitcnt lgkmcnt(0)\n  s_barrier")
    if P("FAKEW", 0): k("  s_mov_b32 s5, 0\n  s_mov_b32 s25, 0")
    k(f"  s_mul_i32 s8, s5, {5*SLOT}\n  s_mul_i32 s12, s65, {5*5120}\n  s_add_u32 s12, s12, s9\n  s_add_u32 s12, s12, s8")
    k(f"  s_add_u32 s20, s12, {WS_W1P}\n  s_add_u32 s21, s12, {WS_W2P}\n  s_add_u32 s28, s8, {WS_W1P + 5*SLOT}\n  s_add_u32 s29, s8, {WS_W2P + 5*SLOT}")
    k(f"  s_mul_i32 s8, s25, {6*SLOT}\n  s_mul_i32 s12, s66, {6*5120}\n  s_add_u32 s12, s12, s9\n  s_add_u32 s12, s12, s8\n  s_add_u32 s22, s12, {WS_W3P}\n  s_add_u32 s30, s8, {WS_W3P + 6*SLOT}")
    k(f"  s_mul_i32 s8, s5, {12*SLOT}\n  s_mul_i32 s12, s74, {SLOT}\n  s_add_u32 s12, s12, s9\n  s_add_u32 s12, s12, s8\n  s_add_u32 s23, s12, {WS_W4P}\n  s_add_u32 s31, s8, {WS_W4P + 12*SLOT}")
    k(f"  s_add_u32 s16, s9, {NSL*SLOT}")
    k(f"  s_mov_b32 s36, s32\n  s_mov_b32 s37, s33\n  s_mov_b32 s38, {WS_SPAN}\n  s_mov_b32 s39, 0x00020000")
    k(f"  s_mov_b32 s10, s20\n  s_mov_b32 s17, s28\n  s_mov_b32 s18, {5*SLOT}\n  s_mov_b32 s11, s9\n  s_mov_b32 s12, 0")
    chk = f"  ds_read_b128 v[8:11], v{VFL} offset:16\n  s_waitcnt lgkmcnt(0)\n  v_min_u32 v8, v8, v9\n  v_min3_u32 v8, v8, v10, v11\n  v_readfirstlane_b32 s13, v8\n  s_add_u32 s76, s76, 1\n  s_cmp_ge_u32 s13, s15\n  s_cbranch_scc1 GG_ld_go"
    if LSTAMP: k("  v_mov_b32 v20, 0\n  v_mov_b32 v21, 0\n  v_mov_b32 v22, 0")
    k("  s_mov_b32 s13, 0")
    k("GG_ld:")
    k(f"  s_add_u32 s15, s13, {NSL}\n  s_cmp_lt_u32 s12, s15\n  s_cbranch_scc1 GG_ld_go")
    k(f"  s_sub_u32 s15, s12, {NSL-1}")
    k(chk)
    k("  s_waitcnt vmcnt(0)\n  v_mov_b32 v14, s12\n  ds_write_b32 v12, v14")
    if LSTAMP: k("  s_memtime s[40:41]\n  s_waitcnt lgkmcnt(0)\n  s_sub_u32 s40, s40, s80\n  v_mov_b32 v24, s40\n  v_cmp_eq_u32 vcc, s12, v2\n  v_cndmask_b32 v22, v22, v24, vcc")
    k("GG_ld_sp:")
    k("  s_sleep 1")
    k(chk + f"\n  s_cmp_lt_u32 s76, {LDS_SPIN}\n  s_cbranch_scc1 GG_ld_sp")
    k("GG_ld_go:")
    if LSTAMP: k("  s_memtime s[40:41]\n  s_waitcnt lgkmcnt(0)\n  s_sub_u32 s40, s40, s80\n  v_mov_b32 v24, s40\n  v_cmp_eq_u32 vcc, s12, v2\n  v_cndmask_b32 v20, v20, v24, vcc")
    k("  s_mov_b32 m0, s11\n  s_add_u32 s14, s10, 4096")
    for i in range(4): k(f"  buffer_load_dwordx4 v3, s[36:39], s10 offen offset:{1024*i} lds")
    k("  s_add_u32 m0, s11, 4096\n  v_mov_b32 v14, s12\n  buffer_load_dwordx4 v3, s[36:39], s14 offen lds")
    k("  s_waitcnt vmcnt(5)\n  ds_write_b32 v12, v14")
    k(f"  s_add_u32 s12, s12, 1\n  s_add_u32 s11, s11, {SLOT}\n  s_cmp_eq_u32 s11, s16\n  s_cselect_b32 s11, s9, s11")
    k(f"  s_add_u32 s10, s10, {SLOT}\n  s_sub_u32 s14, s10, s18\n  s_cmp_ge_u32 s10, s17\n  s_cselect_b32 s10, s14, s10")
    for j, ph, size in ((5, 1, 5), (10, 2, 6), (16, 3, 12)):
        k(f"  s_cmp_eq_u32 s12, {j}\n  s_cselect_b32 s10, s{20+ph}, s10\n  s_cselect_b32 s17, s{28+ph}, s17\n  s_cselect_b32 s18, {size*SLOT}, s18")
    k("  s_cmp_lt_u32 s12, 28\n  s_cbranch_scc1 GG_ld")
    k("  s_waitcnt vmcnt(0)\n  v_mov_b32 v14, 28\n  ds_write_b32 v12, v14\n  s_waitcnt lgkmcnt(0)")
    if LSTAMP:
        k("  s_cmp_lg_u32 s3, 0\n  s_cbranch_scc1 GG_done\n  s_lshl_b32 s40, s2, 10\n  s_add_u32 s40, s40, 0x2c00000\n  v_lshl_add_u32 v23, v2, 2, s40")
        k("  global_store_dword v23, v20, s[32:33]\n  global_store_dword v23, v21, s[32:33] offset:256\n  global_store_dword v23, v22, s[32:33] offset:512")
    k("GG_done:\n  s_endpgm")
    L = k.lines; il = L.index("GG_loader:"); ib = [i for i, x in enumerate(L) if "s_cbranch_scc1 GG_loader" in x][0]
    L[ib] = L[ib].replace("s_cbranch_scc1 GG_loader", "s_cbranch_scc0 GG_comp")
    k.lines = L[:ib+1] + L[il:] + ["GG_comp:"] + L[ib+1:il]
    return k
```

```python
from asmfw import K
from layout import *
from k_common import *
import os
LOG2E = "0x3fb8aa3b"
CST = 4160; UOFF = 4 * CST; DREG = UOFF + 4608
RB = 4 * DREG; WREG = 8704; TBL = RB + 8 * WREG; TBS = 32 * TCS + 16
PC_LDS = TBL + 4 * TBS
SPIN = 400000
PKF = os.environ.get('PKF', ' sc1')
PFL = os.environ.get('PFL', 'sc1')
TOUCH = {'12': ((WS_W1P, 50), (WS_W2P, 50)), '321': ((WS_W3P, 120), (WS_W2P, 50), (WS_W1P, 50)), '1': ((WS_W1P, 50),)}[os.environ.get('NTOUCH', '12')]
N_LN = 64; PK_FIRST = 440 if len(TOUCH) == 3 else 200

def cmul(k, d, x, w):
    k(f"  v_pk_mul_f32 v[{d}:{d+1}], v[{x}:{x+1}], v[{w}:{w+1}] op_sel:[0,0] op_sel_hi:[1,0]")
    k(f"  v_pk_fma_f32 v[{d}:{d+1}], v[{x}:{x+1}], v[{w}:{w+1}], v[{d}:{d+1}] op_sel:[1,1,0] op_sel_hi:[0,1,1] neg_lo:[1,0,0]")

def gen_pc():
    k = K("pc_kernel", 256, 512, PC_LDS, vgpr=256, sgpr=80)
    def poll_dbg(lbl, off, val, vt=250):
        k(f"  v_mov_b32 v{vt}, {off}\n  s_mov_b32 s78, 0\n  s_mov_b64 exec, 1\n{lbl}:\n  global_load_dword v{vt+1}, v{vt}, s[34:35] {PFL}\n  s_waitcnt vmcnt(0)\n  v_readfirstlane_b32 s79, v{vt+1}\n  s_add_u32 s78, s78, 1")
        k(f"  s_cmp_ge_u32 s79, {val}\n  s_cbranch_scc1 {lbl}_ok\n  s_sleep 16\n  s_cmp_lt_u32 s78, {SPIN}\n  s_cbranch_scc1 {lbl}\n{lbl}_ok:\n  s_mov_b64 exec, -1")
    def add_dbg(off, val, vt=250):
        k(f"  v_mov_b32 v{vt}, {off}\n  v_mov_b32 v{vt+1}, {val}\n  s_mov_b64 exec, 1\n  global_atomic_add v{vt}, v{vt+1}, s[34:35] sc1\n  s_mov_b64 exec, -1")
    k("  s_cmp_ge_u32 s2, 256\n  s_cbranch_scc1 F_done")
    k.stamp(0); k.stamp(7, True)
    k("  s_load_dwordx16 s[16:31], s[0:1], 0")
    k(f"  s_load_dwordx4 s[32:35], s[0:1], {KA_DBG}")
    k(f"  s_load_dwordx8 s[48:55], s[0:1], {KA_W1}\n  s_load_dwordx2 s[56:57], s[0:1], {KA_DSK}")
    k("  v_lshrrev_b32 v1, 6, v0\n  v_and_b32 v2, 63, v0\n  v_readfirstlane_b32 s3, v1\n  v_lshlrev_b32 v3, 4, v2")
    k("  s_mov_b32 s40, 0xffff0000")
    def after_kernarg():
        k("  s_waitcnt lgkmcnt(0)")
        k("  s_mov_b64 s[36:37], s[34:35]\n  s_mov_b64 s[34:35], s[32:33]\n  s_mov_b64 s[32:33], s[36:37]")
        k(f"  s_mov_b32 s38, {WS_SPAN}\n  s_mov_b32 s39, 0x00020000")
    k("  s_cmp_ge_u32 s2, 160\n  s_cbranch_scc1 F_aux")
    k("  s_and_b32 s4, s2, 7\n  s_mul_i32 s4, s4, 20\n  s_lshr_b32 s5, s2, 3\n  s_add_u32 s4, s4, s5\n  s_lshl_b32 s4, s4, 2")
    k("  s_and_b32 s58, s3, 3\n  s_lshr_b32 s59, s3, 2\n  s_add_u32 s5, s4, s58")
    k(f"  s_mul_i32 s6, s58, {DREG}\n  s_mul_i32 s11, s3, {WREG}\n  s_add_u32 s11, s11, {RB}")
    k(f"  s_and_b32 s60, s2, 7\n  s_mul_i32 s61, s60, {SLAB}")
    k(f"  s_mul_i32 s10, s58, {TBS}\n  s_add_u32 s65, s10, {TBL}\n  v_mov_b32 v134, s65\n  v_mov_b32 v96, 0\n  v_mov_b32 v97, 0\n  ds_write_b64 v134, v[96:97] offset:{32*TCS}")
    k("  s_getpc_b64 s[8:9]\nF_pc:\n  s_add_u32 s8, s8, F_tab-F_pc\n  s_addc_u32 s9, s9, 0")
    k("  s_cmp_lg_u32 s59, 0\n  s_cbranch_scc1 F_nt")
    for it in range(4):
        k(f"  global_load_dwordx4 v[{176+6*it}:{179+6*it}], v3, s[8:9] offset:{1024*it}\n  global_load_dwordx2 v[{180+6*it}:{181+6*it}], v3, s[8:9] offset:{1024*it+16}")
    k("F_nt:")
    k("  s_mul_i32 s7, s5, 384\n  s_lshl_b32 s10, s59, 8\n  s_add_u32 s7, s7, s10\n  v_lshl_add_u32 v5, v2, 1, s7")
    k("  v_lshl_add_u32 v6, v2, 2, s11")
    k("  v_and_b32 v7, 31, v2\n  v_mul_u32_u24 v7, 272, v7\n  v_lshrrev_b32 v8, 5, v2\n  v_lshl_add_u32 v7, v8, 4, v7\n  v_add_u32 v7, s11, v7")
    k(f"  v_and_b32 v130, 31, v2\n  v_mul_u32_u24 v130, {TCS}, v130\n  v_lshl_add_u32 v130, v8, 3, v130\n  v_add_u32 v130, s65, v130")
    k(f"  s_add_u32 s10, s58, 4\n  s_mul_i32 s10, s10, {WREG}\n  s_add_u32 s10, s10, {RB}\n  v_add_u32 v131, s10, v3")
    k("  s_lshr_b32 s12, s5, 1\n  s_lshl_b32 s12, s12, 2\n  s_and_b32 s13, s5, 1\n  s_lshl_b32 s13, s13, 4")
    k("  v_and_b32 v4, 255, v0\n  v_lshlrev_b32 v4, 4, v4\n  s_lshl_b32 s10, s4, 1\n  v_mul_u32_u24 v133, 160, v4\n  v_add_u32 v133, s10, v133")
    after_kernarg()
    k("  s_barrier")
    k.stamp(1)
    for i, sb in enumerate((18, 20, 22, 24, 26, 28)): k(f"  global_load_ushort v{112+i}, v5, s[{sb}:{sb+1}]")
    k("  s_load_dword s14, s[30:31], s12\n  s_load_dwordx2 s[62:63], s[56:57], s10")
    k("  s_cmp_lg_u32 s59, 0\n  s_cbranch_scc1 F_hg")
    for i, sb in enumerate((18, 20, 22, 24, 26, 28)): k(f"  global_load_ushort v{118+i}, v5, s[{sb}:{sb+1}] offset:128")
    k("  s_waitcnt vmcnt(12)")
    for it in range(4):
        for i in range(11):
            src = 176 + 6*it + (i >> 1)
            k(f"  v_lshrrev_b32 v{200+11*it+i}, 16, v{src}" if i & 1 else f"  v_and_b32 v{200+11*it+i}, 0xffff, v{src}")
            k(f"  v_add_u32 v{200+11*it+i}, s65, v{200+11*it+i}")
    k("  s_waitcnt vmcnt(0)\n  s_branch F_hj")
    k("F_hg:")
    for i in range(4):
        for r in range(2): k(f"  global_load_dwordx2 v[{176+4*i+2*r}:{177+4*i+2*r}], v133, s[16:17] offset:{1280*r}")
        if i < 3: k(f"  v_add_u32 v133, {512*1280}, v133")
    k("  s_waitcnt vmcnt(8)")
    k("F_hj:")
    for i in range(2, 16): k(f"  v_mov_b32 v{96+i}, 0")
    k("  s_waitcnt lgkmcnt(0)")
    k("  s_lshr_b32 s14, s14, s13\n  s_lshl_b32 s14, s14, 16")
    k(f"  v_mov_b32 v9, {LOG2E}\n  v_mul_f32 v9, s14, v9\n  v_exp_f32 v9, v9\n  v_cvt_pk_bf16_f32 v9, v9, v9\n  v_lshlrev_b32 v132, 16, v9")
    k("  s_mov_b32 s15, s59")
    k.stamp(2)
    k("F_unit:")
    for i in range(6): k(f"  v_lshlrev_b32 v{10+i}, 16, v{112+i}")
    for i in range(6): k(f"  v_mov_b32 v{112+i}, v{118+i}")
    k("  v_mul_f32 v10, v132, v10\n  v_mul_f32 v11, v132, v11\n  v_mul_f32 v12, v132, v12\n  v_mul_f32 v13, v132, v13")
    k(f"  v_mul_f32 v10, {LOG2E}, v10\n  v_mul_f32 v11, 0.15915494, v11")
    for dst, e in ((16, None), (18, "0x41000000"), (20, "0x43800000")):
        if e is None: k(f"  v_exp_f32 v22, v10\n  v_fract_f32 v23, v11")
        else: k(f"  v_mul_f32 v22, {e}, v10\n  v_mul_f32 v23, {e}, v11\n  v_exp_f32 v22, v22\n  v_fract_f32 v23, v23")
        k(f"  v_cos_f32 v{dst}, v23\n  v_sin_f32 v{dst+1}, v23")
        k(f"  v_mul_f32 v{dst}, v22, v{dst}\n  v_mul_f32 v{dst+1}, v22, v{dst+1}")
    cmul(k, 24, 14, 12)
    def put(reg, row, neg):
        k(f"  v_cvt_pk_bf16_f32 v9, v{reg}, {'-' if neg else ''}v{reg+1}\n  ds_write_b32 v6, v9 offset:{row*272}")
    put(24, 0, True)
    for r in range(1, 8):
        cmul(k, 24 + 2*r, 24 + 2*(r-1), 16); put(24 + 2*r, r, True)
    for i, r in enumerate((0, 2, 4, 6)):
        cmul(k, 40 + 2*i, 24 + 2*r, 20); put(40 + 2*i, 8 + i, True)
    cmul(k, 48, 40, 20); put(48, 12, True)
    cmul(k, 50, 44, 20); put(50, 13, True)
    cmul(k, 52, 48, 20); put(52, 14, True)
    cmul(k, 54, 50, 20); put(54, 15, True)
    prev = 52
    for i in range(5):
        dst = 24 + 2*i
        cmul(k, dst, prev, 20); put(dst, 16 + i, True); prev = dst
    k("  s_waitcnt lgkmcnt(0)")
    for s in range(8): k(f"  ds_read_b128 v[{136+4*s}:{139+4*s}], v7 offset:{32*s}")
    k("  v_mov_b32 v9, 0x3f80\n  ds_write_b32 v6, v9 offset:0")
    put(18, 1, False)
    prev = 18
    for j in range(2, 32):
        dst = 24 + 2*(j & 1)
        cmul(k, dst, prev, 18); put(dst, j, False); prev = dst
    k("  s_waitcnt lgkmcnt(0)")
    for s in range(8): k(f"  ds_read_b128 v[{56+4*s}:{59+4*s}], v7 offset:{32*s}")
    for s in range(8):
        k(f"  s_waitcnt lgkmcnt({7-s})")
        k(f"  v_mfma_f32_32x32x16_bf16 v[96:111], v[{136+4*s}:{139+4*s}], v[{56+4*s}:{59+4*s}], v[96:111]")
    k("  s_add_u32 s15, s15, 1\n  s_cmp_lt_u32 s15, 2\n  s_cbranch_scc1 F_unit")
    k("  s_cmp_lg_u32 s59, 0\n  s_cbranch_scc1 F_help")
    k("  s_mov_b32 s78, 0")
    k(f"F_pw:\n  ds_read_b32 v9, v134 offset:{32*TCS+4}\n  s_add_u32 s78, s78, 1\n  s_waitcnt lgkmcnt(0)\n  v_readfirstlane_b32 s79, v9\n  s_cmp_lg_u32 s79, 0\n  s_cbranch_scc1 F_po\n  s_cmp_lt_u32 s78, {1<<23}\n  s_cbranch_scc1 F_pw\nF_po:")
    for g in range(3): k(f"  ds_read_b128 v[{16+4*g}:{19+4*g}], v131 offset:{1024*g}")
    k("  s_waitcnt lgkmcnt(0)")
    for g in range(6): k(f"  v_pk_add_f32 v[{96+2*g}:{97+2*g}], v[{96+2*g}:{97+2*g}], v[{16+2*g}:{17+2*g}]")
    for g in range(3):
        k(f"  v_cvt_pk_bf16_f32 v{10+2*g}, v{96+4*g}, v{97+4*g}\n  v_cvt_pk_bf16_f32 v{11+2*g}, v{98+4*g}, v{99+4*g}\n  ds_write_b64 v130, v[{10+2*g}:{11+2*g}] offset:{16*g}")
    k("  v_add_u32 v52, s6, v3")
    k(f"  v_bfe_u32 v16, v2, 1, 2\n  v_mul_u32_u24 v16, {CST}, v16\n  v_and_b32 v17, 1, v2\n  v_lshl_add_u32 v16, v17, 4, v16\n  v_add_u32 v16, s6, v16")
    k("  v_mov_b32 v20, 0\n  v_mov_b32 v21, 0\n  v_mov_b32 v22, 0\n  v_mov_b32 v23, 0\n  ds_write_b128 v16, v[20:23] offset:4096")
    k.stamp(3)
    k("  s_waitcnt lgkmcnt(0)")
    def ex_reads(it):
        for i in range(11): k(f"  ds_read_u16 v{56+12*(it&1)+i}, v{200+11*it+i}")
    ex_reads(0)
    for it in range(4):
        if it < 3: ex_reads(it + 1)
        k(f"  s_waitcnt lgkmcnt({11 if it < 3 else 0})")
        V = 56 + 12*(it & 1)
        for sg, st in ((3, 0), (2, 1), (1, 2), (0, 3)):
            O = 80 + 4*sg
            for j in range(4): k(f"  v_lshl_or_b32 v{O+j}, v{V+st+2*j+1}, 16, v{V+st+2*j}")
            k(f"  ds_write_b128 v52, v[{O}:{O+3}] offset:{1024*it + sg*CST}")
    k.stamp(4)
    k("  v_and_b32 v6, 15, v2\n  v_lshrrev_b32 v7, 4, v2")
    k(f"  v_and_b32 v8, 3, v6\n  v_mul_u32_u24 v8, {CST}, v8\n  v_lshrrev_b32 v9, 2, v6\n  v_lshlrev_b32 v9, 3, v9\n  v_sub_u32 v8, v8, v9\n  v_lshl_add_u32 v8, v7, 4, v8\n  v_add_u32 v8, {24+384}, v8\n  v_add_u32 v12, s6, v8")
    k(f"  v_lshlrev_b32 v8, 5, v6\n  v_lshl_add_u32 v8, v7, 4, v8\n  v_add_u32 v8, {UOFF+32+384}, v8\n  v_add_u32 v13, s6, v8")
    k(f"  s_lshl_b32 s10, s58, 12\n  s_add_u32 s10, s10, {RB}\n  v_lshlrev_b32 v8, 5, v6\n  v_lshl_add_u32 v8, v7, 3, v8\n  v_add_u32 v14, s10, v8")
    for i in range(32): k(f"  v_mov_b32 v{16+i}, 0")
    k("  s_waitcnt lgkmcnt(0)\n  s_barrier")
    k.stamp(5)
    SETS = ((48, 80), (112, 144))
    def reads(st, extra):
        A, B = SETS[st]; out = []
        for n in range(8):
            off = 512 * (7 - n) + 64 - extra
            out.append(f"  ds_read_b64 v[{A+4*n}:{A+4*n+1}], v12 offset:{off}")
            out.append(f"  ds_read_b64 v[{A+4*n+2}:{A+4*n+3}], v12 offset:{off+8}")
            out.append(f"  ds_read_b128 v[{B+4*n}:{B+4*n+3}], v13 offset:{512*n + 64 - extra}")
        return out
    def mfmas(st):
        A, B = SETS[st]; out = []
        for J in range(8):
            for n in range(J + 1):
                m = J - n
                out.append(f"  v_mfma_f32_16x16x32_bf16 v[{16+4*J}:{19+4*J}], v[{A+4*n}:{A+4*n+3}], v[{B+4*m}:{B+4*m+3}], v[{16+4*J}:{19+4*J}]")
        return out
    def inter(mf, rd):
        out = []
        for i, m in enumerate(mf):
            out.append(m)
            if i < len(rd): out.append(rd[i])
        return out
    k("  s_setprio 3")
    for l in reads(0, 0): k(l)
    k("  s_mov_b32 s15, 0")
    k("F_loop:")
    k("  s_waitcnt lgkmcnt(0)")
    for l in inter(mfmas(0), reads(1, 64)): k(l)
    k("  v_subrev_u32 v12, 128, v12\n  v_subrev_u32 v13, 128, v13")
    k("  s_waitcnt lgkmcnt(0)")
    k("  s_cmp_eq_u32 s15, 3\n  s_cbranch_scc1 F_last")
    for l in inter(mfmas(1), reads(0, 0)): k(l)
    k("  s_add_u32 s15, s15, 1\n  s_branch F_loop")
    k("F_last:")
    for l in mfmas(1): k(l)
    k.stamp(6)
    for J in range(8):
        k(f"  v_cvt_pk_bf16_f32 v{48+2*J}, v{16+4*J}, v{17+4*J}\n  v_cvt_pk_bf16_f32 v{49+2*J}, v{18+4*J}, v{19+4*J}")
        k(f"  ds_write_b64 v14, v[{48+2*J}:{49+2*J}] offset:{512*J}")
    k("  s_waitcnt lgkmcnt(0)\n  s_barrier")
    k("  s_branch F_fin")
    k("F_help:")
    k("  v_mov_b32 v252, 0\n  s_mov_b64 exec, 1\n  global_load_dword v253, v252, s[34:35] sc1\n  s_mov_b64 exec, -1")
    k(f"  v_and_b32 v9, 0x1f0, v3\n  v_add_u32 v9, s6, v9")
    k(f"  v_mov_b32 v12, 0\n  v_mov_b32 v13, 0\n  v_mov_b32 v14, 0\n  v_mov_b32 v15, 0\n  ds_write_b128 v9, v[12:15] offset:{UOFF}\n  s_nop 7")
    for g in range(3): k(f"  ds_write_b128 v131, v[{96+4*g}:{99+4*g}] offset:{1024*g}")
    k(f"  v_mov_b32 v9, 1\n  s_waitcnt lgkmcnt(0)\n  ds_write_b32 v134, v9 offset:{32*TCS+4}")
    k(f"  s_waitcnt vmcnt(0)\n  v_readfirstlane_b32 s79, v253\n  s_cmp_ge_u32 s79, {N_LN}\n  s_cbranch_scc1 F_st")
    poll_dbg("F_pl1", 0, N_LN)
    k("F_st:")
    k.stamp(1)
    k(f"  s_mov_b32 s10, {WS_ST0}")
    for i in range(4): k(f"  buffer_load_dwordx4 v[{192+4*i}:{195+4*i}], v4, s[36:39], s10 offen sc1\n  s_add_u32 s10, s10, 4096")
    for i in range(16): k(f"  v_lshlrev_b32 v{64+2*i}, 16, v{176+i}\n  v_and_b32 v{65+2*i}, s40, v{176+i}")
    k(f"  v_lshrrev_b32 v5, 2, v4\n  v_add_u32 v6, {UOFF+512}, v5\n  v_add_u32 v7, {2*DREG}, v6\n  v_add_u32 v5, {RB}, v5\n  v_lshlrev_b32 v8, 1, v4")
    k("  s_lshl_b32 s66, s62, 16\n  s_and_b32 s67, s62, s40\n  s_lshl_b32 s68, s63, 16\n  s_and_b32 s69, s63, s40\n  s_mov_b32 s41, 0x07060302")
    k("  s_waitcnt vmcnt(0)")
    k.stamp(2)
    for i in range(4):
        for r in range(2):
            o = 96 + 8*i + 4*r; x = 64 + 8*i + 4*r; st = 192 + 4*i + 2*r
            for h in range(2):
                a = o + 2*h
                k(f"  v_pk_add_f32 v[{a}:{a+1}], v[{x+2*h}:{x+2*h+1}], v[{st}:{st+1}] op_sel_hi:[1,0] neg_lo:[0,1] neg_hi:[0,1]\n  v_cvt_pk_bf16_f32 v9, v{a}, v{a+1}\n  v_lshlrev_b32 v{a}, 16, v9\n  v_and_b32 v{a+1}, s40, v9")
                k(f"  v_pk_mul_f32 v[{a}:{a+1}], v[{a}:{a+1}], v[{st}:{st+1}] op_sel:[0,1] op_sel_hi:[1,1]")
        for w in range(4):
            k(f"  v_cvt_pk_bf16_f32 v{48+4*i+w}, v{96+8*i+w}, v{100+8*i+w}\n  ds_write_b32 v{6 + (w >> 1)}, v{48+4*i+w} offset:{(w & 1)*DREG + 1024*i}")
    k.stamp(3)
    for i in range(4):
        for r in range(2):
            o = 96 + 8*i + 4*r
            for w in range(4): k(f"  v_and_b32 v{o+w}, s40, v{48+4*i+w}" if r else f"  v_lshlrev_b32 v{o+w}, 16, v{48+4*i+w}")
            for h in range(2):
                k(f"  v_mul_f32 v{o+2*h}, s{66+2*h}, v{o+2*h}\n  v_mul_f32 v{o+2*h+1}, s{67+2*h}, v{o+2*h+1}\n  v_cvt_pk_bf16_f32 v9, v{o+2*h}, v{o+2*h+1}\n  v_lshlrev_b32 v{o+2*h}, 16, v9\n  v_and_b32 v{o+2*h+1}, s40, v9")
    k("  s_waitcnt lgkmcnt(0)\n  s_barrier")
    k.stamp(5)
    k(f"  s_lshr_b32 s64, s4, 3\n  s_mul_i32 s64, s64, {OS}\n  s_add_u32 s64, s64, {WS_HO}")
    k("  s_and_b32 s10, s4, 4\n  s_add_u32 s10, s10, s58\n  s_lshl_b32 s10, s10, 12\n  s_add_u32 s10, s10, s64\n  v_and_b32 v9, 31, v2\n  v_lshlrev_b32 v9, 7, v9")
    k("  buffer_load_dword v16, v9, s[36:39], s10 offen")
    k("  s_and_b32 s10, s4, 4\n  s_lshl_b32 s10, s10, 1\n  s_add_u32 s64, s64, s10")
    k("  s_cmp_ge_u32 s2, 120\n  s_cbranch_scc1 F_np")
    k(f"  s_lshl_b32 s75, s2, 2\n  s_add_u32 s75, s75, s58\n  s_mov_b32 s46, {640*1536*2}\n  s_mov_b32 s47, 0x00020000\n  s_cmp_lt_u32 s75, 240\n  s_cbranch_scc0 F_c4")
    k(f"  s_mov_b32 s44, s52\n  s_mov_b32 s45, s53\n  s_mov_b32 s8, {WS_W3P}\n  s_movk_i32 s6, 3072\n  s_mov_b32 s12, 0\n  s_movk_i32 s13, 2731\n  s_mov_b32 s15, 24\n  s_mov_b32 s9, 122880\n  s_movk_i32 s10, 1024\n  s_movk_i32 s7, 24576\n  s_movk_i32 s41, 6144\n  s_mov_b32 s42, 6\n  s_movk_i32 s43, 171\n  s_branch F_cgo")
    k("F_c4:")
    k(f"  s_mov_b32 s44, s54\n  s_mov_b32 s45, s55\n  s_sub_u32 s75, s75, 240\n  s_mov_b32 s8, {WS_W4P}\n  s_movk_i32 s6, 1280\n  s_mov_b32 s12, 1\n  s_movk_i32 s13, 6554\n  s_mov_b32 s15, 10\n  s_mov_b32 s9, 245760\n  s_movk_i32 s10, 4096\n  s_movk_i32 s7, 20480\n  s_movk_i32 s41, 1024\n  s_mov_b32 s42, 5\n  s_movk_i32 s43, 205")
    k("F_cgo:")
    k(f"  s_mul_i32 s11, s75, s13\n  s_lshr_b32 s11, s11, 16\n  s_mul_i32 s13, s11, s15\n  s_sub_u32 s5, s75, s13\n  s_lshl_b32 s72, s58, 13\n  s_add_u32 s72, s72, {RB + 16384}")
    pack_load(k, 72, va=244, vb=245, vc=246, vd=247, so=66)
    k("  s_waitcnt vmcnt(0)")
    pack_store(k, PKF, vb=245, vc=246, vd=247, so=66, R=144)
    k("F_np:")
    k("  s_barrier")
    k.stamp(6)
    for i in range(4):
        for w in range(4): k(f"  ds_read_b32 v{48+4*i+w}, v5 offset:{4096*w + 1024*i}")
    for i in range(4):
        k(f"  s_waitcnt lgkmcnt({12-4*i})")
        for r in range(2):
            o = 128 + 4*r; u = 96 + 8*i + 4*r; x = 64 + 8*i + 4*r; d = 136 + 4*i + 2*r
            for w in range(4): k(f"  v_and_b32 v{o+w}, s40, v{48+4*i+w}" if r else f"  v_lshlrev_b32 v{o+w}, 16, v{48+4*i+w}")
            for h in range(2):
                a = o + 2*h
                k(f"  v_pk_add_f32 v[{a}:{a+1}], v[{a}:{a+1}], v[{u+2*h}:{u+2*h+1}]\n  v_cvt_pk_bf16_f32 v9, v{a}, v{a+1}\n  v_lshlrev_b32 v{a}, 16, v9\n  v_and_b32 v{a+1}, s40, v9")
                k(f"  v_pk_add_f32 v[{a}:{a+1}], v[{a}:{a+1}], v[{x+2*h}:{x+2*h+1}]\n  v_cvt_pk_bf16_f32 v{d+h}, v{a}, v{a+1}")
            k(f"  buffer_store_dwordx2 v[{d}:{d+1}], v8, s[36:39], s64 offen offset:{16*r}")
        k("  s_add_u32 s64, s64, 8192")
    k.stamp(4)
    k("  s_branch F_fin")
    k("F_aux:")
    k("  s_sub_u32 s72, s2, 160")
    k(f"  s_cmp_ge_u32 s72, {N_LN}\n  s_cbranch_scc1 F_pk0")
    US = 1344
    k("  s_and_b32 s5, s72, 7\n  s_lshl_b32 s5, s5, 3\n  s_lshr_b32 s4, s72, 3\n  s_add_u32 s4, s4, s5")
    k("  v_lshrrev_b32 v4, 4, v0\n  v_and_b32 v5, 15, v0")
    k("  v_mul_u32_u24 v6, 1280, v4\n  v_lshl_add_u32 v6, v5, 4, v6\n  s_mul_i32 s5, s4, 40960\n  v_add_u32 v6, s5, v6")
    after_kernarg()
    k.stamp(1)
    for i in range(5): k(f"  global_load_dwordx4 v[{12+4*i}:{15+4*i}], v6, s[16:17] offset:{256*i}")
    k(f"  s_lshl_b32 s5, s4, 8\n  s_add_u32 s5, s5, {WS_ST0}\n  v_lshlrev_b32 v7, 3, v4\n  v_lshlrev_b32 v8, 3, v2")
    for i in range(5):
        k(f"  s_waitcnt vmcnt({4-i})")
        for h in range(4):
            r = 12 + 4*i + h; o = 32 + 8*i + 2*h
            k(f"  v_lshlrev_b32 v{o}, 16, v{r}\n  v_and_b32 v{o+1}, s40, v{r}")
    k.stamp(2)
    def reduce16(r):
        for sh in (8, 4, 2, 1): k(f"  v_add_f32_dpp v{r}, v{r}, v{r} row_ror:{sh} row_mask:0xf bank_mask:0xf")
    k("  v_pk_add_f32 v[72:73], v[32:33], v[34:35]")
    for i in range(2, 20): k(f"  v_pk_add_f32 v[72:73], v[72:73], v[{32+2*i}:{33+2*i}]")
    k("  v_add_f32 v72, v72, v73")
    reduce16(72)
    k("  v_mul_f32 v72, 0x3acccccd, v72\n  v_mov_b32 v73, v72\n  v_mov_b32 v74, 0\n  v_mov_b32 v75, 0")
    for i in range(20):
        k(f"  v_pk_add_f32 v[76:77], v[{32+2*i}:{33+2*i}], v[72:73] neg_lo:[0,1] neg_hi:[0,1]\n  v_pk_fma_f32 v[74:75], v[76:77], v[76:77], v[74:75]")
    k("  v_add_f32 v74, v74, v75")
    reduce16(74)
    k("  v_mul_f32 v74, 0x3acccccd, v74")
    k("  v_cvt_pk_bf16_f32 v76, v72, v74\n  v_lshlrev_b32 v72, 16, v76\n  v_and_b32 v74, s40, v76\n  v_mov_b32 v73, v72")
    k("  v_add_f32 v74, 0x3727c5ac, v74\n  v_cvt_pk_bf16_f32 v74, v74, v74\n  v_lshlrev_b32 v74, 16, v74")
    k("  v_sqrt_f32 v74, v74\n  v_cvt_pk_bf16_f32 v74, v74, v74\n  v_lshlrev_b32 v74, 16, v74\n  v_rcp_f32 v73, v74")
    k("  ds_write_b64 v7, v[72:73]")
    k.stamp(3)
    k("  s_waitcnt lgkmcnt(0)\n  s_barrier")
    k("  s_cmp_lg_u32 s3, 0\n  s_cbranch_scc1 F_ln2")
    k("  s_mov_b32 exec_hi, 0\n  ds_read_b64 v[72:73], v8\n  s_waitcnt lgkmcnt(0)\n  buffer_store_dwordx2 v[72:73], v8, s[36:39], s5 offen sc1\n  s_mov_b64 exec, -1")
    k("F_ln2:")
    k("  s_waitcnt vmcnt(0)\n  s_barrier\n  s_cmp_lg_u32 s3, 0\n  s_cbranch_scc1 F_ln3")
    add_dbg(0, 1)
    k.stamp(4)
    k("F_ln3:")
    k("  s_add_u32 s75, s72, 7\n  s_branch F_cs")
    k("F_pk0:")
    after_kernarg()
    k(f"  s_sub_u32 s73, s72, {N_LN}\n  s_sub_u32 s75, s73, 25\n  s_cmp_ge_u32 s73, 25\n  s_cbranch_scc1 F_cs")
    k("  s_lshl_b32 s4, s73, 3\n  s_add_u32 s4, s4, s3")
    k(f"  s_mov_b32 s44, s48\n  s_mov_b32 s45, s49\n  s_mov_b32 s46, {640*640*2}\n  s_mov_b32 s47, 0x00020000\n  s_mov_b32 s8, {WS_W1P}")
    k("  s_movk_i32 s6, 1280\n  s_mov_b32 s12, 1\n  s_mov_b32 s9, 102400\n  s_movk_i32 s10, 1024\n  s_movk_i32 s7, 20480\n  s_movk_i32 s41, 5120\n  s_mov_b32 s42, 5\n  s_movk_i32 s43, 205")
    k("  s_cmp_lt_u32 s4, 100\n  s_cbranch_scc1 F_go")
    k(f"  s_mov_b32 s44, s50\n  s_mov_b32 s45, s51\n  s_sub_u32 s4, s4, 100\n  s_mov_b32 s8, {WS_W2P}")
    k("F_go:")
    k("  s_mul_i32 s11, s4, 6554\n  s_lshr_b32 s11, s11, 16\n  s_mul_i32 s13, s11, 10\n  s_sub_u32 s5, s4, s13\n  s_lshl_b32 s74, s3, 13")
    pack_load(k, 74)
    k("  s_waitcnt vmcnt(0)")
    pack_store(k, PKF)
    k("  s_branch F_ax")
    k("F_cs:")
    k("  s_cmp_lt_u32 s75, 34\n  s_cbranch_scc0 F_fl")
    k("  s_mov_b32 s4, s75")
    k(f"  s_mov_b32 s44, s48\n  s_mov_b32 s45, s49\n  s_mov_b32 s46, {640*640*2}\n  s_mov_b32 s47, 0x00020000")
    k(f"  s_mov_b32 s5, s4\n  s_movk_i32 s6, 1280\n  s_mov_b32 s11, {WS_CS1}")
    k("  s_cmp_lt_u32 s4, 10\n  s_cbranch_scc1 F_cg")
    k(f"  s_mov_b32 s44, s52\n  s_mov_b32 s45, s53\n  s_mov_b32 s46, {640*1536*2}\n  s_sub_u32 s5, s4, 10\n  s_movk_i32 s6, 3072\n  s_mov_b32 s11, {WS_CS3}")
    k("F_cg:")
    k("  v_lshrrev_b32 v4, 3, v0\n  v_and_b32 v5, 7, v2")
    k("  v_mul_lo_u32 v6, s6, v4\n  s_lshl_b32 s14, s5, 7\n  v_lshl_add_u32 v6, v5, 4, v6\n  v_add_u32 v6, s14, v6")
    k("  s_lshl_b32 s15, s6, 6\n  s_mov_b32 s29, 0")
    for i in range(10): k(f"  buffer_load_dwordx4 v[{32+4*i}:{35+4*i}], v6, s[44:47], s29 offen\n  s_add_u32 s29, s29, s15")
    k("  s_mov_b32 s41, 0x00003f80\n  s_mov_b32 s42, 0x3f800000")
    for n in range(8): k(f"  v_mov_b32 v{16+n}, 0")
    for i in range(10):
        k(f"  s_waitcnt vmcnt({9-i})")
        for n in range(8): k(f"  v_dot2_f32_bf16 v{16+n}, v{32+4*i+(n>>1)}, s{42 if n & 1 else 41}, v{16+n}")
    for n in range(8):
        r = 16 + n
        k(f"  v_add_f32_dpp v{r}, v{r}, v{r} row_ror:8 row_mask:0xf bank_mask:0xf")
        k(f"  v_mov_b32 v24, v{r}\n  v_permlane16_swap_b32 v{r}, v24\n  v_add_f32 v{r}, v{r}, v24")
        k(f"  v_mov_b32 v24, v{r}\n  v_permlane32_swap_b32 v{r}, v24\n  v_add_f32 v{r}, v{r}, v24")
    k("  s_lshl_b32 s12, s3, 8\n  v_lshlrev_b32 v9, 5, v5\n  v_add_u32 v9, s12, v9")
    k("  ds_write_b128 v9, v[16:19]\n  ds_write_b128 v9, v[20:23] offset:16")
    k("  s_waitcnt lgkmcnt(0)\n  s_barrier")
    k("  s_cmp_lg_u32 s3, 7\n  s_cbranch_scc1 F_ax")
    k("  v_lshlrev_b32 v9, 2, v2")
    for w in range(8): k(f"  ds_read_b32 v{16+w}, v9 offset:{256*w}")
    k("  s_lshl_b32 s12, s5, 8\n  s_add_u32 s12, s12, s11")
    k("  s_waitcnt lgkmcnt(0)")
    for w in range(1, 8): k(f"  v_add_f32 v16, v16, v{16+w}")
    k("  buffer_store_dword v16, v9, s[36:39], s12 offen")
    k("  s_branch F_ax")
    k("F_fl:")
    k("  s_cmp_lt_u32 s72, 60\n  s_cbranch_scc1 F_ax\n  s_sub_u32 s5, s72, 60\n  s_lshl_b32 s5, s5, 14")
    k(f"  v_mov_b32 v16, 0\n  v_mov_b32 v17, 0\n  v_mov_b32 v18, 0\n  v_mov_b32 v19, 0\n  s_lshl_b32 s4, s3, 11\n  s_add_u32 s4, s4, s5\n  s_add_u32 s4, s4, {WS_FL1}")
    k("  buffer_store_dwordx4 v[16:19], v3, s[36:39], s4 offen\n  buffer_store_dwordx4 v[16:19], v3, s[36:39], s4 offen offset:1024")
    k("F_ax:")
    k.stamp(5)
    k("F_fin:")
    k.stamp_out(0, nw=8)
    k("F_done:\n  s_endpgm")
    tab = ktab_offsets()
    k.tail.append(".p2align 6\nF_tab:")
    for i in range(0, len(tab), 16):
        k.tail.append("  .short " + ", ".join(str(x) for x in tab[i:i+16]))
    return k
```

```python
MB = 1 << 20
L = 2048; D = 640; NS = 192; F = 1536
UT_STRIDE = 4352
KG_STRIDE = 4224
QS = 16640
OS = 33024
SLAB = 1536 * 1024
SL_KG0 = 0
SL_KG1 = 80 * KG_STRIDE
SL_ST1 = 160 * KG_STRIDE
SL_ST2 = SL_ST1 + 2048
SL_G = SL_ST2 + 16384
assert SL_G % 1024 == 0 and SL_G + 786432 <= SLAB
WS_HO = 12 * MB + 4096
WS_XQ = 16 * MB
WS_FL1 = 31 * MB + 8 * 65536
WS_FL2 = WS_FL1 + 16384
WS_FL3 = WS_FL1 + 32768
WS_XID = WS_FL1 + 40960
WS_ST1 = WS_FL1 + 49152
WS_SPAN = 32 * MB
WS_W1P = 25 * MB
WS_W2P = 26 * MB
WS_W3P = 27 * MB
WS_W4P = 29 * MB
WS_CS1 = 31 * MB
WS_CS3 = 31 * MB + 65536
WS_ST0 = 31 * MB + 2 * 65536
WS_ST2 = 31 * MB + 4 * 65536
ACT_BYTES = L * D * 2
GF_BYTES = L * F * 2
KA_X = 0; KA_ARE = 8; KA_AIM = 16; KA_BRE = 24; KA_BIM = 32; KA_CRE = 40; KA_CIM = 48; KA_LDT = 56; KA_DSK = 64
KA_BX = 72; KA_W1 = 80; KA_W2 = 88; KA_W3 = 96; KA_W4 = 104; KA_OUT = 112; KA_DBG = 120; KA_WS = 128

import struct
def bf16_round_int(l):
    u = struct.unpack("<I", struct.pack("<f", float(l)))[0]
    u = (u + 0x7FFF + ((u >> 16) & 1)) & 0xFFFF0000
    return int(struct.unpack("<f", struct.pack("<I", u))[0])

ROWS = list(range(8)) + [256, 258, 260, 262, 512, 516, 768, 772, 1024, 1280, 1536, 1792, 2048]
def k_lut():
    lut = {}
    for ri, rv in enumerate(ROWS):
        for c in range(32):
            lut.setdefault(rv + 8 * c, (ri, c))
    return lut
TCS = 56
def ktab_offsets():
    lut = k_lut(); out = []
    for p in range(2064):
        lag = 2047 - p
        if lag < 0: out.append(32 * TCS)
        else:
            ri, c = lut[bf16_round_int(lag)]
            out.append(TCS * c + 2 * ri)
    return out
```

```python
import re

TRANS = ("v_exp_f32", "v_log_f32", "v_rcp_f32", "v_rsq_f32", "v_sqrt_f32", "v_sin_f32", "v_cos_f32", "v_rcp_iflag_f32")
REG_RE = re.compile(r"(?<![\w.])(-?\|?)(abs\()?([vas])(\d+|\[(\d+):(\d+)\])")

def regs_of(op):
    out = []
    op = op.strip()
    if op in ("vcc", "vcc_lo", "vcc_hi"): return [("s", "vcc")]
    if op in ("exec", "exec_lo", "exec_hi"): return [("s", "exec")]
    if op == "m0": return [("s", "m0")]
    m = re.match(r"^-?(?:abs\()?\|?([vas])(?:(\d+)|\[(\d+):(\d+)\])\)?\|?$", op)
    if m:
        k = m.group(1)
        if m.group(2) is not None: out.append((k, int(m.group(2))))
        else: out += [(k, i) for i in range(int(m.group(3)), int(m.group(4)) + 1)]
    return out

def split_ops(s):
    ops, depth, cur = [], 0, ""
    for ch in s:
        if ch == "[": depth += 1
        if ch == "]": depth -= 1
        if ch == "," and depth == 0: ops.append(cur.strip()); cur = ""
        else: cur += ch
    if cur.strip(): ops.append(cur.strip())
    return ops

class Ins:
    def __init__(self, text):
        self.text = text
        t = text.split(";")[0].strip()
        self.is_label = t.endswith(":")
        self.is_dir = t.startswith(".") and not self.is_label
        self.empty = (t == "")
        self.mn = ""; self.wr = []; self.rd = []; self.cls = "none"; self.passes = 0; self.srcc = []; self.data = []
        self.dpp = False; self.lds_dma = False
        if self.is_label or self.is_dir or self.empty: return
        parts = t.split(None, 1)
        mn = parts[0]; self.mn = mn
        rest = parts[1] if len(parts) > 1 else ""
        ops = split_ops(rest)
        mods = ""
        if ops:
            last = ops[-1].split(None, 1)
            if len(last) > 1 and not last[0].endswith(":"):
                ops[-1] = last[0]; mods = last[1]
        self.mods = mods
        R = [regs_of(o) for o in ops]
        base = re.sub(r"_(e32|e64|dpp|sdwa)$", "", mn)
        self.base = base
        if mn.startswith("v_mfma"):
            self.cls = "mfma"; self.passes = 8 if "32x32x16" in mn else 4
            assert "32x32x16_bf16" in mn or "16x16x32_bf16" in mn, mn
            self.wr = R[0]; self.rd = R[1] + R[2] + R[3]; self.srcc = R[3]; self.srcab = R[1] + R[2]
        elif mn.startswith("v_"):
            self.cls = "valu"
            if base in TRANS: self.cls = "trans"
            if "_dpp" in mn or "row_" in mods or "quad_perm" in mods: self.dpp = True
            if base.startswith("v_cmp"):
                self.wr = R[0]; self.rd = sum(R[1:], [])
                if base.startswith("v_cmpx"): self.wr = self.wr + [("s", "exec")]
            elif base in ("v_readfirstlane_b32", "v_readlane_b32"):
                self.wr = R[0]; self.rd = sum(R[1:], [])
            elif base.startswith("v_permlane"):
                self.wr = R[0] + R[1]; self.rd = R[0] + R[1]
            elif base in ("v_add_co_u32", "v_sub_co_u32", "v_addc_co_u32", "v_subb_co_u32", "v_mad_u64_u32"):
                self.wr = R[0] + R[1]; self.rd = sum(R[2:], [])
            else:
                self.wr = R[0]; self.rd = sum(R[1:], [])
                if base in ("v_fmac_f32", "v_dot2c_f32_bf16", "v_pk_fmac_f16") or self.dpp or "_sdwa" in mn: self.rd = self.rd + R[0]
                if base == "v_cndmask_b32" and len(ops) == 3: self.rd = self.rd + [("s", "vcc")]
        elif mn.startswith("buffer_") or mn.startswith("global_"):
            self.cls = "vmem"
            if mn in ("buffer_wbl2", "buffer_inv"): pass
            elif " lds" in (" " + mods) or mn.startswith("global_load_lds"):
                self.lds_dma = True; self.rd = sum(R, []) + [("s", "m0")]
            elif "_load" in mn:
                self.wr = R[0]; self.rd = sum(R[1:], [])
                if "d16" in mn: self.rd = self.rd + R[0]
            elif "atomic" in mn:
                self.rd = sum(R, [])
                if "sc0" in mods: self.wr = R[0]
            else:
                self.rd = sum(R, [])
                self.data = R[0] if mn.startswith("buffer_") else R[1]
        elif mn.startswith("ds_"):
            self.cls = "ds"
            if "read" in mn or "permute" in mn or "swizzle" in mn:
                self.wr = R[0]; self.rd = sum(R[1:], [])
                if "d16" in mn: self.rd = self.rd + R[0]
            else: self.rd = sum(R, [])
        elif mn.startswith("s_"):
            self.cls = "salu"
            if mn.startswith("s_load") or mn.startswith("s_memtime") or mn.startswith("s_memrealtime") or mn.startswith("s_buffer_load"):
                self.cls = "smem"; self.wr = R[0]; self.rd = sum(R[1:], [])
            elif mn.startswith("s_cmp") or mn.startswith("s_cbranch") or mn in ("s_branch", "s_barrier", "s_waitcnt", "s_nop", "s_endpgm", "s_sleep", "s_setprio"):
                self.rd = sum(R, [])
            else:
                self.wr = R[0] if R else []; self.rd = sum(R[1:], [])
                if "saveexec" in mn: self.wr = self.wr + [("s", "exec")]
        else:
            raise ValueError("unknown instr " + text)
    def states(self):
        if self.is_label or self.is_dir or self.empty: return 0
        if self.mn == "s_nop": return int(self.text.split()[1], 0) + 1
        return 1

def need(prod, cons):
    n = 0
    pw = set(prod.wr); cr = set(cons.rd); cw = set(cons.wr)
    pv = {r for r in pw if r[0] in "va"}; ps = {r for r in pw if r[0] == "s"}
    isv = lambda i: i.cls in ("valu", "trans")
    if isv(prod):
        if cons.cls == "mfma" and pv & cr: n = max(n, 2)
        if cons.cls == "mfma" and ("s", "exec") in pw: n = max(n, 4)
        if isv(cons) and cons.dpp and pv & cr: n = max(n, 2)
        if isv(cons) and cons.dpp and ("s", "exec") in pw: n = max(n, 5)
        if cons.base.startswith("v_permlane") and pv & cr: n = max(n, 2)
        if cons.base in ("v_readfirstlane_b32", "v_readlane_b32") and pv & cr: n = max(n, 1)
        if cons.base in ("v_readfirstlane_b32", "v_readlane_b32", "v_writelane_b32") and (ps & cr or ("s", "exec") in pw): n = max(n, 4)
        if cons.cls == "vmem" and ps & cr: n = max(n, 5)
        if isv(cons) and ps & cr: n = max(n, 2)
        if cons.cls == "salu" and ps & cr: n = max(n, 1)
        if cons.cls == "smem" and ps & cr: n = max(n, 5)
        if prod.cls == "trans" and cons.cls != "trans" and cons.cls in ("valu", "mfma", "vmem", "ds") and pv & cr: n = max(n, 1 if cons.cls != "mfma" else 2)
        if ("_sdwa" in prod.mn or ("op_sel" in getattr(prod, "mods", "") and not prod.mn.startswith("v_pk_"))) and isv(cons) and pv & (cr | cw): n = max(n, 1)
        if prod.base.startswith("v_dot2") and pv & (cr | cw):
            same = cons.base == prod.base
            if not same: n = max(n, 3)
            else:
                ops = split_ops(cons.text.split(";")[0].split(None, 1)[1])
                ab = regs_of(ops[1]) + regs_of(ops[2].split()[0])
                if pv & set(ab): n = max(n, 3)
    if prod.cls == "mfma":
        P = prod.passes
        tab_ab = {4: 8, 8: 12}[P]; tab_part = {4: 6, 8: 10}[P]; war = {4: 3, 8: 7}[P]
        if cons.cls == "mfma":
            if pv & set(cons.srcab): n = max(n, tab_ab)
            if pv & set(cons.srcc):
                if not (cons.srcc == prod.wr and cons.passes == P): n = max(n, tab_part)
            elif pv & cw: n = max(n, tab_part)
        elif cons.cls in ("valu", "trans", "vmem", "ds"):
            if pv & (cr | cw): n = max(n, tab_ab)
            if isv(cons) and set(prod.srcc) & cw: n = max(n, war)
    if prod.cls == "vmem" and prod.data and len(prod.data) >= 3:
        if set(prod.data) & cw: n = max(n, 2 if isv(cons) else 1)
    if prod.cls == "salu" and ("s", "m0") in pw and (cons.lds_dma or "addtid" in cons.mn): n = max(n, 1)
    return n

import os
STAMPS = bool(os.environ.get('STAMPS'))
STAMP_WS = 40 << 20
MAXD = 20
def hazard_pass(lines):
    out = []; hist = []
    for ln in lines:
        for text in ln.split("\n"):
            ins = Ins(text)
            if ins.cls != "none":
                req = 0; dist = 0
                for p in reversed(hist):
                    if dist >= MAXD: break
                    r = need(p, ins) - dist
                    req = max(req, r)
                    dist += p.states()
                while req > 0:
                    k = min(req, 16)
                    nop = Ins(f"  s_nop {k-1}"); out.append(nop.text); hist.append(nop); req -= k
                hist.append(ins)
                if len(hist) > 40: hist = hist[-40:]
            out.append(text)
    return out

class K:
    def __init__(self, name, grid, block, lds, vgpr=256, agpr=0, sgpr=96):
        self.name = name; self.grid = grid; self.block = block; self.lds = lds
        self.vgpr = vgpr; self.agpr = agpr; self.sgpr = sgpr
        self.lines = []; self.tail = []
    def __call__(self, s): self.lines.append(s)
    def label(self, l): self.lines.append(f"{l}:")
    def stamp(self, i, real=False):
        if not STAMPS: return
        self.lines.append(f"  s_waitcnt lgkmcnt(0)\n  {'s_memrealtime' if real else 's_memtime'} s[{80+2*i}:{81+2*i}]\n  s_waitcnt lgkmcnt(0)")
        self.sgpr = 102
    def stamp_out(self, kidx, wsreg=32, nw=4):
        if not STAMPS: return
        L = self.lines.append
        L("  s_waitcnt vmcnt(0) lgkmcnt(0)\n  s_memtime s[96:97]\n  s_memrealtime s[98:99]\n  s_waitcnt lgkmcnt(0)")
        L(f"  s_mov_b64 exec, 1\n  s_lshl_b32 s100, s2, {2 if nw == 4 else 3}\n  s_add_u32 s100, s100, s3\n  s_lshl_b32 s100, s100, 7\n  s_add_u32 s100, s100, {STAMP_WS + kidx * 524288}\n  v_mov_b32 v250, s100")
        for i in range(10):
            L(f"  v_mov_b32 v252, s{80+2*i}\n  v_mov_b32 v253, s{81+2*i}\n  global_store_dwordx2 v250, v[252:253], s[{wsreg}:{wsreg+1}] offset:{8*i}")
        L("  s_mov_b64 exec, -1")
    def body(self):
        hdr = [f".globl {self.name}", ".p2align 8", f".type {self.name},@function", f"{self.name}:"]
        return "\n".join(hdr + hazard_pass(self.lines) + self.tail)
    def kd(self):
        acc = (self.vgpr + 3) // 4 * 4
        nfv = acc + self.agpr if self.agpr else self.vgpr
        return f""".amdhsa_kernel {self.name}
  .amdhsa_next_free_vgpr {nfv}
  .amdhsa_next_free_sgpr {self.sgpr}
  .amdhsa_accum_offset {acc}
  .amdhsa_group_segment_fixed_size 0
  .amdhsa_kernarg_size 136
  .amdhsa_user_sgpr_count 2
  .amdhsa_user_sgpr_kernarg_segment_ptr 1
  .amdhsa_system_sgpr_workgroup_id_x 1
.end_amdhsa_kernel"""
    def launch(self):
        return f"; @launch kernel={self.name} grid=({self.grid},1,1) block=({self.block},1,1) lds={self.lds}"

def emit_file(kernels, header, launches=None):
    out = [header.rstrip("\n")]
    for k in (launches or kernels): out.append(k.launch())
    out.append('.amdgcn_target "amdgcn-amd-amdhsa--gfx950"')
    out.append(".text")
    for k in kernels: out.append(k.body())
    out.append('.section .rodata,"a"')
    for k in kernels:
        out.append(".p2align 6"); out.append(k.kd())
    return "\n".join(out) + "\n"
```

```python
from asmfw import K
from layout import *
from k_common import *
from k_gemm import VM, red_q, zip_lists, f32, K1, K2, P, INV640, EPS

SLOT = 20480
WR = 8; WB = 16
NSL = 7; FLG = NSL * SLOT
ACC = 48; CS = 96; ST = 120; TMP = 128; DR = 136; AL2 = 144; BE2 = 146; PT = 148; V128K = 152
HP = 154; X1P = 164; MR = 174; XV = 176
CK1, CONE = 8, 10
SPIN_LIMIT = 400000
LDS_SPIN = 1 << 23
SLACK = 4
GS = 68; GQ = 72

def cost(t):
    t = t.lstrip()
    if t.startswith("s_") or t.startswith("@VW"): return 0
    return 2 if t.split()[0] in ("v_exp_f32", "v_rcp_f32", "v_sqrt_f32") else 1

def gelu4(a, cs, C, D, pk):
    T = TMP; o = []
    if pk:
        ls = []
        for h in range(2):
            x = T + 4*h; y = x + 2; A = a + 2*h; c = cs + 2*h
            ls.append([f"  v_pk_fma_f32 v[{x}:{x+1}], v[{C}:{C+1}], v[{c}:{c+1}], v[{A}:{A+1}] op_sel_hi:[0,1,1]",
                       f"  v_pk_mul_f32 v[{y}:{y+1}], v[{x}:{x+1}], v[{x}:{x+1}]",
                       f"  v_pk_fma_f32 v[{y}:{y+1}], v[{C+2}:{C+3}], v[{y}:{y+1}], v[{C}:{C+1}] op_sel:[0,0,1] op_sel_hi:[0,1,1]",
                       f"  v_pk_mul_f32 v[{y}:{y+1}], v[{y}:{y+1}], v[{x}:{x+1}]",
                       f"  v_exp_f32 v{y}, v{y}", f"  v_exp_f32 v{y+1}, v{y+1}",
                       f"  v_pk_fma_f32 v[{y}:{y+1}], v[{y}:{y+1}], v[{C+2}:{C+3}], v[{C+2}:{C+3}] op_sel:[0,1,1] op_sel_hi:[1,1,1]",
                       f"  v_rcp_f32 v{y}, v{y}", f"  v_rcp_f32 v{y+1}, v{y+1}",
                       f"  v_pk_mul_f32 v[{x}:{x+1}], v[{x}:{x+1}], v[{y}:{y+1}]",
                       f"  v_cvt_pk_bf16_f32 v{D+h}, v{x}, v{x+1}"])
        return zip_lists(*ls)
    ls = []
    for e in range(4):
        x = T + e; y = T + 4 + e
        ls.append([f"  v_fma_f32 v{x}, v{C}, v{cs+e}, v{a+e}", f"  v_mul_f32 v{y}, v{x}, v{x}", f"  v_fma_f32 v{y}, v{C+2}, v{y}, v{C+1}",
                   f"  v_mul_f32 v{y}, v{y}, v{x}", f"  v_exp_f32 v{y}, v{y}", f"  v_fma_f32 v{y}, v{y}, v{C+3}, v{C+3}", f"  v_rcp_f32 v{y}, v{y}",
                   f"  v_mul_f32 v{x}, v{x}, v{y}"])
    for i in range(8):
        for l in ls: o.append(l[i])
    return o + [f"  v_cvt_pk_bf16_f32 v{D}, v{T}, v{T+1}", f"  v_cvt_pk_bf16_f32 v{D+1}, v{T+2}, v{T+3}"]

def ln_s(out, mean, var, m, s, t):
    out += [f"  v_cvt_pk_bf16_f32 v{t}, v{mean}, v{var}", f"  v_lshlrev_b32 v{m}, 16, v{t}", f"  v_and_b32 v{s}, s40, v{t}",
            f"  v_add_f32 v{s}, {EPS}, v{s}", f"  v_cvt_pk_bf16_f32 v{s}, v{s}, v{s}", f"  v_lshlrev_b32 v{s}, 16, v{s}",
            f"  v_sqrt_f32 v{s}, v{s}", f"  v_cvt_pk_bf16_f32 v{s}, v{s}, v{s}", f"  v_lshlrev_b32 v{s}, 16, v{s}"]
def mean_var(out, s1, s2):
    out += [f"  v_mul_f32 v{s1}, {INV640}, v{s1}", f"  v_mul_f32 v{s2}, {INV640}, v{s2}", f"  v_fma_f32 v{s2}, -v{s1}, v{s1}, v{s2}", f"  v_max_f32 v{s2}, 0, v{s2}"]
def gelu_consts(out, C, t):
    out += [f"  v_rcp_f32 v{t}, v{C+3}", f"  v_mul_f32 v{C+1}, {f32(K1)}, v{t}", f"  v_mul_f32 v{C+2}, v{t}, v{t}", f"  v_mul_f32 v{C+2}, v{C+2}, v{t}", f"  v_mul_f32 v{C+2}, {f32(K2)}, v{C+2}"]

class Stream:
    def __init__(self, k, vm): self.k = k; self.vm = vm; self.uid = 0; self.t = 90; self.ring = [WB + 4*i for i in range(8)]
    def need_ready(self, n):
        self.uid += 1; u = self.uid; k = self.k
        k(f"  s_cmp_ge_u32 s77, {n}\n  s_cbranch_scc1 GG_ro{u}")
        k(f"GG_rd{u}:\n  ds_read_b128 v[{RT4}:{RT4+3}], v{VFL}\n  s_add_u32 s76, s76, 1\n  s_waitcnt lgkmcnt(0)\n  v_min_u32 v{RT4}, v{RT4}, v{RT4+1}\n  v_min3_u32 v{RT4}, v{RT4}, v{RT4+2}, v{RT4+3}\n  v_readfirstlane_b32 s77, v{RT4}\n  s_cmp_ge_u32 s77, {n}\n  s_cbranch_scc1 GG_ro{u}\n  s_cmp_lt_u32 s76, {LDS_SPIN}\n  s_cbranch_scc1 GG_rd{u}\nGG_ro{u}:")
    def free_text(self, n): return f"  v_mov_b32 v{self.t+1}, {n}\n  ds_write_b32 v{VFW}, v{self.t+1}"
    def run(self, N, mfma_of, lds_off_of, ready_before, free_after, xwait_of, vtarget, fillers, extra_of, GW=2, FPER=2, stamps={}, bases=(3, 1, V128K), hook=None):
        PD = len(self.ring) - 1; k = self.k; vm = self.vm; fi = [0]; ops = []; st = {"nrd": 0, "cov": -1}
        def rd():
            j = st["nrd"]; st["nrd"] += 1
            if j in ready_before: self.need_ready(ready_before[j])
            off = lds_off_of(j); r = self.ring[j % len(self.ring)]
            k(f"  ds_read_b128 v[{r}:{r+3}], v{bases[off >> 16]} offset:{off & 65535}"); ops.append(j)
        def fill(i, n):
            while n > 0 and fi[0] < len(fillers) and fillers[fi[0]][0] <= i:
                t = fillers[fi[0]][1]; fi[0] += 1
                if t.startswith("@ST") or t.startswith("@HS"): vm.issue(t[3:], "S")
                elif t.startswith("@VW"): vm.wait(t[3:]); continue
                else: k(t)
                n -= cost(t)
        pend = []
        def shadow(i, last_of_step):
            lim = min(N, i + PD + (1 if last_of_step else 0))
            if st["nrd"] < lim and st["nrd"] <= i + PD - 1 + (1 if last_of_step else 0) and (st["nrd"] < i + PD - 1 or not (vm.qpos < min(vtarget(i), len(vm.q)) or pend) or last_of_step): rd()
            elif vm.qpos < min(vtarget(i), len(vm.q)): vm.upto(vm.qpos + 1)
            elif pend: k(pend.pop(0)); ops.append(None)
            else: fill(i, FPER)
        while st["nrd"] < min(PD, N): rd()
        if hook: hook()
        for i in range(N):
            if i in stamps: k.stamp(stamps[i])
            while st["nrd"] <= i: rd()
            if st["cov"] < i:
                last = min(st["nrd"] - 1, i + GW - 1)
                idx = ops.index(last); k(f"  s_waitcnt lgkmcnt({min(15, len(ops) - 1 - idx)})"); del ops[:idx + 1]; st["cov"] = last
            xt = xwait_of(i)
            if xt and not P("NOXW", 0): vm.wait(xt)
            ms = mfma_of(i, self.ring[i % len(self.ring)]); ex = extra_of(i)
            for n, m in enumerate(ms + ex):
                k(m); shadow(i, n >= len(ms) - 1)
            if len(ms) + len(ex) == 1:
                if vm.qpos < min(vtarget(i), len(vm.q)): vm.upto(vm.qpos + 1)
                elif pend: k(pend.pop(0)); ops.append(None)
            if i in free_after: pend.append(self.free_text(free_after[i]))
        for p_ in pend: k(p_)
        vm.upto(10**9)
        fill(10**9, 10**9)

import os
STP = os.environ.get("STP", "g1,s1,g2,s2,g3,s3").split(",")
XF = os.environ.get('XF', ' sc1')
SLT = int(os.environ.get('SLT', 0))
KGS = KG_STRIDE; PSL = P("PSLEEP", 2)
LSTAMP = bool(os.environ.get('STAMPS'))
VH = 151; RT4 = 140; VFL2 = 13; VFL = 153; VFW = 0
def gen_gg(k):
    def sp(name):
        if name in STP: k.stamp(1 + STP.index(name))
    def spd(d): return {i: 1 + STP.index(n) for i, n in d.items() if n in STP}
    vm = VM(k); st = Stream(k, vm)
    uid = [0]
    def hstore(text, pre="", post="", local=SLT >= 1):
        if not local: return f"@HS{pre}{text} sc1{post}"
        uid[0] += 1; n = uid[0]
        return f"@HS{pre}  s_cmp_lg_u32 s75, 0\n  s_cbranch_scc1 GG_hf{n}\n{text} sc1\n  s_branch GG_he{n}\nGG_hf{n}:\n{text}\nGG_he{n}:{post}"
    k(f"  s_load_dwordx2 s[44:45], s[0:1], {KA_OUT}")
    k(f"  v_lshlrev_b32 v3, 4, v2\n  v_mov_b32 v{VFL}, {FLG}")
    k(f"  s_and_b32 s19, s2, 7\n  s_lshl_b32 s4, s19, 2\n  s_bfe_u32 s5, s2, 0x20003\n  s_add_u32 s4, s4, s5\n  s_lshr_b32 s5, s2, 5\n  s_lshr_b32 s25, s2, 4")
    k("  s_and_b32 s74, s4, 3\n  s_lshl_b32 s74, s74, 1\n  s_add_u32 s74, s74, s5\n  s_mul_i32 s74, s74, 3\n  s_lshr_b32 s74, s74, 1\n  s_sub_u32 s12, s74, 12\n  s_cmp_ge_u32 s74, 12\n  s_cselect_b32 s74, s12, s74")
    k("  s_add_u32 s65, s4, s5\n  s_and_b32 s65, s65, 3\n  s_bfe_u32 s66, s2, 0x10003\n  s_lshl_b32 s66, s66, 1\n  s_add_u32 s66, s66, s25\n  s_and_b32 s66, s66, 3")
    k("  s_mov_b32 s76, 0\n  s_cmp_ge_u32 s3, 4\n  s_cbranch_scc1 GG_loader")
    k(f"  v_and_b32 v6, 15, v2\n  v_lshrrev_b32 v7, 4, v2\n  v_add_u32 v1, 0x10000, v3\n  v_add_u32 v{V128K}, 0x20000, v3")
    k(f"  s_lshl_b32 s12, s3, 2\n  s_add_u32 s12, s12, {FLG+16}\n  v_mov_b32 v{VFW}, s12")
    k(f"  v_mul_u32_u24 v4, {2*QS}, v7\n  v_lshl_add_u32 v4, v6, 3, v4\n  v_add_u32 v15, {QS}, v4\n  v_mul_u32_u24 v5, {KGS}, v7\n  v_lshl_add_u32 v5, v6, 4, v5")
    k("  s_mov_b32 s40, 0xffff0000\n  s_mov_b32 s41, 0x3f803f80")
    k("  v_mov_b32 v8, s41\n  v_mov_b32 v9, s41\n  v_mov_b32 v10, s41\n  v_mov_b32 v11, s41")
    k(f"  s_mul_i32 s67, s19, {SLAB}")
    k("  s_mul_i32 s20, s5, 5\n  s_add_u32 s20, s20, 1\n  s_lshr_b32 s20, s20, 1\n  s_lshr_b32 s21, s5, 1\n  s_mul_i32 s21, s21, 5\n  s_add_u32 s21, s21, 2\n  s_and_b32 s22, s5, 1")
    k(f"  s_mul_i32 s48, s20, {8*QS}\n  s_add_u32 s49, s48, {8*QS}\n  s_mul_i32 s50, s21, {8*QS}\n  s_lshl_b32 s23, s22, 3\n  s_mul_i32 s12, s22, {QS}\n  s_add_u32 s50, s50, s12")
    k(f"  s_mul_i32 s62, s20, {4*KGS}\n  s_add_u32 s63, s62, {4*KGS}\n  s_mul_i32 s64, s21, {4*KGS}\n  s_lshl_b32 s12, s22, 11\n  s_add_u32 s64, s64, s12")
    k("  s_lshl_b32 s6, s4, 2\n  s_add_u32 s6, s6, s3\n  s_lshl_b32 s18, s6, 7\n  s_and_b32 s68, s6, 15")
    k("  s_lshl_b32 s69, s68, 8\n  s_add_u32 s69, s69, s67\n  s_lshl_b32 s12, s68, 7\n  s_sub_u32 s64, s64, s12")
    k(f"  v_mul_u32_u24 v{VH}, {KGS}, v7\n  v_lshl_add_u32 v{VH}, v6, 3, v{VH}")
    k("  s_lshl_b32 s24, s19, 1\n  s_bfe_u32 s27, s2, 0x10003\n  s_add_u32 s24, s24, s27")
    k("  s_lshl_b32 s26, s24, 3\n  s_lshl_b32 s12, s3, 1\n  s_add_u32 s26, s26, s12\n  s_and_b32 s27, s26, 15")
    k("  s_sub_u32 s31, s74, 1")
    SLO = lambda j: (j % NSL) * SLOT
    def emit_hs(t): vm.issue(t[3:], "S")
    def publish(n, flag_off):
        vm.wait("S"); sp(f"s{n}a")
        k(flag_off)
        k(f"  v_mov_b32 v{PT}, 1\n  v_mov_b32 v{PT+1}, 0\n  s_mov_b64 exec, 1")
        t = f"  buffer_store_dword v{PT}, v{PT+1}, s[36:39], s12 offen"
        vm.issue(f"  s_cmp_lg_u32 s75, 0\n  s_cbranch_scc1 GG_ff{n}\n{t} sc1\n  s_branch GG_fe{n}\nGG_ff{n}:\n{t}\nGG_fe{n}:", "F")
        k("  s_mov_b64 exec, -1")
    def poll(n, setup):
        k(setup)
        k("  s_mov_b32 s13, 0\n  s_mov_b64 exec, 0xffff")
        k(f"GG_poll{n}:")
        k(f"  buffer_load_dword v{PT}, v{PT+1}, s[36:39], 0 offen sc1\n  s_waitcnt vmcnt(0)\n  v_cmp_ne_u32 vcc, 0, v{PT}\n  s_add_u32 s13, s13, 1")
        k(f"  s_cmp_eq_u64 vcc, exec\n  s_cbranch_scc1 GG_np{n}\n  s_sleep {PSL}\n  s_cmp_lt_u32 s13, {SPIN_LIMIT}\n  s_cbranch_scc1 GG_poll{n}")
        k(f"GG_np{n}:\n  s_mov_b64 exec, -1")
        vm.done = len(vm.ops) - 1

    def xrot_setup(stride, rreg):
        k(f"  s_mov_b32 s8, s7\n  s_add_u32 s9, s7, {20*stride}\n  s_mul_i32 s12, s{rreg}, {5*stride}\n  s_add_u32 s7, s7, s12\n  s_sub_u32 s7, s7, {stride}")
    def xadv(i, stride):
        return f"  s_add_u32 s7, s7, {stride}" + ("\n  s_cmp_eq_u32 s7, s9\n  s_cselect_b32 s7, s8, s7" if (i % 5 == 0 and i) else "")
    def xpush_s(which, i, rt, reg, lrt_reg):
        pre = xadv(i, 4*KGS) if rt == 0 else None
        if i % 5 != 2:
            vm.push(pre, f"  buffer_load_dwordx4 v[{reg}:{reg+3}], v5, s[36:39], s7 offen offset:{256*rt}{XF}", f"X{which}_{i}")
        else:
            if rt == 0: pre += f"\n  s_lshl_b32 s11, s{lrt_reg}, 7\n  s_sub_u32 s11, s7, s11"
            vm.push(pre, f"  buffer_load_dwordx2 v[{reg}:{reg+1}], v{VH}, s[36:39], s11 offen offset:{128*rt}{XF}", f"X{which}_{i}")
            vm.push(None, f"  buffer_load_dwordx2 v[{reg+2}:{reg+3}], v{VH}, s[36:39], s11 offen offset:{2048+128*rt}{XF}", f"X{which}_{i}")

    def gemm_phase(which, J0, NT, RT, NB, XR, pre_fill, epi_tile, store, extra, LOOK, FPER, stamps, before=None):
        KS = 20
        steps = [(nt, ks) for ks in range(KS) for nt in range(NB)] + [(nt, ks) for nt in range(NB, NT) for ks in range(KS)]
        last_step = {nt: max(i for i, s in enumerate(steps) if s[0] == nt) for nt in range(NT)}
        NBS = NB * KS
        fillers = list(pre_fill(NBS))
        N = len(steps); cur = 0.0
        for e, x in fillers: cur = max(cur, e) + cost(x) / (FPER * RT)
        inside = True
        for j in range(3):
            tiles = [t for t in (2*j, 2*j+1) if t < NT]
            for t in tiles:
                for rt in range(RT):
                    e = max(last_step[t], NBS - 1) + 3
                    u = epi_tile(t, rt, False)
                    need = sum(cost(x) for x in u) / (FPER * RT)
                    if inside and max(cur, e) + need <= N + SLACK: cur = max(cur, e) + need
                    else: inside = False; u = epi_tile(t, rt, True); e = 10**8
                    fillers += [(e, x) for x in u]
                    if t == tiles[-1]: fillers += [(e, x) for x in store(j, rt)]
        def mfma_of(i, w):
            nt, ks = steps[i]; out = []
            for rt in range(RT):
                a = ACC + (nt * RT + rt) * 4
                c = "0" if ks == 0 else f"v[{a}:{a+3}]"
                out.append(f"  v_mfma_f32_16x16x32_bf16 v[{a}:{a+3}], v[{w}:{w+3}], {XR(rt, ks)}, {c}")
            return out
        xt = lambda ks: f"X{which}_{ks}"
        def xwait(i): return xt(steps[i][1]) if (i < NBS and steps[i][0] == 0) else None
        def vtarget(i): return vm.index_of(xt(steps[i][1])) + 1 + LOOK if i < NBS else vm.qpos + 1
        assert NB == NT
        ready = {20 * c: J0 + c + 1 for c in range(NT)}; free = {20 * c + 19: J0 + c + 1 for c in range(NT)}
        def hook():
            if before: before()
            vm.upto(vm.index_of(xt(P("XFIRST", 4))) + 1)
        if before is None: hook()
        st.run(N, mfma_of, lambda j: SLO(J0 + j // 20) + (j % 20) * 1024, ready, free, xwait, vtarget, fillers,
               lambda i: extra(steps[i], i < NBS), GW=P('GW', 4) if RT == 1 else 2, FPER=FPER, stamps=stamps(NBS), hook=hook if before else None)

    VS1 = 88
    k("  s_lshr_b32 s12, s5, 1\n  s_lshr_b32 s13, s12, 1\n  s_add_u32 s13, s13, 1\n  s_sub_u32 s14, 0, s13\n  s_and_b32 s12, s12, 1\n  s_cmp_eq_u32 s12, 0\n  s_cselect_b32 s13, s14, s13")
    k(f"  s_lshl_b32 s12, s13, 3\n  s_add_u32 s7, s18, s12\n  s_add_u32 s7, s7, {WS_HQ}")
    xrot_setup(8*QS, 65)
    k(f"  s_lshl_b32 s12, s6, 4\n  s_add_u32 s12, s12, s13\n  v_add_u32 v{TMP+1}, s12, v6\n  s_movk_i32 s12, 0x800\n  v_cmp_gt_u32 s[60:61], s12, v{TMP+1}")
    k(f"  v_add_u32 v{VS1}, s13, v6\n  v_cmp_gt_u32 s[70:71], 16, v{VS1}\n  v_cmp_eq_u32 s[72:73], 15, v{VS1}\n  v_lshlrev_b32 v{VS1}, 3, v{VS1}")
    k("  s_cmp_eq_u32 s5, 2\n  s_cselect_b64 s[72:73], s[72:73], 0\n  s_cmp_eq_u32 s5, 0\n  s_cselect_b64 s[70:71], s[70:71], s[72:73]\n  s_and_b64 s[70:71], s[70:71], 0xffff")
    k(f"  v_lshlrev_b32 v{TMP}, 5, v7\n  s_lshl_b32 s51, s20, 7\n  s_add_u32 s51, s51, {WS_CS1}\n  s_lshl_b32 s52, s21, 7\n  s_lshl_b32 s12, s22, 4\n  s_add_u32 s52, s52, s12\n  s_add_u32 s52, s52, {WS_CS1}")
    k(f"  v_and_b32 v{ST}, 3, v6\n  v_cmp_eq_u32 s[42:43], 1, v{ST}\n  v_cmp_eq_u32 s[58:59], 2, v{ST}\n  v_cmp_eq_u32 s[78:79], 3, v{ST}\n  v_lshrrev_b32 v{ST}, 2, v6\n  v_cmp_eq_u32 s[56:57], v7, v{ST}")
    k(f"  s_add_u32 s17, s69, {SL_KG1}")
    for j in range(3): k(f"  s_add_u32 s{53+j}, s{62+j}, s17")
    k(f"  s_add_u32 s16, s18, {WS_HQ}")
    for j in range(3): k(f"  s_add_u32 s{72+j}, s16, s{48+j}")
    k("  s_getreg_b32 s30, hwreg(HW_REG_XCC_ID, 0, 4)\n  s_or_b32 s30, s30, 0x100")
    k(f"  s_lshl_b32 s75, s19, 7\n  s_add_u32 s75, s75, {WS_XID}\n  s_lshr_b32 s14, s2, 3\n  s_lshl_b32 s14, s14, 2\n  v_mov_b32 v{TMP+2}, s14\n  v_mov_b32 v{TMP+3}, s30")
    k(f"  s_cmp_eq_u32 s3, 0\n  s_cselect_b32 s10, 1, 0\n  s_mov_b32 s11, 0\n  v_and_b32 v89, 31, v2\n  v_lshlrev_b32 v89, 2, v89")
    vm.push("  s_mov_b64 exec, s[10:11]", f"  buffer_store_dword v{TMP+3}, v{TMP+2}, s[36:39], s75 offen sc1\n  s_mov_b64 exec, -1", "I")
    for ks in range(20):
        vm.push(xadv(ks, 8*QS), f"  buffer_load_dwordx2 v[{XV+4*ks}:{XV+4*ks+1}], v4, s[36:39], s7 offen{XF}", f"X1_{ks}")
        vm.push(None, f"  buffer_load_dwordx2 v[{XV+4*ks+2}:{XV+4*ks+3}], v15, s[36:39], s7 offen{XF}", f"X1_{ks}")
    for lt in range(5):
        vm.push(None, f"  buffer_load_dwordx4 v[{CS+4*lt}:{CS+4*lt+3}], v{TMP}, s[36:39], s{51 if lt < 4 else 52} offen offset:{(128*(lt>>1) + 16*(lt&1)) if lt < 4 else 0} sc1", "CS")
    for lt in range(5):
        vm.push(None, f"  buffer_load_dwordx2 v[{HP+2*lt}:{HP+2*lt+1}], v{15 if (lt < 4 and lt & 1) else 4}, s[36:39], s{72+(lt>>1)} offen{XF}", "H")
    vm.push(None, f"  buffer_load_dword v{PT+2}, v89, s[36:39], s75 offen sc1", "XID")
    k("  s_waitcnt lgkmcnt(0)")
    k(f"  s_mov_b32 s46, {ACT_BYTES}\n  s_mov_b32 s47, 0x00020000")
    if P("FLT", 1):
        k(f"  v_and_b32 v{TMP+4}, 15, v2\n  v_lshrrev_b32 v{TMP+5}, 4, v2\n  v_min_u32 v{TMP+5}, 2, v{TMP+5}\n  v_lshrrev_b32 v{TMP+6}, 1, v{TMP+5}\n  s_lshl_b32 s12, s19, 4\n  v_add_u32 v{TMP+4}, s12, v{TMP+4}\n  v_lshrrev_b32 v{TMP+4}, v{TMP+6}, v{TMP+4}")
        k(f"  v_lshlrev_b32 v{TMP+4}, 7, v{TMP+4}\n  v_lshl_add_u32 v{TMP+4}, v{TMP+5}, 14, v{TMP+4}\n  s_mov_b32 s12, {WS_FL1}")
        vm.issue(f"  buffer_load_dword v{PT+1}, v{TMP+4}, s[36:39], s12 offen sc1", "T")
    vm.upto(1)
    if P("GG_PRIO", 1): k("  s_setprio 2")
    if P("G1_TW", 0): vm.wait("T")
    k("  s_waitcnt lgkmcnt(0)\n  s_mov_b32 s77, 0")
    sp("g1t")
    MODE = (f"  s_mov_b32 s13, 0\nGG_xr:\n  v_cmp_ne_u32 vcc, 0, v{PT+2}\n  s_cmp_eq_u64 vcc, -1\n  s_cbranch_scc1 GG_xo\n  s_add_u32 s13, s13, 1\n  s_cmp_ge_u32 s13, {SPIN_LIMIT}\n  s_cbranch_scc1 GG_xo\n"
            f"  buffer_load_dword v{PT+2}, v89, s[36:39], s75 offen sc1\n  s_waitcnt vmcnt(0)\n  s_branch GG_xr\nGG_xo:\n"
            f"  v_cmp_eq_u32 vcc, s30, v{PT+2}\n  s_cmp_eq_u64 vcc, -1\n  s_cselect_b32 s75, {0 if os.environ.get('FORCE_SLOW') else 1}, 0")
    def pre1(NBS):
        o = [f"  v_cndmask_b32 v{ST+1}, v{GQ}, v{GQ+1}, s[42:43]", f"  v_cndmask_b32 v{ST+1}, v{ST+1}, v{GQ+2}, s[58:59]", f"  v_cndmask_b32 v{ST+1}, v{ST+1}, v{GQ+3}, s[78:79]",
             f"  v_cndmask_b32 v{ST+1}, 0, v{ST+1}, s[56:57]", f"  v_mov_b32 v{ST}, v{GS}"]
        red_q(o, ST+1, ST+2)
        mean_var(o, ST, ST+1)
        ln_s(o, ST, ST+1, MR, ST+3, ST+2)
        o += [f"  v_rcp_f32 v{MR+1}, v{ST+3}", f"  v_sub_f32 v{ST}, v{ST}, v{MR}", f"  v_mul_f32 v{ST}, v{ST}, v{MR+1}", f"  v_mul_f32 v{ST+1}, v{ST+1}, v{MR+1}", f"  v_mul_f32 v{ST+1}, v{ST+1}, v{MR+1}"]
        ln_s(o, ST, ST+1, ST+4, ST+5, ST+2)
        o += [f"  v_fma_f32 v12, -v{ST+4}, v{ST+3}, -v{MR}", f"  v_mul_f32 v15, v{ST+3}, v{ST+5}"]
        gelu_consts(o, 12, ST+2)
        o += [f"  s_lshl_b32 s14, s6, 7\n  s_add_u32 s14, s14, {WS_ST1}",
              hstore(f"  buffer_store_dwordx2 v[{MR}:{MR+1}], v{VS1}, s[36:39], s14 offen", "  s_mov_b64 exec, s[70:71]\n", "\n  s_mov_b64 exec, -1", local=False), "@VWCS", "@VWXID", MODE]
        return [(NBS + 3, t) for t in o]
    def epi1(nt, rt, pk):
        D = DR + 2 * (nt & 1)
        return gelu4(ACC + 4*nt, CS + 4*nt, 12, D, pk) + [f"  v_cndmask_b32 v{D}, 0, v{D}, s[60:61]", f"  v_cndmask_b32 v{D+1}, 0, v{D+1}, s[60:61]"]
    def store1(j, rt):
        w = 4 if j < 2 else 2
        return [hstore(f"  buffer_store_dwordx{w} v[{DR}:{DR+w-1}], v{5 if j < 2 else VH}, s[36:39], s{53+j} offen")]
    def extra1(step, inB):
        nt, ks = step
        if inB and nt < 2:
            x = XV + 4*ks
            if nt == 0: return [f"  v_mfma_f32_16x16x32_bf16 v[{GS}:{GS+3}], v[8:11], v[{x}:{x+3}], {'0' if ks == 0 else f'v[{GS}:{GS+3}]'}"]
            return [f"  v_mfma_f32_16x16x32_bf16 v[{GQ}:{GQ+3}], v[{x}:{x+3}], v[{x}:{x+3}], {'0' if ks == 0 else f'v[{GQ}:{GQ+3}]'}"]
        return []
    def before1():
        k(f"  s_and_b32 s12, s2, 63\n  s_lshl_b32 s12, s12, 7\n  s_add_u32 s12, s12, {WS_GOH}\n  v_mov_b32 v{PT}, s12\n  s_mov_b32 s13, 0\n  s_mov_b64 exec, 1\nGG_gh:\n  buffer_load_dword v{PT+1}, v{PT}, s[36:39], 0 offen sc1\n  s_waitcnt vmcnt(0)\n  v_readfirstlane_b32 s12, v{PT+1}\n  s_add_u32 s13, s13, 1")
        k(f"  s_cmp_lg_u32 s12, 0\n  s_cbranch_scc1 GG_go\n  s_sleep {P('GSLEEP', 4)}\n  s_cmp_lt_u32 s13, {SPIN_LIMIT}\n  s_cbranch_scc1 GG_gh\nGG_go:\n  s_mov_b64 exec, -1")
        vm.done = len(vm.ops) - 1
        sp("g0")
    X1R = lambda rt, ks: f"v[{XV+4*ks}:{XV+4*ks+3}]"
    R8 = list(st.ring)
    st.ring = (R8 + [76, 80, 84, 92, 164, 168])[:P("G1_WR", 14)]
    gemm_phase(1, 0, 5, 1, P("G1_NB", 5), X1R, pre1, epi1, store1, extra1, P("G1_LOOK", 16), P("G1_FPER", 2),
               lambda NBS: spd({2: "g1a", NBS // 2: "g1h", NBS - 1: "g1b"}), before=before1)
    sp("g1")
    publish(1, f"  s_lshl_b32 s12, s6, 7\n  s_lshl_b32 s13, s5, 2\n  s_add_u32 s12, s12, s13\n  s_add_u32 s12, s12, {WS_FL1}")
    k(f"  s_mov_b32 s7, s17\n  s_add_u32 s17, s69, {SL_KG0}")
    xrot_setup(4*KGS, 65)
    for j in range(3): k(f"  s_add_u32 s{54+j}, s17, s{62+j}")
    k(f"  v_lshlrev_b32 v{ST+7}, 3, v6")
    st.t = 8
    st.ring = (R8 + [88, 92, 136, 144])[:P("G2_WR", 14)]
    for ks in range(20): xpush_s(2, ks, 0, XV + 4*ks, 68)
    k(f"  v_lshlrev_b32 v{ST+6}, 5, v7\n  s_mul_i32 s51, s25, 384\n  s_add_u32 s51, s51, {WS_CS3}")
    for nt in range(6): vm.push(None, f"  buffer_load_dwordx4 v[{CS+4*nt}:{CS+4*nt+3}], v{ST+6}, s[36:39], s51 offen offset:{128*(nt>>1) + 16*(nt&1)} sc1", "CS")
    XB = 68
    def before2():
        k(f"  s_mov_b32 s13, 0\nGG_s1:\n  buffer_load_dwordx2 v[{MR}:{MR+1}], v{ST+7}, s[36:39], s14 offen sc1\n  s_waitcnt vmcnt(0)\n  v_cmp_ne_u32 vcc, 0, v{MR+1}\n  s_add_u32 s13, s13, 1")
        k(f"  s_cmp_eq_u64 vcc, -1\n  s_cbranch_scc1 GG_s1o\n  s_cmp_lt_u32 s13, {SPIN_LIMIT}\n  s_cbranch_scc1 GG_s1\nGG_s1o:")
        ls = []
        for i in range(10):
            o = XB + 2*i; r = HP + i; t = TMP + (i & 3)
            ls.append([f"  v_lshlrev_b32 v{o}, 16, v{r}", f"  v_and_b32 v{o+1}, s40, v{r}",
                    f"  v_pk_add_f32 v[{o}:{o+1}], v[{o}:{o+1}], v[{MR}:{MR+1}] op_sel_hi:[1,0] neg_lo:[0,1] neg_hi:[0,1]",
                    f"  v_cvt_pk_bf16_f32 v{t}, v{o}, v{o+1}", f"  v_lshlrev_b32 v{o}, 16, v{t}", f"  v_and_b32 v{o+1}, s40, v{t}",
                    f"  v_pk_mul_f32 v[{o}:{o+1}], v[{o}:{o+1}], v[{MR}:{MR+1}] op_sel:[0,1] op_sel_hi:[1,1]",
                    f"  v_cvt_pk_bf16_f32 v{t}, v{o}, v{o+1}", f"  v_lshlrev_b32 v{o}, 16, v{t}", f"  v_and_b32 v{o+1}, s40, v{t}"])
        for l in ls:
            for x in l: k(x)
        poll(1, f"  s_lshl_b32 s12, s6, 7\n  s_add_u32 s12, s12, {WS_FL1}\n  v_and_b32 v{PT+1}, 7, v2\n  v_lshl_add_u32 v{PT+1}, v{PT+1}, 2, s12")
        sp("s1")
    def epi2(nt, rt, pk):
        a = ACC + 4*nt; D = X1P + 2*nt; ls = []
        for h in range(2):
            t = TMP + 2*h; x = XB + 4*nt + 2*h
            add = [f"  v_pk_add_f32 v[{t}:{t+1}], v[{t}:{t+1}], v[{x}:{x+1}]"] if pk else [f"  v_add_f32 v{t}, v{t}, v{x}", f"  v_add_f32 v{t+1}, v{t+1}, v{x+1}"]
            ls.append([f"  v_cvt_pk_bf16_f32 v{D+h}, v{a+2*h}, v{a+2*h+1}", f"  v_lshlrev_b32 v{t}, 16, v{D+h}", f"  v_and_b32 v{t+1}, s40, v{D+h}"] + add + [f"  v_cvt_pk_bf16_f32 v{D+h}, v{t}, v{t+1}"])
        return zip_lists(*ls)
    def store2(j, rt):
        w = 4 if j < 2 else 2
        return [hstore(f"  buffer_store_dwordx{w} v[{X1P+4*j}:{X1P+4*j+w-1}], v{5 if j < 2 else VH}, s[36:39], s{54+j} offen")]
    gemm_phase(2, 5, 5, 1, P("G2_NB", 5), X1R, lambda NBS: [], epi2, store2, lambda s, b: [], P("G2_LOOK", 10), P("G2_FPER", 2),
               lambda NBS: spd({2: "g2a", NBS // 2: "g2h", NBS - 1: "g2b"}), before=before2)
    for i in range(10):
        k(f"  v_dot2_f32_bf16 v{ST+4}, v{X1P+i}, s41, {'0' if i == 0 else f'v{ST+4}'}\n  v_dot2_f32_bf16 v{ST+5}, v{X1P+i}, v{X1P+i}, {'0' if i == 0 else f'v{ST+5}'}")
    o = []; o2 = []; red_q(o, ST+4, TMP); red_q(o2, ST+5, TMP+1)
    for l in zip_lists(o, o2): k(l)
    k(f"  s_lshl_b32 s14, s68, 10\n  s_lshl_b32 s12, s5, 7\n  s_add_u32 s14, s14, s12\n  s_add_u32 s14, s14, s67\n  s_add_u32 s14, s14, {SL_ST2}\n  v_lshlrev_b32 v{TMP}, 3, v6")
    emit_hs(hstore(f"  buffer_store_dwordx2 v[{ST+4}:{ST+5}], v{TMP}, s[36:39], s14 offen", "  s_mov_b64 exec, 0xffff\n", "\n  s_mov_b64 exec, -1"))
    sp("g2")
    publish(2, f"  s_lshl_b32 s12, s6, 7\n  s_lshl_b32 s13, s5, 2\n  s_add_u32 s12, s12, s13\n  s_add_u32 s12, s12, {WS_FL2}")
    k(f"  s_lshl_b32 s7, s27, 8\n  s_add_u32 s7, s7, s67\n  s_add_u32 s7, s7, {SL_KG0}")
    xrot_setup(4*KGS, 66)
    k(f"  v_lshlrev_b32 v{TMP+1}, 3, v6\n  v_lshl_add_u32 v{TMP+1}, v7, 8, v{TMP+1}\n  s_lshl_b32 s14, s27, 10\n  s_add_u32 s14, s14, s67\n  s_add_u32 s14, s14, {SL_ST2}")
    k(f"  s_mul_i32 s17, s27, {48*1024}\n  s_mul_i32 s12, s25, 3072\n  s_add_u32 s17, s17, s12\n  s_add_u32 s17, s17, s67\n  s_add_u32 s17, s17, {SL_G}\n  s_add_u32 s16, s17, {48*1024}")
    st.ring = R8
    X3R = lambda rt, ks: f"v[{XV+((ks%10)*2+rt)*4}:{XV+((ks%10)*2+rt)*4+3}]"
    for ks in range(20):
        for rt in range(2):
            xpush_s(3, ks, rt, XV + ((ks % 10) * 2 + rt) * 4, 27)
        if ks == 3:
            for rt in range(2):
                for h in range(2): vm.push(None, f"  buffer_load_dwordx2 v[{ST+4*rt+2*h}:{ST+4*rt+2*h+1}], v{TMP+1}, s[36:39], s14 offen offset:{1024*rt+128*h} sc1", "ST")
    CN = [12, AL2]
    def before3():
        poll(2, f"  s_lshl_b32 s12, s26, 7\n  s_add_u32 s12, s12, {WS_FL2}\n  v_and_b32 v{PT+1}, 7, v2\n  v_lshl_add_u32 v{PT+1}, v{PT+1}, 2, s12\n  v_bfe_u32 v{PT}, v2, 3, 1\n  v_lshl_add_u32 v{PT+1}, v{PT}, 7, v{PT+1}")
        sp("s2")
    def pre3(NBS):
        pre = ["@VWST"]
        for rt in range(2):
            b = ST + 4*rt; C = CN[rt]
            pre += [f"  v_add_f32 v{b}, v{b}, v{b+2}", f"  v_add_f32 v{b+1}, v{b+1}, v{b+3}"]
            red_q(pre, b, b+2); red_q(pre, b+1, b+2)
            mean_var(pre, b, b+1)
            ln_s(pre, b, b+1, b+2, C+3, b+3)
            pre += [f"  v_sub_f32 v{C}, 0, v{b+2}"]
            gelu_consts(pre, C, b+3)
        return [(40, t) for t in pre]
    def epi3(nt, rt, pk): return gelu4(ACC + (nt*2+rt)*4, CS + 4*nt, CN[rt], DR + 4*rt + 2*(nt & 1), pk)
    def store3(j, rt):
        if SLT < 2: return [f"@ST  buffer_store_dwordx4 v[{DR+4*rt}:{DR+4*rt+3}], v3, s[36:39], s{17-rt} offen offset:{1024*j} sc1"]
        return [hstore(f"  buffer_store_dwordx4 v[{DR+4*rt}:{DR+4*rt+3}], v3, s[36:39], s{17-rt} offen offset:{1024*j}")]
    gemm_phase(3, 10, 6, 2, 6, X3R, pre3, epi3, store3, lambda s, b: [], min(16, P("G3_LOOK", 12)), 2,
               lambda NBS: spd({2: "g3a", NBS // 2: "g3h", NBS - 1: "g3b"}), before=before3)
    sp("g3")
    publish(3, f"  s_lshr_b32 s12, s26, 1\n  s_lshl_b32 s12, s12, 7\n  s_lshl_b32 s13, s25, 2\n  s_add_u32 s12, s12, s13\n  s_add_u32 s12, s12, {WS_FL3}")
    k(f"  s_and_b32 s12, s3, 1\n  s_lshl_b32 s12, s12, 11\n  s_mul_i32 s7, s68, {48*1024}\n  s_add_u32 s7, s7, s67\n  s_add_u32 s7, s7, s12\n  s_add_u32 s7, s7, {SL_G}")
    k(f"  s_xor_b32 s13, s68, 1\n  s_sub_u32 s15, s13, s68\n  s_mul_i32 s15, s15, {48*1024}")
    k(f"  v_add_u32 v8, s12, v3\n  v_add_u32 v9, 0x10000, v8\n  v_add_u32 v10, 0x20000, v8")
    k("  s_lshl_b32 s57, s20, 6\n  s_add_u32 s58, s57, 64\n  s_lshl_b32 s59, s21, 6\n  s_add_u32 s59, s59, s23")
    k("  s_lshl_b32 s12, s6, 4\n  v_add_u32 v11, s12, v6\n  s_movk_i32 s12, 1280\n  v_mul_lo_u32 v11, s12, v11\n  v_lshl_add_u32 v11, v7, 4, v11")
    XSL = SLO(21)
    k(f"  s_mul_i32 s12, s3, 5120\n  s_add_u32 s12, s12, {XSL}\n  v_add_u32 v12, s12, v3\n  s_xor_b32 s13, s3, 1\n  s_mul_i32 s13, s13, 5120\n  s_add_u32 s13, s13, {XSL}\n  v_add_u32 v13, s13, v3")
    st.t = 90
    XLEAD = min(3, P("G4_XLEAD", 3))
    pos = {}
    X4R = lambda c, j, o: XV + ((c % 5) * 4 + 2*j + o) * 4
    def x4(c):
        for j in range(2):
            for o in range(2):
                pre = "  s_add_u32 s31, s31, 1\n  s_cmp_eq_u32 s31, 12\n  s_cselect_b32 s31, 0, s31\n  s_lshl_b32 s11, s31, 12\n  s_add_u32 s11, s11, s7\n  s_add_u32 s14, s11, s15" if (j == 0 and o == 0) else None
                x = X4R(c, j, o)
                vm.push(pre, f"  buffer_load_dwordx4 v[{x}:{x+3}], v3, s[36:39], s{14 if o else 11} offen offset:{j*1024}{XF}", f"X4_{c}_{j}")
    for c in range(XLEAD + 1): x4(c)
    for c in range(12):
        pos[c] = len(vm.q)
        if c + XLEAD + 1 < 12: x4(c + XLEAD + 1)
    pos[12] = len(vm.q)
    steps = [(c, j, nt) for c in range(12) for j in range(2) for nt in range(5)]
    def mfma4(i, w):
        c, j, nt = steps[i]; out = []
        for o in range(2):
            a = ACC + 20*o + 4*nt; x = X4R(c, j, o)
            cc = "0" if (c == 0 and j == 0) else f"v[{a}:{a+3}]"
            out.append(f"  v_mfma_f32_16x16x32_bf16 v[{a}:{a+3}], v[{w}:{w+3}], v[{x}:{x+3}], {cc}")
        return out
    ready4 = {c * 10: 16 + c + 1 for c in range(12)}
    free4 = {c * 10 + 9: 16 + c + 1 for c in range(5)}
    def vt4(i):
        c = i // 10; f = (i % 10 + 1) / 10
        return pos[c] + int(f * (pos[c+1] - pos[c]) + 0.999)
    UX = CS; UH = 120
    fill4 = []
    for i in range(10):
        fill4 += [(20, f"  v_lshlrev_b32 v{UX+2*i}, 16, v{X1P+i}"), (20, f"  v_and_b32 v{UX+2*i+1}, s40, v{X1P+i}"),
                  (20, f"  v_lshlrev_b32 v{UH+2*i}, 16, v{HP+i}"), (20, f"  v_and_b32 v{UH+2*i+1}, s40, v{HP+i}")]
    def before4():
        poll(3, f"  s_lshr_b32 s12, s6, 1\n  s_lshl_b32 s12, s12, 7\n  s_add_u32 s12, s12, {WS_FL3}\n  v_lshl_add_u32 v{PT+1}, v6, 2, s12")
        sp("s3")
        vm.upto(vm.index_of("X4_1_1") + 1)
    st.run(len(steps), mfma4, lambda j: SLO(16 + steps[j][0]) + (steps[j][2] * 4 + steps[j][1]) * 1024, ready4, free4,
           lambda i: f"X4_{steps[i][0]}_{steps[i][1]}" if steps[i][2] == 0 else None, vt4, fill4, lambda i: [], FPER=1, stamps=spd({2: "g4a", 40: "g4b", 80: "g4c"}), bases=(8, 9, 10), hook=before4)
    sp("g4")
    k("  s_barrier")
    for nt in range(5): k(f"  ds_write_b128 v12, v[{ACC+20+4*nt}:{ACC+23+4*nt}] offset:{1024*nt}")
    k("  s_waitcnt lgkmcnt(0)\n  s_barrier")
    for nt in range(5): k(f"  ds_read_b128 v[{WB+4*nt}:{WB+4*nt+3}], v13 offset:{1024*nt}")
    for nt in range(5):
        a = ACC + 4 * nt; ls = []
        k(f"  s_waitcnt lgkmcnt({4-nt})")
        for h in range(2):
            t = 140 + 2*h; D = XV + 2*nt + h; x = UX + 4*nt + 2*h; hh = UH + 4*nt + 2*h
            ls.append([f"  v_pk_add_f32 v[{a+2*h}:{a+2*h+1}], v[{a+2*h}:{a+2*h+1}], v[{WB+4*nt+2*h}:{WB+4*nt+2*h+1}]", f"  v_cvt_pk_bf16_f32 v{D}, v{a+2*h}, v{a+2*h+1}", f"  v_lshlrev_b32 v{t}, 16, v{D}", f"  v_and_b32 v{t+1}, s40, v{D}",
             f"  v_pk_add_f32 v[{t}:{t+1}], v[{t}:{t+1}], v[{x}:{x+1}]",
             f"  v_cvt_pk_bf16_f32 v{D}, v{t}, v{t+1}", f"  v_lshlrev_b32 v{t}, 16, v{D}", f"  v_and_b32 v{t+1}, s40, v{D}",
             f"  v_pk_add_f32 v[{t}:{t+1}], v[{t}:{t+1}], v[{hh}:{hh+1}]", f"  v_cvt_pk_bf16_f32 v{D}, v{t}, v{t+1}"])
        for l in zip_lists(*ls): k(l)
        if nt in (1, 3): k(f"  buffer_store_dwordx4 v[{XV+2*nt-2}:{XV+2*nt+1}], v11, s[44:47], s{57+(nt>>1)} offen")
        if nt == 4: k(f"  buffer_store_dwordx2 v[{XV+2*nt}:{XV+2*nt+1}], v11, s[44:47], s59 offen")
    k.stamp_out(1)
    k("  s_endpgm")
    k("GG_loader:")
    k(f"  s_sub_u32 s3, s3, 4\n  s_mul_i32 s9, s3, 5120\n  s_lshl_b32 s12, s3, 2\n  s_add_u32 s12, s12, {FLG}\n  v_mov_b32 v12, s12")
    if P("FAKEW", 0): k("  s_mov_b32 s5, 0\n  s_mov_b32 s25, 0")
    k(f"  s_mul_i32 s8, s5, {5*SLOT}\n  s_mul_i32 s12, s65, {5*5120}\n  s_add_u32 s12, s12, s9\n  s_add_u32 s12, s12, s8")
    k(f"  s_add_u32 s20, s12, {WS_W1P}\n  s_add_u32 s21, s12, {WS_W2P}\n  s_add_u32 s28, s8, {WS_W1P + 5*SLOT}\n  s_add_u32 s29, s8, {WS_W2P + 5*SLOT}")
    k(f"  s_mul_i32 s8, s25, {6*SLOT}\n  s_mul_i32 s12, s66, {6*5120}\n  s_add_u32 s12, s12, s9\n  s_add_u32 s12, s12, s8\n  s_add_u32 s22, s12, {WS_W3P}\n  s_add_u32 s30, s8, {WS_W3P + 6*SLOT}")
    k(f"  s_mul_i32 s8, s5, {12*SLOT}\n  s_mul_i32 s12, s74, {SLOT}\n  s_add_u32 s12, s12, s9\n  s_add_u32 s12, s12, s8\n  s_add_u32 s23, s12, {WS_W4P}\n  s_add_u32 s31, s8, {WS_W4P + 12*SLOT}")
    k(f"  s_add_u32 s16, s9, {NSL*SLOT}")
    k(f"  s_mov_b32 s10, s20\n  s_mov_b32 s17, s28\n  s_mov_b32 s18, {5*SLOT}\n  s_mov_b32 s11, s9\n  s_mov_b32 s12, 0")
    chk = f"  ds_read_b128 v[8:11], v{VFL} offset:16\n  s_waitcnt lgkmcnt(0)\n  v_min_u32 v8, v8, v9\n  v_min3_u32 v8, v8, v10, v11\n  v_readfirstlane_b32 s13, v8\n  s_add_u32 s76, s76, 1\n  s_cmp_ge_u32 s13, s15\n  s_cbranch_scc1 GG_ld_go"
    if LSTAMP: k("  v_mov_b32 v20, 0\n  v_mov_b32 v21, 0\n  v_mov_b32 v22, 0")
    k("  s_mov_b32 s13, 0")
    k("GG_ld:")
    k(f"  s_cmp_lt_u32 s12, {NSL}\n  s_cbranch_scc1 GG_ld_go\n  s_sub_u32 s15, s12, {NSL-1}\n  s_max_u32 s15, s15, {P('GATE1', 3)}\n  s_max_u32 s14, s15, {P('GATE2', 8)}\n  s_cmp_ge_u32 s12, 12\n  s_cselect_b32 s15, s14, s15")
    k("  s_cmp_ge_u32 s13, s15\n  s_cbranch_scc1 GG_ld_go")
    k(chk)
    k("  s_waitcnt vmcnt(0)\n  v_mov_b32 v14, s12\n  ds_write_b32 v12, v14")
    if LSTAMP: k("  s_memtime s[40:41]\n  s_waitcnt lgkmcnt(0)\n  s_sub_u32 s40, s40, s80\n  v_mov_b32 v24, s40\n  v_cmp_eq_u32 vcc, s12, v2\n  v_cndmask_b32 v22, v22, v24, vcc")
    k("GG_ld_sp:")
    k("  s_sleep 1")
    k(chk + f"\n  s_cmp_lt_u32 s76, {LDS_SPIN}\n  s_cbranch_scc1 GG_ld_sp")
    k("GG_ld_go:")
    if LSTAMP: k("  s_memtime s[40:41]\n  s_waitcnt lgkmcnt(0)\n  s_sub_u32 s40, s40, s80\n  v_mov_b32 v24, s40\n  v_cmp_eq_u32 vcc, s12, v2\n  v_cndmask_b32 v20, v20, v24, vcc")
    k("  s_mov_b32 m0, s11\n  s_add_u32 s14, s10, 4096")
    for i in range(4): k(f"  buffer_load_dwordx4 v3, s[36:39], s10 offen offset:{1024*i} sc1 lds")
    k("  s_add_u32 m0, s11, 4096\n  v_mov_b32 v14, s12\n  buffer_load_dwordx4 v3, s[36:39], s14 offen sc1 lds")
    k("  s_waitcnt vmcnt(5)\n  ds_write_b32 v12, v14")
    k(f"  s_add_u32 s12, s12, 1\n  s_add_u32 s11, s11, {SLOT}\n  s_cmp_eq_u32 s11, s16\n  s_cselect_b32 s11, s9, s11")
    k(f"  s_add_u32 s10, s10, {SLOT}\n  s_sub_u32 s14, s10, s18\n  s_cmp_ge_u32 s10, s17\n  s_cselect_b32 s10, s14, s10")
    for j, ph, size in ((5, 1, 5), (10, 2, 6), (16, 3, 12)):
        k(f"  s_cmp_eq_u32 s12, {j}\n  s_cselect_b32 s10, s{20+ph}, s10\n  s_cselect_b32 s17, s{28+ph}, s17\n  s_cselect_b32 s18, {size*SLOT}, s18")
    k("  s_cmp_lt_u32 s12, 28\n  s_cbranch_scc1 GG_ld")
    k("  s_waitcnt vmcnt(0)\n  v_mov_b32 v14, 28\n  ds_write_b32 v12, v14\n  s_waitcnt lgkmcnt(0)")
    if LSTAMP:
        k("  s_cmp_lg_u32 s3, 0\n  s_cbranch_scc1 GG_done\n  s_lshl_b32 s40, s2, 10\n  s_add_u32 s40, s40, 0x2c00000\n  v_lshl_add_u32 v23, v2, 2, s40")
        k("  global_store_dword v23, v20, s[32:33]\n  global_store_dword v23, v21, s[32:33] offset:256\n  global_store_dword v23, v22, s[32:33] offset:512")
    k("GG_done:\n  s_endpgm")
    L = k.lines; il = L.index("GG_loader:"); ib = [i for i, x in enumerate(L) if "s_cbranch_scc1 GG_loader" in x][0]
    L[ib] = L[ib].replace("s_cbranch_scc1 GG_loader", "s_cbranch_scc0 GG_comp")
    k.lines = L[:ib+1] + L[il:] + ["GG_comp:"] + L[ib+1:il]
```

```python
from asmfw import K
from layout import *
from k_common import *
import os
LOG2E = "0x3fb8aa3b"
CST = 4160; UOFF = 4 * CST; DREG = UOFF + 4608
RB = 4 * DREG; WREG = 8704; TBL = RB + 8 * WREG; TBS = 32 * TCS + 16
PC_LDS = TBL + 4 * TBS
SPIN = 400000
SLT = int(os.environ.get('SLT', 0))
GG_FLG = 7 * 20480
PKF = os.environ.get('PKF', ' sc1')
PFL = os.environ.get('PFL', 'sc1')
TOUCH = {'12': ((WS_W1P, 50), (WS_W2P, 50)), '321': ((WS_W3P, 120), (WS_W2P, 50), (WS_W1P, 50)), '1': ((WS_W1P, 50),)}[os.environ.get('NTOUCH', '12')]
N_LN = 64; PK_FIRST = 440 if len(TOUCH) == 3 else 200

def cmul(k, d, x, w):
    k(f"  v_pk_mul_f32 v[{d}:{d+1}], v[{x}:{x+1}], v[{w}:{w+1}] op_sel:[0,0] op_sel_hi:[1,0]")
    k(f"  v_pk_fma_f32 v[{d}:{d+1}], v[{x}:{x+1}], v[{w}:{w+1}], v[{d}:{d+1}] op_sel:[1,1,0] op_sel_hi:[0,1,1] neg_lo:[1,0,0]")

def gen_pc(k):
    def poll_dbg(lbl, off, val, vt=250, slp=16):
        k(f"  v_mov_b32 v{vt}, {off}\n  s_mov_b32 s78, 0\n  s_mov_b64 exec, 1\n{lbl}:\n  global_load_dword v{vt+1}, v{vt}, s[34:35] {PFL}\n  s_waitcnt vmcnt(0)\n  v_readfirstlane_b32 s79, v{vt+1}\n  s_add_u32 s78, s78, 1")
        k(f"  s_cmp_ge_u32 s79, {val}\n  s_cbranch_scc1 {lbl}_ok\n  s_sleep {slp}\n  s_cmp_lt_u32 s78, {SPIN}\n  s_cbranch_scc1 {lbl}\n{lbl}_ok:\n  s_mov_b64 exec, -1")
    def add_dbg(off, val, vt=250):
        k(f"  v_mov_b32 v{vt}, {off}\n  v_mov_b32 v{vt+1}, {val}\n  s_mov_b64 exec, 1\n  global_atomic_add v{vt}, v{vt+1}, s[34:35] sc1\n  s_mov_b64 exec, -1")
    uid = [0]
    def arrive(base, off, total, last, vt=250):
        uid[0] += 1; u = uid[0]
        k(f"  v_mov_b32 v{vt}, {off}\n  v_mov_b32 v{vt+1}, 1\n  s_mov_b64 exec, 1\n  global_atomic_add v{vt+2}, v{vt}, v{vt+1}, s[{base}:{base+1}] sc0 sc1\n  s_waitcnt vmcnt(0)\n  v_readfirstlane_b32 s79, v{vt+2}\n  s_mov_b64 exec, -1")
        k(f"  s_cmp_lg_u32 s79, {total-1}\n  s_cbranch_scc1 F_ar{u}")
        last()
        k(f"F_ar{u}:")
    def set_dbg(off, vt=250):
        k(f"  v_mov_b32 v{vt}, {off}\n  v_mov_b32 v{vt+1}, 1\n  s_mov_b64 exec, 1\n  global_store_dword v{vt}, v{vt+1}, s[34:35] sc1\n  s_mov_b64 exec, -1")
    def set_goh():
        k(f"  v_lshlrev_b32 v250, 7, v2\n  v_mov_b32 v251, 1\n  s_mov_b32 s79, {WS_GOH}\n  buffer_store_dword v251, v250, s[36:39], s79 offen sc1")
    top = lambda: arrive(32, WS_SHARD + 1024, 8 + 34, set_goh)
    k("  s_cmp_ge_u32 s2, 256\n  s_cbranch_scc1 GG_done")
    k.stamp(0); k.stamp(7, True)
    k("  s_load_dwordx16 s[16:31], s[0:1], 0")
    k(f"  s_load_dwordx4 s[32:35], s[0:1], {KA_DBG}")
    k(f"  s_load_dwordx8 s[48:55], s[0:1], {KA_W1}\n  s_load_dwordx2 s[56:57], s[0:1], {KA_DSK}")
    k("  v_lshrrev_b32 v1, 6, v0\n  v_and_b32 v2, 63, v0\n  v_readfirstlane_b32 s3, v1\n  v_lshlrev_b32 v3, 4, v2")
    k("  s_mov_b32 s40, 0xffff0000")
    def after_kernarg():
        k("  s_waitcnt lgkmcnt(0)")
        k("  s_mov_b64 s[36:37], s[34:35]\n  s_mov_b64 s[34:35], s[32:33]\n  s_mov_b64 s[32:33], s[36:37]")
        k(f"  s_mov_b32 s38, {WS_SPAN}\n  s_mov_b32 s39, 0x00020000")
    k("  s_cmp_ge_u32 s2, 160\n  s_cbranch_scc1 F_aux")
    k("  s_and_b32 s4, s2, 7\n  s_mul_i32 s4, s4, 20\n  s_lshr_b32 s5, s2, 3\n  s_add_u32 s4, s4, s5\n  s_lshl_b32 s4, s4, 2")
    k("  s_and_b32 s58, s3, 3\n  s_lshr_b32 s59, s3, 2\n  s_add_u32 s5, s4, s58")
    k(f"  s_mul_i32 s6, s58, {DREG}\n  s_mul_i32 s11, s3, {WREG}\n  s_add_u32 s11, s11, {RB}")
    k(f"  s_and_b32 s60, s2, 7\n  s_mul_i32 s61, s60, {SLAB}")
    k(f"  s_mul_i32 s10, s58, {TBS}\n  s_add_u32 s65, s10, {TBL}\n  v_mov_b32 v134, s65\n  v_mov_b32 v96, 0\n  v_mov_b32 v97, 0\n  ds_write_b64 v134, v[96:97] offset:{32*TCS}")
    k("  s_getpc_b64 s[8:9]\nF_pc:\n  s_add_u32 s8, s8, F_tab-F_pc\n  s_addc_u32 s9, s9, 0")
    k("  s_cmp_lg_u32 s59, 0\n  s_cbranch_scc1 F_nt")
    for it in range(4):
        k(f"  global_load_dwordx4 v[{176+6*it}:{179+6*it}], v3, s[8:9] offset:{1024*it}\n  global_load_dwordx2 v[{180+6*it}:{181+6*it}], v3, s[8:9] offset:{1024*it+16}")
    k("F_nt:")
    k("  s_mul_i32 s7, s5, 384\n  s_lshl_b32 s10, s59, 8\n  s_add_u32 s7, s7, s10\n  v_lshl_add_u32 v5, v2, 1, s7")
    k("  v_lshl_add_u32 v6, v2, 2, s11")
    k("  v_and_b32 v7, 31, v2\n  v_mul_u32_u24 v7, 272, v7\n  v_lshrrev_b32 v8, 5, v2\n  v_lshl_add_u32 v7, v8, 4, v7\n  v_add_u32 v7, s11, v7")
    k(f"  v_and_b32 v130, 31, v2\n  v_mul_u32_u24 v130, {TCS}, v130\n  v_lshl_add_u32 v130, v8, 3, v130\n  v_add_u32 v130, s65, v130")
    k(f"  s_add_u32 s10, s58, 4\n  s_mul_i32 s10, s10, {WREG}\n  s_add_u32 s10, s10, {RB}\n  v_add_u32 v131, s10, v3")
    k("  s_lshr_b32 s12, s5, 1\n  s_lshl_b32 s12, s12, 2\n  s_and_b32 s13, s5, 1\n  s_lshl_b32 s13, s13, 4")
    k("  v_and_b32 v4, 255, v0\n  v_lshlrev_b32 v4, 4, v4\n  s_lshl_b32 s10, s4, 1\n  v_mul_u32_u24 v133, 160, v4\n  v_add_u32 v133, s10, v133")
    after_kernarg()
    k("  s_barrier")
    k.stamp(1)
    for i, sb in enumerate((18, 20, 22, 24, 26, 28)): k(f"  global_load_ushort v{112+i}, v5, s[{sb}:{sb+1}]")
    k("  s_load_dword s14, s[30:31], s12\n  s_load_dwordx2 s[62:63], s[56:57], s10")
    k("  s_cmp_lg_u32 s59, 0\n  s_cbranch_scc1 F_hg")
    for i, sb in enumerate((18, 20, 22, 24, 26, 28)): k(f"  global_load_ushort v{118+i}, v5, s[{sb}:{sb+1}] offset:128")
    k("  s_waitcnt vmcnt(12)")
    for it in range(4):
        for i in range(11):
            src = 176 + 6*it + (i >> 1)
            k(f"  v_lshrrev_b32 v{200+11*it+i}, 16, v{src}" if i & 1 else f"  v_and_b32 v{200+11*it+i}, 0xffff, v{src}")
            k(f"  v_add_u32 v{200+11*it+i}, s65, v{200+11*it+i}")
    k("  s_waitcnt vmcnt(0)\n  s_branch F_hj")
    k("F_hg:")
    for i in range(4):
        for r in range(2): k(f"  global_load_dwordx2 v[{176+4*i+2*r}:{177+4*i+2*r}], v133, s[16:17] offset:{1280*r}")
        if i < 3: k(f"  v_add_u32 v133, {512*1280}, v133")
    k("  s_waitcnt vmcnt(8)")
    k("F_hj:")
    for i in range(2, 16): k(f"  v_mov_b32 v{96+i}, 0")
    k("  s_waitcnt lgkmcnt(0)")
    k("  s_lshr_b32 s14, s14, s13\n  s_lshl_b32 s14, s14, 16")
    k(f"  v_mov_b32 v9, {LOG2E}\n  v_mul_f32 v9, s14, v9\n  v_exp_f32 v9, v9\n  v_cvt_pk_bf16_f32 v9, v9, v9\n  v_lshlrev_b32 v132, 16, v9")
    k("  s_mov_b32 s15, s59")
    k.stamp(2)
    k("F_unit:")
    for i in range(6): k(f"  v_lshlrev_b32 v{10+i}, 16, v{112+i}")
    for i in range(6): k(f"  v_mov_b32 v{112+i}, v{118+i}")
    k("  v_mul_f32 v10, v132, v10\n  v_mul_f32 v11, v132, v11\n  v_mul_f32 v12, v132, v12\n  v_mul_f32 v13, v132, v13")
    k(f"  v_mul_f32 v10, {LOG2E}, v10\n  v_mul_f32 v11, 0.15915494, v11")
    for dst, e in ((16, None), (18, "0x41000000"), (20, "0x43800000")):
        if e is None: k(f"  v_exp_f32 v22, v10\n  v_fract_f32 v23, v11")
        else: k(f"  v_mul_f32 v22, {e}, v10\n  v_mul_f32 v23, {e}, v11\n  v_exp_f32 v22, v22\n  v_fract_f32 v23, v23")
        k(f"  v_cos_f32 v{dst}, v23\n  v_sin_f32 v{dst+1}, v23")
        k(f"  v_mul_f32 v{dst}, v22, v{dst}\n  v_mul_f32 v{dst+1}, v22, v{dst+1}")
    cmul(k, 24, 14, 12)
    def put(reg, row, neg):
        k(f"  v_cvt_pk_bf16_f32 v9, v{reg}, {'-' if neg else ''}v{reg+1}\n  ds_write_b32 v6, v9 offset:{row*272}")
    put(24, 0, True)
    for r in range(1, 8):
        cmul(k, 24 + 2*r, 24 + 2*(r-1), 16); put(24 + 2*r, r, True)
    for i, r in enumerate((0, 2, 4, 6)):
        cmul(k, 40 + 2*i, 24 + 2*r, 20); put(40 + 2*i, 8 + i, True)
    cmul(k, 48, 40, 20); put(48, 12, True)
    cmul(k, 50, 44, 20); put(50, 13, True)
    cmul(k, 52, 48, 20); put(52, 14, True)
    cmul(k, 54, 50, 20); put(54, 15, True)
    prev = 52
    for i in range(5):
        dst = 24 + 2*i
        cmul(k, dst, prev, 20); put(dst, 16 + i, True); prev = dst
    k("  s_waitcnt lgkmcnt(0)")
    for s in range(8): k(f"  ds_read_b128 v[{136+4*s}:{139+4*s}], v7 offset:{32*s}")
    k("  v_mov_b32 v9, 0x3f80\n  ds_write_b32 v6, v9 offset:0")
    put(18, 1, False)
    prev = 18
    for j in range(2, 32):
        dst = 24 + 2*(j & 1)
        cmul(k, dst, prev, 18); put(dst, j, False); prev = dst
    k("  s_waitcnt lgkmcnt(0)")
    for s in range(8): k(f"  ds_read_b128 v[{56+4*s}:{59+4*s}], v7 offset:{32*s}")
    for s in range(8):
        k(f"  s_waitcnt lgkmcnt({7-s})")
        k(f"  v_mfma_f32_32x32x16_bf16 v[96:111], v[{136+4*s}:{139+4*s}], v[{56+4*s}:{59+4*s}], v[96:111]")
    k("  s_add_u32 s15, s15, 1\n  s_cmp_lt_u32 s15, 2\n  s_cbranch_scc1 F_unit")
    k("  s_cmp_lg_u32 s59, 0\n  s_cbranch_scc1 F_help")
    k("  s_mov_b32 s78, 0")
    k(f"F_pw:\n  ds_read_b32 v9, v134 offset:{32*TCS+4}\n  s_add_u32 s78, s78, 1\n  s_waitcnt lgkmcnt(0)\n  v_readfirstlane_b32 s79, v9\n  s_cmp_lg_u32 s79, 0\n  s_cbranch_scc1 F_po\n  s_cmp_lt_u32 s78, {1<<23}\n  s_cbranch_scc1 F_pw\nF_po:")
    for g in range(3): k(f"  ds_read_b128 v[{16+4*g}:{19+4*g}], v131 offset:{1024*g}")
    k("  s_waitcnt lgkmcnt(0)")
    for g in range(6): k(f"  v_pk_add_f32 v[{96+2*g}:{97+2*g}], v[{96+2*g}:{97+2*g}], v[{16+2*g}:{17+2*g}]")
    for g in range(3):
        k(f"  v_cvt_pk_bf16_f32 v{10+2*g}, v{96+4*g}, v{97+4*g}\n  v_cvt_pk_bf16_f32 v{11+2*g}, v{98+4*g}, v{99+4*g}\n  ds_write_b64 v130, v[{10+2*g}:{11+2*g}] offset:{16*g}")
    k("  v_add_u32 v52, s6, v3")
    k(f"  v_bfe_u32 v16, v2, 1, 2\n  v_mul_u32_u24 v16, {CST}, v16\n  v_and_b32 v17, 1, v2\n  v_lshl_add_u32 v16, v17, 4, v16\n  v_add_u32 v16, s6, v16")
    k("  v_mov_b32 v20, 0\n  v_mov_b32 v21, 0\n  v_mov_b32 v22, 0\n  v_mov_b32 v23, 0\n  ds_write_b128 v16, v[20:23] offset:4096")
    k.stamp(3)
    k("  s_waitcnt lgkmcnt(0)")
    def ex_reads(it):
        for i in range(11): k(f"  ds_read_u16 v{56+12*(it&1)+i}, v{200+11*it+i}")
    ex_reads(0)
    for it in range(4):
        if it < 3: ex_reads(it + 1)
        k(f"  s_waitcnt lgkmcnt({11 if it < 3 else 0})")
        V = 56 + 12*(it & 1)
        for sg, st in ((3, 0), (2, 1), (1, 2), (0, 3)):
            O = 80 + 4*sg
            for j in range(4): k(f"  v_lshl_or_b32 v{O+j}, v{V+st+2*j+1}, 16, v{V+st+2*j}")
            k(f"  ds_write_b128 v52, v[{O}:{O+3}] offset:{1024*it + sg*CST}")
    k.stamp(4)
    k("  v_and_b32 v6, 15, v2\n  v_lshrrev_b32 v7, 4, v2")
    k(f"  v_and_b32 v8, 3, v6\n  v_mul_u32_u24 v8, {CST}, v8\n  v_lshrrev_b32 v9, 2, v6\n  v_lshlrev_b32 v9, 3, v9\n  v_sub_u32 v8, v8, v9\n  v_lshl_add_u32 v8, v7, 4, v8\n  v_add_u32 v8, {24+384}, v8\n  v_add_u32 v12, s6, v8")
    k(f"  v_lshlrev_b32 v8, 5, v6\n  v_lshl_add_u32 v8, v7, 4, v8\n  v_add_u32 v8, {UOFF+32+384}, v8\n  v_add_u32 v13, s6, v8")
    k(f"  s_lshl_b32 s10, s58, 12\n  s_add_u32 s10, s10, {RB}\n  v_lshlrev_b32 v8, 5, v6\n  v_lshl_add_u32 v8, v7, 3, v8\n  v_add_u32 v14, s10, v8")
    for i in range(32): k(f"  v_mov_b32 v{16+i}, 0")
    k("  s_waitcnt lgkmcnt(0)\n  s_barrier")
    k.stamp(5)
    SETS = ((48, 80), (112, 144))
    def reads(st, extra):
        A, B = SETS[st]; out = []
        for n in range(8):
            off = 512 * (7 - n) + 64 - extra
            out.append(f"  ds_read_b64 v[{A+4*n}:{A+4*n+1}], v12 offset:{off}")
            out.append(f"  ds_read_b64 v[{A+4*n+2}:{A+4*n+3}], v12 offset:{off+8}")
            out.append(f"  ds_read_b128 v[{B+4*n}:{B+4*n+3}], v13 offset:{512*n + 64 - extra}")
        return out
    def mfmas(st):
        A, B = SETS[st]; out = []
        for J in range(8):
            for n in range(J + 1):
                m = J - n
                out.append(f"  v_mfma_f32_16x16x32_bf16 v[{16+4*J}:{19+4*J}], v[{A+4*n}:{A+4*n+3}], v[{B+4*m}:{B+4*m+3}], v[{16+4*J}:{19+4*J}]")
        return out
    def inter(mf, rd):
        out = []
        for i, m in enumerate(mf):
            out.append(m)
            if i < len(rd): out.append(rd[i])
        return out
    k("  s_setprio 3")
    for l in reads(0, 0): k(l)
    k("  s_mov_b32 s15, 0")
    k("F_loop:")
    k("  s_waitcnt lgkmcnt(0)")
    for l in inter(mfmas(0), reads(1, 64)): k(l)
    k("  v_subrev_u32 v12, 128, v12\n  v_subrev_u32 v13, 128, v13")
    k("  s_waitcnt lgkmcnt(0)")
    k("  s_cmp_eq_u32 s15, 3\n  s_cbranch_scc1 F_last")
    for l in inter(mfmas(1), reads(0, 0)): k(l)
    k("  s_add_u32 s15, s15, 1\n  s_branch F_loop")
    k("F_last:")
    for l in mfmas(1): k(l)
    k.stamp(6)
    for J in range(8):
        k(f"  v_cvt_pk_bf16_f32 v{48+2*J}, v{16+4*J}, v{17+4*J}\n  v_cvt_pk_bf16_f32 v{49+2*J}, v{18+4*J}, v{19+4*J}")
        k(f"  ds_write_b64 v14, v[{48+2*J}:{49+2*J}] offset:{512*J}")
    k("  s_waitcnt lgkmcnt(0)\n  s_barrier\n  s_setprio 0")
    k("  s_cmp_lg_u32 s3, 0\n  s_cbranch_scc1 F_b5")
    poll_dbg("F_pl5", DBG_GOW, 1)
    k("F_b5:")
    k("  s_barrier")
    k("  s_cmp_lg_u32 s3, 0\n  s_cbranch_scc1 F_fin")
    k(f"  s_and_b32 s10, s2, 7\n  s_lshl_b32 s10, s10, 7\n  s_add_u32 s10, s10, {WS_SHARD}")
    arrive(32, "s10", 20, top)
    k("  s_branch F_fin")
    k("F_help:")
    k("  v_mov_b32 v252, 0\n  s_mov_b64 exec, 1\n  global_load_dword v253, v252, s[34:35] sc1\n  s_mov_b64 exec, -1")
    k(f"  v_and_b32 v9, 0x1f0, v3\n  v_add_u32 v9, s6, v9")
    k(f"  v_mov_b32 v12, 0\n  v_mov_b32 v13, 0\n  v_mov_b32 v14, 0\n  v_mov_b32 v15, 0\n  ds_write_b128 v9, v[12:15] offset:{UOFF}\n  s_nop 7")
    for g in range(3): k(f"  ds_write_b128 v131, v[{96+4*g}:{99+4*g}] offset:{1024*g}")
    k(f"  v_mov_b32 v9, 1\n  s_waitcnt lgkmcnt(0)\n  ds_write_b32 v134, v9 offset:{32*TCS+4}")
    k(f"  s_waitcnt vmcnt(0)\n  v_readfirstlane_b32 s79, v253\n  s_cmp_ge_u32 s79, {N_LN}\n  s_cbranch_scc1 F_st")
    poll_dbg("F_pl1", 0, N_LN)
    k("F_st:")
    k.stamp(1)
    k(f"  s_mov_b32 s10, {WS_ST0}")
    for i in range(4): k(f"  buffer_load_dwordx4 v[{192+4*i}:{195+4*i}], v4, s[36:39], s10 offen sc1\n  s_add_u32 s10, s10, 4096")
    for i in range(16): k(f"  v_lshlrev_b32 v{64+2*i}, 16, v{176+i}\n  v_and_b32 v{65+2*i}, s40, v{176+i}")
    k(f"  v_lshrrev_b32 v5, 2, v4\n  v_add_u32 v6, {UOFF+512}, v5\n  v_add_u32 v7, {2*DREG}, v6\n  v_add_u32 v5, {RB}, v5\n  v_lshlrev_b32 v8, 1, v4")
    k("  s_lshl_b32 s66, s62, 16\n  s_and_b32 s67, s62, s40\n  s_lshl_b32 s68, s63, 16\n  s_and_b32 s69, s63, s40\n  s_mov_b32 s41, 0x07060302")
    k("  s_waitcnt vmcnt(0)")
    k.stamp(2)
    for i in range(4):
        for r in range(2):
            o = 96 + 8*i + 4*r; x = 64 + 8*i + 4*r; st = 192 + 4*i + 2*r
            for h in range(2):
                a = o + 2*h
                k(f"  v_pk_add_f32 v[{a}:{a+1}], v[{x+2*h}:{x+2*h+1}], v[{st}:{st+1}] op_sel_hi:[1,0] neg_lo:[0,1] neg_hi:[0,1]\n  v_cvt_pk_bf16_f32 v9, v{a}, v{a+1}\n  v_lshlrev_b32 v{a}, 16, v9\n  v_and_b32 v{a+1}, s40, v9")
                k(f"  v_pk_mul_f32 v[{a}:{a+1}], v[{a}:{a+1}], v[{st}:{st+1}] op_sel:[0,1] op_sel_hi:[1,1]")
        for w in range(4):
            k(f"  v_cvt_pk_bf16_f32 v{48+4*i+w}, v{96+8*i+w}, v{100+8*i+w}\n  ds_write_b32 v{6 + (w >> 1)}, v{48+4*i+w} offset:{(w & 1)*DREG + 1024*i}")
    k.stamp(3)
    for i in range(4):
        for r in range(2):
            o = 96 + 8*i + 4*r
            for w in range(4): k(f"  v_and_b32 v{o+w}, s40, v{48+4*i+w}" if r else f"  v_lshlrev_b32 v{o+w}, 16, v{48+4*i+w}")
            for h in range(2):
                k(f"  v_mul_f32 v{o+2*h}, s{66+2*h}, v{o+2*h}\n  v_mul_f32 v{o+2*h+1}, s{67+2*h}, v{o+2*h+1}\n  v_cvt_pk_bf16_f32 v9, v{o+2*h}, v{o+2*h+1}\n  v_lshlrev_b32 v{o+2*h}, 16, v9\n  v_and_b32 v{o+2*h+1}, s40, v9")
    k("  s_waitcnt lgkmcnt(0)\n  s_barrier")
    k.stamp(5)
    k(f"  s_lshr_b32 s64, s4, 2\n  s_mul_i32 s64, s64, {QS}\n  s_add_u32 s64, s64, {WS_HQ}")
    k("  s_cmp_ge_u32 s2, 120\n  s_cbranch_scc1 F_np")
    k(f"  s_lshl_b32 s75, s2, 2\n  s_add_u32 s75, s75, s58\n  s_mov_b32 s46, {640*1536*2}\n  s_mov_b32 s47, 0x00020000\n  s_cmp_lt_u32 s75, 240\n  s_cbranch_scc0 F_c4")
    k(f"  s_mov_b32 s44, s52\n  s_mov_b32 s45, s53\n  s_mov_b32 s8, {WS_W3P}\n  s_movk_i32 s6, 3072\n  s_mov_b32 s12, 0\n  s_movk_i32 s13, 2731\n  s_mov_b32 s15, 24\n  s_mov_b32 s9, 122880\n  s_movk_i32 s10, 1024\n  s_movk_i32 s7, 24576\n  s_movk_i32 s41, 6144\n  s_mov_b32 s42, 6\n  s_movk_i32 s43, 171\n  s_branch F_cgo")
    k("F_c4:")
    k(f"  s_mov_b32 s44, s54\n  s_mov_b32 s45, s55\n  s_sub_u32 s75, s75, 240\n  s_mov_b32 s8, {WS_W4P}\n  s_movk_i32 s6, 1280\n  s_mov_b32 s12, 1\n  s_movk_i32 s13, 6554\n  s_mov_b32 s15, 10\n  s_mov_b32 s9, 245760\n  s_movk_i32 s10, 4096\n  s_movk_i32 s7, 20480\n  s_movk_i32 s41, 1024\n  s_mov_b32 s42, 5\n  s_movk_i32 s43, 205")
    k("F_cgo:")
    k(f"  s_mul_i32 s11, s75, s13\n  s_lshr_b32 s11, s11, 16\n  s_mul_i32 s13, s11, s15\n  s_sub_u32 s5, s75, s13\n  s_lshl_b32 s72, s58, 13\n  s_add_u32 s72, s72, {RB + 16384}")
    pack_load(k, 72, va=244, vb=245, vc=246, vd=247, so=66)
    k("  s_waitcnt vmcnt(0)")
    pack_store(k, PKF, vb=245, vc=246, vd=247, so=66, R=144)
    k("F_np:")
    k("  s_barrier")
    k.stamp(6)
    for i in range(4):
        for w in range(4): k(f"  ds_read_b32 v{48+4*i+w}, v5 offset:{4096*w + 1024*i}")
    for i in range(4):
        k(f"  s_waitcnt lgkmcnt({12-4*i})")
        for r in range(2):
            o = 128 + 4*r; u = 96 + 8*i + 4*r; x = 64 + 8*i + 4*r; d = 136 + 4*i + 2*r
            for w in range(4): k(f"  v_and_b32 v{o+w}, s40, v{48+4*i+w}" if r else f"  v_lshlrev_b32 v{o+w}, 16, v{48+4*i+w}")
            for h in range(2):
                a = o + 2*h
                k(f"  v_pk_add_f32 v[{a}:{a+1}], v[{a}:{a+1}], v[{u+2*h}:{u+2*h+1}]\n  v_cvt_pk_bf16_f32 v9, v{a}, v{a+1}\n  v_lshlrev_b32 v{a}, 16, v9\n  v_and_b32 v{a+1}, s40, v9")
                k(f"  v_pk_add_f32 v[{a}:{a+1}], v[{a}:{a+1}], v[{x+2*h}:{x+2*h+1}]\n  v_cvt_pk_bf16_f32 v{d+h}, v{a}, v{a+1}")
        k(f"  buffer_store_dwordx4 v[{136+4*i}:{139+4*i}], v4, s[36:39], s64 offen sc1\n  s_add_u32 s64, s64, 4096")
    k.stamp(4)
    k(f"  v_mov_b32 v248, {GG_FLG}\n  v_mov_b32 v244, 0\n  v_mov_b32 v245, 0\n  v_mov_b32 v246, 0\n  v_mov_b32 v247, 0\n  ds_write_b128 v248, v[244:247]\n  ds_write_b128 v248, v[244:247] offset:16")
    k("  s_waitcnt vmcnt(0) lgkmcnt(0)\n  s_barrier")
    k("  s_branch F_fin")
    k("F_aux:")
    k("  s_mov_b32 s71, 0")
    if int(os.environ.get("CW", 1)):
        k("  s_cmp_lt_u32 s2, 248\n  s_cbranch_scc1 F_ncw")
        k("  s_getpc_b64 s[8:9]\nF_pc2:\n  s_sub_u32 s8, s8, F_pc2-mk_kernel\n  s_subb_u32 s9, s9, 0")
        k("  v_lshlrev_b32 v10, 7, v0\n  s_mov_b32 s10, F_tab-mk_kernel\n  v_min_u32 v10, s10, v10\n  global_load_dword v11, v10, s[8:9]")
        k("F_ncw:")
    k("  s_sub_u32 s72, s2, 160")
    k(f"  s_cmp_ge_u32 s72, {N_LN}\n  s_cbranch_scc1 F_pk0")
    US = 1344
    k("  s_and_b32 s5, s72, 7\n  s_lshl_b32 s5, s5, 3\n  s_lshr_b32 s4, s72, 3\n  s_add_u32 s4, s4, s5")
    k("  v_lshrrev_b32 v4, 4, v0\n  v_and_b32 v5, 15, v0")
    k("  v_mul_u32_u24 v6, 1280, v4\n  v_lshl_add_u32 v6, v5, 4, v6\n  s_mul_i32 s5, s4, 40960\n  v_add_u32 v6, s5, v6")
    after_kernarg()
    k.stamp(1)
    for i in range(5): k(f"  global_load_dwordx4 v[{12+4*i}:{15+4*i}], v6, s[16:17] offset:{256*i}")
    k(f"  s_lshl_b32 s5, s4, 8\n  s_add_u32 s5, s5, {WS_ST0}\n  v_lshlrev_b32 v7, 3, v4\n  v_lshlrev_b32 v8, 3, v2")
    for i in range(5):
        k(f"  s_waitcnt vmcnt({4-i})")
        for h in range(4):
            r = 12 + 4*i + h; o = 32 + 8*i + 2*h
            k(f"  v_lshlrev_b32 v{o}, 16, v{r}\n  v_and_b32 v{o+1}, s40, v{r}")
    k.stamp(2)
    def reduce16(r):
        for sh in (8, 4, 2, 1): k(f"  v_add_f32_dpp v{r}, v{r}, v{r} row_ror:{sh} row_mask:0xf bank_mask:0xf")
    k("  v_pk_add_f32 v[72:73], v[32:33], v[34:35]")
    for i in range(2, 20): k(f"  v_pk_add_f32 v[72:73], v[72:73], v[{32+2*i}:{33+2*i}]")
    k("  v_add_f32 v72, v72, v73")
    reduce16(72)
    k("  v_mul_f32 v72, 0x3acccccd, v72\n  v_mov_b32 v73, v72\n  v_mov_b32 v74, 0\n  v_mov_b32 v75, 0")
    for i in range(20):
        k(f"  v_pk_add_f32 v[76:77], v[{32+2*i}:{33+2*i}], v[72:73] neg_lo:[0,1] neg_hi:[0,1]\n  v_pk_fma_f32 v[74:75], v[76:77], v[76:77], v[74:75]")
    k("  v_add_f32 v74, v74, v75")
    reduce16(74)
    k("  v_mul_f32 v74, 0x3acccccd, v74")
    k("  v_cvt_pk_bf16_f32 v76, v72, v74\n  v_lshlrev_b32 v72, 16, v76\n  v_and_b32 v74, s40, v76\n  v_mov_b32 v73, v72")
    k("  v_add_f32 v74, 0x3727c5ac, v74\n  v_cvt_pk_bf16_f32 v74, v74, v74\n  v_lshlrev_b32 v74, 16, v74")
    k("  v_sqrt_f32 v74, v74\n  v_cvt_pk_bf16_f32 v74, v74, v74\n  v_lshlrev_b32 v74, 16, v74\n  v_rcp_f32 v73, v74")
    k("  ds_write_b64 v7, v[72:73]")
    k.stamp(3)
    k("  s_waitcnt lgkmcnt(0)\n  s_barrier")
    k("  s_cmp_lg_u32 s3, 0\n  s_cbranch_scc1 F_ln2")
    k("  s_mov_b32 exec_hi, 0\n  ds_read_b64 v[72:73], v8\n  s_waitcnt lgkmcnt(0)\n  buffer_store_dwordx2 v[72:73], v8, s[36:39], s5 offen sc1\n  s_mov_b64 exec, -1")
    k("F_ln2:")
    k("  s_waitcnt vmcnt(0)\n  s_barrier\n  s_cmp_lg_u32 s3, 0\n  s_cbranch_scc1 F_ln3")
    add_dbg(0, 1)
    k.stamp(4)
    k("F_ln3:")
    k("  s_add_u32 s75, s72, 7\n  s_branch F_cs")
    k("F_pk0:")
    after_kernarg()
    k(f"  s_sub_u32 s73, s72, {N_LN}\n  s_sub_u32 s75, s73, 25\n  s_cmp_ge_u32 s73, 25\n  s_cbranch_scc1 F_cs")
    k("  s_lshl_b32 s4, s73, 3\n  s_add_u32 s4, s4, s3")
    k(f"  s_mov_b32 s44, s48\n  s_mov_b32 s45, s49\n  s_mov_b32 s46, {640*640*2}\n  s_mov_b32 s47, 0x00020000\n  s_mov_b32 s8, {WS_W1P}")
    k("  s_movk_i32 s6, 1280\n  s_mov_b32 s12, 1\n  s_mov_b32 s9, 102400\n  s_movk_i32 s10, 1024\n  s_movk_i32 s7, 20480\n  s_movk_i32 s41, 5120\n  s_mov_b32 s42, 5\n  s_movk_i32 s43, 205")
    k("  s_cmp_lt_u32 s4, 100\n  s_cbranch_scc1 F_go")
    k(f"  s_mov_b32 s44, s50\n  s_mov_b32 s45, s51\n  s_sub_u32 s4, s4, 100\n  s_mov_b32 s8, {WS_W2P}")
    k("F_go:")
    k("  s_mul_i32 s11, s4, 6554\n  s_lshr_b32 s11, s11, 16\n  s_mul_i32 s13, s11, 10\n  s_sub_u32 s5, s4, s13\n  s_lshl_b32 s74, s3, 13")
    pack_load(k, 74)
    k("  s_waitcnt vmcnt(0)")
    pack_store(k, PKF)
    k("F_aw:")
    k("  s_waitcnt vmcnt(0)\n  s_barrier\n  s_cmp_lg_u32 s3, 0\n  s_cbranch_scc1 F_ax")
    arrive(34, 192, 25 + 5, lambda: set_dbg(DBG_GOW))
    k("  s_branch F_ax")
    k("F_cs:")
    k("  s_cmp_lt_u32 s75, 34\n  s_cbranch_scc0 F_fl")
    k("  s_mov_b32 s4, s75")
    k(f"  s_mov_b32 s44, s48\n  s_mov_b32 s45, s49\n  s_mov_b32 s46, {640*640*2}\n  s_mov_b32 s47, 0x00020000")
    k(f"  s_mov_b32 s5, s4\n  s_movk_i32 s6, 1280\n  s_mov_b32 s11, {WS_CS1}")
    k("  s_cmp_lt_u32 s4, 10\n  s_cbranch_scc1 F_cg")
    k(f"  s_mov_b32 s44, s52\n  s_mov_b32 s45, s53\n  s_mov_b32 s46, {640*1536*2}\n  s_sub_u32 s5, s4, 10\n  s_movk_i32 s6, 3072\n  s_mov_b32 s11, {WS_CS3}")
    k("F_cg:")
    k("  v_lshrrev_b32 v4, 3, v0\n  v_and_b32 v5, 7, v2")
    k("  v_mul_lo_u32 v6, s6, v4\n  s_lshl_b32 s14, s5, 7\n  v_lshl_add_u32 v6, v5, 4, v6\n  v_add_u32 v6, s14, v6")
    k("  s_lshl_b32 s15, s6, 6\n  s_mov_b32 s29, 0")
    for i in range(10): k(f"  buffer_load_dwordx4 v[{32+4*i}:{35+4*i}], v6, s[44:47], s29 offen\n  s_add_u32 s29, s29, s15")
    k("  s_mov_b32 s41, 0x00003f80\n  s_mov_b32 s42, 0x3f800000")
    for n in range(8): k(f"  v_mov_b32 v{16+n}, 0")
    for i in range(10):
        k(f"  s_waitcnt vmcnt({9-i})")
        for n in range(8): k(f"  v_dot2_f32_bf16 v{16+n}, v{32+4*i+(n>>1)}, s{42 if n & 1 else 41}, v{16+n}")
    for n in range(8):
        r = 16 + n
        k(f"  v_add_f32_dpp v{r}, v{r}, v{r} row_ror:8 row_mask:0xf bank_mask:0xf")
        k(f"  v_mov_b32 v24, v{r}\n  v_permlane16_swap_b32 v{r}, v24\n  v_add_f32 v{r}, v{r}, v24")
        k(f"  v_mov_b32 v24, v{r}\n  v_permlane32_swap_b32 v{r}, v24\n  v_add_f32 v{r}, v{r}, v24")
    k("  s_lshl_b32 s12, s3, 8\n  v_lshlrev_b32 v9, 5, v5\n  v_add_u32 v9, s12, v9")
    k("  ds_write_b128 v9, v[16:19]\n  ds_write_b128 v9, v[20:23] offset:16")
    k("  s_waitcnt lgkmcnt(0)\n  s_barrier")
    k("  s_cmp_lg_u32 s3, 3\n  s_cbranch_scc1 F_ax")
    k("  v_lshlrev_b32 v9, 2, v2")
    for w in range(8): k(f"  ds_read_b32 v{16+w}, v9 offset:{256*w}")
    k("  s_lshl_b32 s12, s5, 8\n  s_add_u32 s12, s12, s11")
    k("  s_waitcnt lgkmcnt(0)")
    for w in range(1, 8): k(f"  v_add_f32 v16, v16, v{16+w}")
    k("  buffer_store_dword v16, v9, s[36:39], s12 offen sc1\n  s_mov_b32 s71, 1")
    k("  s_branch F_ax")
    k("F_fl:")
    k("  s_cmp_lt_u32 s72, 59\n  s_cbranch_scc1 F_ax\n  s_sub_u32 s5, s72, 59\n  s_lshl_b32 s5, s5, 14")
    k(f"  v_mov_b32 v16, 0\n  v_mov_b32 v17, 0\n  v_mov_b32 v18, 0\n  v_mov_b32 v19, 0\n  s_lshl_b32 s4, s3, 11\n  s_add_u32 s4, s4, s5\n  s_add_u32 s4, s4, {WS_FL1}")
    k("  buffer_store_dwordx4 v[16:19], v3, s[36:39], s4 offen sc1\n  buffer_store_dwordx4 v[16:19], v3, s[36:39], s4 offen offset:1024 sc1\n  s_branch F_aw")
    k("F_ax:")
    k.stamp(5)
    k("  s_cmp_lg_u32 s3, 0\n  s_cbranch_scc1 F_a2")
    poll_dbg("F_pl6", DBG_GOW, 1, slp=int(os.environ.get("GWS", 48)))
    k("F_a2:")
    k(f"  v_mov_b32 v248, {GG_FLG}\n  v_mov_b32 v244, 0\n  v_mov_b32 v245, 0\n  v_mov_b32 v246, 0\n  v_mov_b32 v247, 0\n  ds_write_b128 v248, v[244:247]\n  ds_write_b128 v248, v[244:247] offset:16")
    k("  s_waitcnt lgkmcnt(0)\n  s_barrier")
    k.stamp(6)
    k("  s_cmp_eq_u32 s71, 0\n  s_cbranch_scc1 F_a3\n  s_waitcnt vmcnt(0)")
    top()
    k("F_a3:")
    if int(os.environ.get("WT", 1)):
        k(f"  s_lshr_b32 s12, s72, 3\n  s_lshl_b32 s12, s12, 3\n  s_add_u32 s74, s12, s3\n  s_mul_i32 s12, s74, {68*128}\n  v_min_u32 v10, 33, v2\n  v_lshlrev_b32 v10, 7, v10")
        for off in (WS_W1P, WS_W2P):
            for h in range(2): k(f"  s_add_u32 s13, s12, {off + h*34*128}\n  buffer_load_dword v11, v10, s[36:39], s13 offen sc1")
        if SLT:
            per = 57 if SLT == 1 else 61; n = 1 if SLT == 1 else 2
            k(f"  s_mul_i32 s12, s74, {per*n*128}\n  s_and_b32 s13, s2, 7\n  s_mul_i32 s13, s13, {SLAB}\n  s_add_u32 s12, s12, s13\n  v_min_u32 v10, {per-1}, v2\n  v_lshlrev_b32 v10, 7, v10")
            for i in range(n): k(f"  buffer_load_dword v11, v10, s[36:39], s12 offen\n  s_add_u32 s12, s12, {per*128}")
            assert 96 * per * n * 128 >= (SL_G if SLT == 1 else SL_G + 786432)
        k("  s_waitcnt vmcnt(0)")
    k("F_fin:")
    k.stamp_out(0, nw=8)
    tab = ktab_offsets()
    k.tail.append(".p2align 6\nF_tab:")
    for i in range(0, len(tab), 16):
        k.tail.append("  .short " + ", ".join(str(x) for x in tab[i:i+16]))
```

```python
MB = 1 << 20
L = 2048; D = 640; NS = 192; F = 1536
UT_STRIDE = 4352
KG_STRIDE = 4224
QS = 16640
OS = 33024
SLAB = 1536 * 1024
SL_KG0 = 0
SL_KG1 = 80 * KG_STRIDE
SL_ST1 = 160 * KG_STRIDE
SL_ST2 = SL_ST1 + 2048
SL_G = SL_ST2 + 16384
assert SL_G % 1024 == 0 and SL_G + 786432 <= SLAB
WS_HQ = 12 * MB + 4096
WS_XQ = 16 * MB
WS_FL1 = 31 * MB + 8 * 65536
WS_FL2 = WS_FL1 + 16384
WS_FL3 = WS_FL1 + 32768
WS_XID = WS_FL1 + 40960
WS_SHARD = WS_FL1 + 45056
DBG_GOW = 128
WS_GOW = WS_FL1 + 131072
WS_GOH = WS_FL1 + 49152
WS_ST1 = WS_FL1 + 65536
WS_SPAN = 32 * MB
WS_W1P = 25 * MB
WS_W2P = 26 * MB
WS_W3P = 27 * MB
WS_W4P = 29 * MB
WS_CS1 = 31 * MB
WS_CS3 = 31 * MB + 65536
WS_ST0 = 31 * MB + 2 * 65536
WS_ST2 = 31 * MB + 4 * 65536
ACT_BYTES = L * D * 2
GF_BYTES = L * F * 2
KA_X = 0; KA_ARE = 8; KA_AIM = 16; KA_BRE = 24; KA_BIM = 32; KA_CRE = 40; KA_CIM = 48; KA_LDT = 56; KA_DSK = 64
KA_BX = 72; KA_W1 = 80; KA_W2 = 88; KA_W3 = 96; KA_W4 = 104; KA_OUT = 112; KA_DBG = 120; KA_WS = 128

import struct
def bf16_round_int(l):
    u = struct.unpack("<I", struct.pack("<f", float(l)))[0]
    u = (u + 0x7FFF + ((u >> 16) & 1)) & 0xFFFF0000
    return int(struct.unpack("<f", struct.pack("<I", u))[0])

ROWS = list(range(8)) + [256, 258, 260, 262, 512, 516, 768, 772, 1024, 1280, 1536, 1792, 2048]
def k_lut():
    lut = {}
    for ri, rv in enumerate(ROWS):
        for c in range(32):
            lut.setdefault(rv + 8 * c, (ri, c))
    return lut
TCS = 56
def ktab_offsets():
    lut = k_lut(); out = []
    for p in range(2064):
        lag = 2047 - p
        if lag < 0: out.append(32 * TCS)
        else:
            ri, c = lut[bf16_round_int(lag)]
            out.append(TCS * c + 2 * ri)
    return out
```

```python
import sys
from asmfw import emit_file
import k_prep
hdr = "".join(l for l in open("sequential_preLN__ssm_conv_s4__mixer_s_mlp__prompt.s.ref").readlines() if l.startswith(";") and "@launch" not in l)
import k_pc, k_gg
from asmfw import K
k = K("mk_kernel", 256, 512, max(k_pc.PC_LDS, k_gg.FLG + 64), vgpr=256, sgpr=80)
k_pc.gen_pc(k); k_gg.gen_gg(k)
ks = [k]
out = sys.argv[1] if len(sys.argv) > 1 else "sequential_preLN__ssm_conv_s4__mixer_s_mlp__prompt.s"
open(out, "w").write(emit_file(ks, hdr))
```

```python
import sys
from asmfw import emit_file
import k_prep
hdr = "".join(l for l in open("sequential_preLN__ssm_conv_s4__mixer_s_mlp__prompt.s.ref").readlines() if l.startswith(";") and "@launch" not in l)
import k_pc, k_gg
from asmfw import K
k = K("mk_kernel", 256, 512, max(k_pc.PC_LDS, k_gg.FLG + 64), vgpr=256, sgpr=80)
k_pc.gen_pc(k); k_gg.gen_gg(k)
ks = [k]
out = sys.argv[1] if len(sys.argv) > 1 else "sequential_preLN__ssm_conv_s4__mixer_s_mlp__prompt.s"
txt = emit_file(ks, hdr)
import os
if os.environ.get("SINGLE", "1") == "1" and not os.environ.get("LIST"):
    NAME = "sequential_preLN__ssm_conv_s4__mixer_s_mlp__prompt_kernel"
    if out.startswith("cdna_kernels") or os.environ.get("FINAL"):
        txt = txt.replace("; @launch kernel=mk_kernel ", "; @launch ").replace("mk_kernel", NAME)
open(out, "w").write(txt)
```

```python
from asmfw import K
from layout import *
from k_common import *
from k_gemm import VM, red_q, zip_lists, f32, K1, K2, P, INV640, EPS

SLOT = 20480
WR = 8; WB = 16
NSL = 7; FLG = NSL * SLOT
ACC = 48; CS = 96; ST = 120; TMP = 128; DR = 136; AL2 = 144; BE2 = 146; PT = 148; V128K = 152
HP = 154; X1P = 164; MR = 174; XV = 176
CK1, CONE = 8, 10
SPIN_LIMIT = 400000
LDS_SPIN = 1 << 23
SLACK = 4
GS = 68; GQ = 72

def cost(t):
    t = t.lstrip()
    if t.startswith("s_") or t.startswith("@VW"): return 0
    return 2 if t.split()[0] in ("v_exp_f32", "v_rcp_f32", "v_sqrt_f32") else 1

def gelu4(a, cs, C, D, pk):
    T = TMP; o = []
    if pk:
        ls = []
        for h in range(2):
            x = T + 4*h; y = x + 2; A = a + 2*h; c = cs + 2*h
            ls.append([f"  v_pk_fma_f32 v[{x}:{x+1}], v[{C}:{C+1}], v[{c}:{c+1}], v[{A}:{A+1}] op_sel_hi:[0,1,1]",
                       f"  v_pk_mul_f32 v[{y}:{y+1}], v[{x}:{x+1}], v[{x}:{x+1}]",
                       f"  v_pk_fma_f32 v[{y}:{y+1}], v[{C+2}:{C+3}], v[{y}:{y+1}], v[{C}:{C+1}] op_sel:[0,0,1] op_sel_hi:[0,1,1]",
                       f"  v_pk_mul_f32 v[{y}:{y+1}], v[{y}:{y+1}], v[{x}:{x+1}]",
                       f"  v_exp_f32 v{y}, v{y}", f"  v_exp_f32 v{y+1}, v{y+1}",
                       f"  v_pk_fma_f32 v[{y}:{y+1}], v[{y}:{y+1}], v[{C+2}:{C+3}], v[{C+2}:{C+3}] op_sel:[0,1,1] op_sel_hi:[1,1,1]",
                       f"  v_rcp_f32 v{y}, v{y}", f"  v_rcp_f32 v{y+1}, v{y+1}",
                       f"  v_pk_mul_f32 v[{x}:{x+1}], v[{x}:{x+1}], v[{y}:{y+1}]",
                       f"  v_cvt_pk_bf16_f32 v{D+h}, v{x}, v{x+1}"])
        return zip_lists(*ls)
    ls = []
    for e in range(4):
        x = T + e; y = T + 4 + e
        ls.append([f"  v_fma_f32 v{x}, v{C}, v{cs+e}, v{a+e}", f"  v_mul_f32 v{y}, v{x}, v{x}", f"  v_fma_f32 v{y}, v{C+2}, v{y}, v{C+1}",
                   f"  v_mul_f32 v{y}, v{y}, v{x}", f"  v_exp_f32 v{y}, v{y}", f"  v_fma_f32 v{y}, v{y}, v{C+3}, v{C+3}", f"  v_rcp_f32 v{y}, v{y}",
                   f"  v_mul_f32 v{x}, v{x}, v{y}"])
    for i in range(8):
        for l in ls: o.append(l[i])
    return o + [f"  v_cvt_pk_bf16_f32 v{D}, v{T}, v{T+1}", f"  v_cvt_pk_bf16_f32 v{D+1}, v{T+2}, v{T+3}"]

def ln_s(out, mean, var, m, s, t):
    out += [f"  v_cvt_pk_bf16_f32 v{t}, v{mean}, v{var}", f"  v_lshlrev_b32 v{m}, 16, v{t}", f"  v_and_b32 v{s}, s40, v{t}",
            f"  v_add_f32 v{s}, {EPS}, v{s}", f"  v_cvt_pk_bf16_f32 v{s}, v{s}, v{s}", f"  v_lshlrev_b32 v{s}, 16, v{s}",
            f"  v_sqrt_f32 v{s}, v{s}", f"  v_cvt_pk_bf16_f32 v{s}, v{s}, v{s}", f"  v_lshlrev_b32 v{s}, 16, v{s}"]
def mean_var(out, s1, s2):
    out += [f"  v_mul_f32 v{s1}, {INV640}, v{s1}", f"  v_mul_f32 v{s2}, {INV640}, v{s2}", f"  v_fma_f32 v{s2}, -v{s1}, v{s1}, v{s2}", f"  v_max_f32 v{s2}, 0, v{s2}"]
def gelu_consts(out, C, t):
    out += [f"  v_rcp_f32 v{t}, v{C+3}", f"  v_mul_f32 v{C+1}, {f32(K1)}, v{t}", f"  v_mul_f32 v{C+2}, v{t}, v{t}", f"  v_mul_f32 v{C+2}, v{C+2}, v{t}", f"  v_mul_f32 v{C+2}, {f32(K2)}, v{C+2}"]

class Stream:
    def __init__(self, k, vm): self.k = k; self.vm = vm; self.uid = 0; self.t = 90; self.ring = [WB + 4*i for i in range(8)]
    def need_ready(self, n):
        self.uid += 1; u = self.uid; k = self.k
        k(f"  s_cmp_ge_u32 s77, {n}\n  s_cbranch_scc1 GG_ro{u}")
        k(f"GG_rd{u}:\n  ds_read_b128 v[{RT4}:{RT4+3}], v{VFL}\n  s_add_u32 s76, s76, 1\n  s_waitcnt lgkmcnt(0)\n  v_min_u32 v{RT4}, v{RT4}, v{RT4+1}\n  v_min3_u32 v{RT4}, v{RT4}, v{RT4+2}, v{RT4+3}\n  v_readfirstlane_b32 s77, v{RT4}\n  s_cmp_ge_u32 s77, {n}\n  s_cbranch_scc1 GG_ro{u}\n  s_cmp_lt_u32 s76, {LDS_SPIN}\n  s_cbranch_scc1 GG_rd{u}\nGG_ro{u}:")
    def free_text(self, n): return f"  v_mov_b32 v{self.t+1}, {n}\n  ds_write_b32 v{VFW}, v{self.t+1}"
    def run(self, N, mfma_of, lds_off_of, ready_before, free_after, xwait_of, vtarget, fillers, extra_of, GW=2, FPER=2, stamps={}, bases=(3, 1, V128K), hook=None):
        PD = len(self.ring) - 1; k = self.k; vm = self.vm; fi = [0]; ops = []; st = {"nrd": 0, "cov": -1}
        def rd():
            j = st["nrd"]; st["nrd"] += 1
            if j in ready_before: self.need_ready(ready_before[j])
            off = lds_off_of(j); r = self.ring[j % len(self.ring)]
            k(f"  ds_read_b128 v[{r}:{r+3}], v{bases[off >> 16]} offset:{off & 65535}"); ops.append(j)
        def fill(i, n):
            while n > 0 and fi[0] < len(fillers) and fillers[fi[0]][0] <= i:
                t = fillers[fi[0]][1]; fi[0] += 1
                if t.startswith("@ST") or t.startswith("@HS"): vm.issue(t[3:], "S")
                elif t.startswith("@VW"): vm.wait(t[3:]); continue
                else: k(t)
                n -= cost(t)
        pend = []
        def shadow(i, last_of_step):
            lim = min(N, i + PD + (1 if last_of_step else 0))
            if st["nrd"] < lim and st["nrd"] <= i + PD - 1 + (1 if last_of_step else 0) and (st["nrd"] < i + PD - 1 or not (vm.qpos < min(vtarget(i), len(vm.q)) or pend) or last_of_step): rd()
            elif vm.qpos < min(vtarget(i), len(vm.q)): vm.upto(vm.qpos + 1)
            elif pend: k(pend.pop(0)); ops.append(None)
            else: fill(i, FPER)
        while st["nrd"] < min(PD, N): rd()
        if hook: hook()
        for i in range(N):
            if i in stamps: k.stamp(stamps[i])
            while st["nrd"] <= i: rd()
            if st["cov"] < i:
                last = min(st["nrd"] - 1, i + GW - 1)
                idx = ops.index(last); k(f"  s_waitcnt lgkmcnt({min(15, len(ops) - 1 - idx)})"); del ops[:idx + 1]; st["cov"] = last
            xt = xwait_of(i)
            if xt and not P("NOXW", 0): vm.wait(xt)
            ms = mfma_of(i, self.ring[i % len(self.ring)]); ex = extra_of(i)
            for n, m in enumerate(ms + ex):
                k(m); shadow(i, n >= len(ms) - 1)
            if len(ms) + len(ex) == 1:
                if vm.qpos < min(vtarget(i), len(vm.q)): vm.upto(vm.qpos + 1)
                elif pend: k(pend.pop(0)); ops.append(None)
            if i in free_after: pend.append(self.free_text(free_after[i]))
        for p_ in pend: k(p_)
        vm.upto(10**9)
        fill(10**9, 10**9)

import os
STP = os.environ.get("STP", "g1,s1,g2,s2,g3,s3").split(",")
XF = os.environ.get('XF', ' sc1')
SLT = int(os.environ.get('SLT', 0))
KGS = KG_STRIDE; PSL = P("PSLEEP", 0)
LSTAMP = bool(os.environ.get('STAMPS'))
VH = 151; RT4 = 140; VFL2 = 13; VFL = 153; VFW = 0
def gen_gg(k):
    def sp(name):
        if name in STP: k.stamp(1 + STP.index(name))
    def spd(d): return {i: 1 + STP.index(n) for i, n in d.items() if n in STP}
    vm = VM(k); st = Stream(k, vm)
    uid = [0]
    def hstore(text, pre="", post="", local=SLT >= 1):
        if not local: return f"@HS{pre}{text} sc1{post}"
        uid[0] += 1; n = uid[0]
        return f"@HS{pre}  s_cmp_lg_u32 s75, 0\n  s_cbranch_scc1 GG_hf{n}\n{text} sc1\n  s_branch GG_he{n}\nGG_hf{n}:\n{text}\nGG_he{n}:{post}"
    k(f"  s_load_dwordx2 s[44:45], s[0:1], {KA_OUT}")
    k(f"  v_lshlrev_b32 v3, 4, v2\n  v_mov_b32 v{VFL}, {FLG}")
    k(f"  s_and_b32 s19, s2, 7\n  s_lshl_b32 s4, s19, 2\n  s_bfe_u32 s5, s2, 0x20003\n  s_add_u32 s4, s4, s5\n  s_lshr_b32 s5, s2, 5\n  s_lshr_b32 s25, s2, 4")
    k("  s_and_b32 s74, s4, 3\n  s_lshl_b32 s74, s74, 1\n  s_add_u32 s74, s74, s5\n  s_mul_i32 s74, s74, 3\n  s_lshr_b32 s74, s74, 1\n  s_sub_u32 s12, s74, 12\n  s_cmp_ge_u32 s74, 12\n  s_cselect_b32 s74, s12, s74")
    k("  s_add_u32 s65, s4, s5\n  s_and_b32 s65, s65, 3\n  s_bfe_u32 s66, s2, 0x10003\n  s_lshl_b32 s66, s66, 1\n  s_add_u32 s66, s66, s25\n  s_and_b32 s66, s66, 3")
    k("  s_mov_b32 s76, 0\n  s_cmp_ge_u32 s3, 4\n  s_cbranch_scc1 GG_loader")
    k(f"  v_and_b32 v6, 15, v2\n  v_lshrrev_b32 v7, 4, v2\n  v_add_u32 v1, 0x10000, v3\n  v_add_u32 v{V128K}, 0x20000, v3")
    k(f"  s_lshl_b32 s12, s3, 2\n  s_add_u32 s12, s12, {FLG+16}\n  v_mov_b32 v{VFW}, s12")
    k(f"  v_mul_u32_u24 v4, {2*QS}, v7\n  v_lshl_add_u32 v4, v6, 3, v4\n  v_add_u32 v15, {QS}, v4\n  v_mul_u32_u24 v5, {KGS}, v7\n  v_lshl_add_u32 v5, v6, 4, v5")
    k("  s_mov_b32 s40, 0xffff0000\n  s_mov_b32 s41, 0x3f803f80")
    k("  v_mov_b32 v8, s41\n  v_mov_b32 v9, s41\n  v_mov_b32 v10, s41\n  v_mov_b32 v11, s41")
    k(f"  s_mul_i32 s67, s19, {SLAB}")
    k("  s_mul_i32 s20, s5, 5\n  s_add_u32 s20, s20, 1\n  s_lshr_b32 s20, s20, 1\n  s_lshr_b32 s21, s5, 1\n  s_mul_i32 s21, s21, 5\n  s_add_u32 s21, s21, 2\n  s_and_b32 s22, s5, 1")
    k(f"  s_mul_i32 s48, s20, {8*QS}\n  s_add_u32 s49, s48, {8*QS}\n  s_mul_i32 s50, s21, {8*QS}\n  s_lshl_b32 s23, s22, 3\n  s_mul_i32 s12, s22, {QS}\n  s_add_u32 s50, s50, s12")
    k(f"  s_mul_i32 s62, s20, {4*KGS}\n  s_add_u32 s63, s62, {4*KGS}\n  s_mul_i32 s64, s21, {4*KGS}\n  s_lshl_b32 s12, s22, 11\n  s_add_u32 s64, s64, s12")
    k("  s_lshl_b32 s6, s4, 2\n  s_add_u32 s6, s6, s3\n  s_lshl_b32 s18, s6, 7\n  s_and_b32 s68, s6, 15")
    k("  s_lshl_b32 s69, s68, 8\n  s_add_u32 s69, s69, s67\n  s_lshl_b32 s12, s68, 7\n  s_sub_u32 s64, s64, s12")
    k(f"  v_mul_u32_u24 v{VH}, {KGS}, v7\n  v_lshl_add_u32 v{VH}, v6, 3, v{VH}")
    k("  s_lshl_b32 s24, s19, 1\n  s_bfe_u32 s27, s2, 0x10003\n  s_add_u32 s24, s24, s27")
    k("  s_lshl_b32 s26, s24, 3\n  s_lshl_b32 s12, s3, 1\n  s_add_u32 s26, s26, s12\n  s_and_b32 s27, s26, 15")
    k("  s_sub_u32 s31, s74, 1")
    SLO = lambda j: (j % NSL) * SLOT
    def emit_hs(t): vm.issue(t[3:], "S")
    def publish(n, flag_off):
        vm.wait("S"); sp(f"s{n}a")
        k(flag_off)
        k(f"  v_mov_b32 v{PT}, 1\n  v_mov_b32 v{PT+1}, 0\n  s_mov_b64 exec, 1")
        t = f"  buffer_store_dword v{PT}, v{PT+1}, s[36:39], s12 offen"
        vm.issue(f"  s_cmp_lg_u32 s75, 0\n  s_cbranch_scc1 GG_ff{n}\n{t} sc1\n  s_branch GG_fe{n}\nGG_ff{n}:\n{t}\nGG_fe{n}:", "F")
        k("  s_mov_b64 exec, -1")
    def poll(n, setup):
        k(setup)
        k("  s_mov_b32 s13, 0\n  s_mov_b64 exec, 0xffff")
        k(f"GG_poll{n}:")
        k(f"  buffer_load_dword v{PT}, v{PT+1}, s[36:39], 0 offen sc1\n  s_waitcnt vmcnt(0)\n  v_cmp_ne_u32 vcc, 0, v{PT}\n  s_add_u32 s13, s13, 1")
        k(f"  s_cmp_eq_u64 vcc, exec\n  s_cbranch_scc1 GG_np{n}\n  s_sleep {PSL}\n  s_cmp_lt_u32 s13, {SPIN_LIMIT}\n  s_cbranch_scc1 GG_poll{n}")
        k(f"GG_np{n}:\n  s_mov_b64 exec, -1")
        vm.done = len(vm.ops) - 1

    def xrot_setup(stride, rreg):
        k(f"  s_mov_b32 s8, s7\n  s_add_u32 s9, s7, {20*stride}\n  s_mul_i32 s12, s{rreg}, {5*stride}\n  s_add_u32 s7, s7, s12\n  s_sub_u32 s7, s7, {stride}")
    def xadv(i, stride):
        return f"  s_add_u32 s7, s7, {stride}" + ("\n  s_cmp_eq_u32 s7, s9\n  s_cselect_b32 s7, s8, s7" if (i % 5 == 0 and i) else "")
    def xpush_s(which, i, rt, reg, lrt_reg):
        pre = xadv(i, 4*KGS) if rt == 0 else None
        if i % 5 != 2:
            vm.push(pre, f"  buffer_load_dwordx4 v[{reg}:{reg+3}], v5, s[36:39], s7 offen offset:{256*rt}{XF}", f"X{which}_{i}")
        else:
            if rt == 0: pre += f"\n  s_lshl_b32 s11, s{lrt_reg}, 7\n  s_sub_u32 s11, s7, s11"
            vm.push(pre, f"  buffer_load_dwordx2 v[{reg}:{reg+1}], v{VH}, s[36:39], s11 offen offset:{128*rt}{XF}", f"X{which}_{i}")
            vm.push(None, f"  buffer_load_dwordx2 v[{reg+2}:{reg+3}], v{VH}, s[36:39], s11 offen offset:{2048+128*rt}{XF}", f"X{which}_{i}")

    def gemm_phase(which, J0, NT, RT, NB, XR, pre_fill, epi_tile, store, extra, LOOK, FPER, stamps, before=None):
        KS = 20
        steps = [(nt, ks) for ks in range(KS) for nt in range(NB)] + [(nt, ks) for nt in range(NB, NT) for ks in range(KS)]
        last_step = {nt: max(i for i, s in enumerate(steps) if s[0] == nt) for nt in range(NT)}
        NBS = NB * KS
        fillers = list(pre_fill(NBS))
        N = len(steps); cur = 0.0
        for e, x in fillers: cur = max(cur, e) + cost(x) / (FPER * RT)
        inside = True
        for j in range(3):
            tiles = [t for t in (2*j, 2*j+1) if t < NT]
            for t in tiles:
                for rt in range(RT):
                    e = max(last_step[t], NBS - 1) + 3
                    u = epi_tile(t, rt, False)
                    need = sum(cost(x) for x in u) / (FPER * RT)
                    if inside and max(cur, e) + need <= N + SLACK: cur = max(cur, e) + need
                    else: inside = False; u = epi_tile(t, rt, True); e = 10**8
                    fillers += [(e, x) for x in u]
                    if t == tiles[-1]: fillers += [(e, x) for x in store(j, rt)]
        def mfma_of(i, w):
            nt, ks = steps[i]; out = []
            for rt in range(RT):
                a = ACC + (nt * RT + rt) * 4
                c = "0" if ks == 0 else f"v[{a}:{a+3}]"
                out.append(f"  v_mfma_f32_16x16x32_bf16 v[{a}:{a+3}], v[{w}:{w+3}], {XR(rt, ks)}, {c}")
            return out
        xt = lambda ks: f"X{which}_{ks}"
        def xwait(i): return xt(steps[i][1]) if (i < NBS and steps[i][0] == 0) else None
        def vtarget(i): return vm.index_of(xt(steps[i][1])) + 1 + LOOK if i < NBS else vm.qpos + 1
        assert NB == NT
        ready = {20 * c: J0 + c + 1 for c in range(NT)}; free = {20 * c + 19: J0 + c + 1 for c in range(NT)}
        def hook():
            if before: before()
            vm.upto(vm.index_of(xt(P("XFIRST", 4))) + 1)
        if before is None: hook()
        st.run(N, mfma_of, lambda j: SLO(J0 + j // 20) + (j % 20) * 1024, ready, free, xwait, vtarget, fillers,
               lambda i: extra(steps[i], i < NBS), GW=P('GW', 4) if RT == 1 else 2, FPER=FPER, stamps=stamps(NBS), hook=hook if before else None)

    VS1 = 88
    k("  s_lshr_b32 s12, s5, 1\n  s_lshr_b32 s13, s12, 1\n  s_add_u32 s13, s13, 1\n  s_sub_u32 s14, 0, s13\n  s_and_b32 s12, s12, 1\n  s_cmp_eq_u32 s12, 0\n  s_cselect_b32 s13, s14, s13")
    k(f"  s_lshl_b32 s12, s13, 3\n  s_add_u32 s7, s18, s12\n  s_add_u32 s7, s7, {WS_HQ}")
    xrot_setup(8*QS, 65)
    k(f"  s_lshl_b32 s12, s6, 4\n  s_add_u32 s12, s12, s13\n  v_add_u32 v{TMP+1}, s12, v6\n  s_movk_i32 s12, 0x800\n  v_cmp_gt_u32 s[60:61], s12, v{TMP+1}")
    k(f"  v_lshlrev_b32 v{VS1}, 3, v6\n  s_and_b32 s12, s5, 5\n  s_cmp_eq_u32 s12, 0\n  s_cselect_b32 s70, 0xffff, 0\n  s_mov_b32 s71, 0\n  s_lshl_b32 s12, s5, 6\n  v_add_u32 v{VS1}, s12, v{VS1}")
    k(f"  v_lshlrev_b32 v{TMP}, 5, v7\n  s_lshl_b32 s51, s20, 7\n  s_add_u32 s51, s51, {WS_CS1}\n  s_lshl_b32 s52, s21, 7\n  s_lshl_b32 s12, s22, 4\n  s_add_u32 s52, s52, s12\n  s_add_u32 s52, s52, {WS_CS1}")
    k(f"  v_and_b32 v{ST}, 3, v6\n  v_cmp_eq_u32 s[42:43], 1, v{ST}\n  v_cmp_eq_u32 s[58:59], 2, v{ST}\n  v_cmp_eq_u32 s[78:79], 3, v{ST}\n  v_lshrrev_b32 v{ST}, 2, v6\n  v_cmp_eq_u32 s[56:57], v7, v{ST}")
    k(f"  s_add_u32 s17, s69, {SL_KG1}")
    for j in range(3): k(f"  s_add_u32 s{53+j}, s{62+j}, s17")
    k(f"  s_add_u32 s16, s18, {WS_HQ}")
    for j in range(3): k(f"  s_add_u32 s{72+j}, s16, s{48+j}")
    k("  s_getreg_b32 s30, hwreg(HW_REG_XCC_ID, 0, 4)\n  s_or_b32 s30, s30, 0x100")
    k(f"  s_lshl_b32 s75, s19, 7\n  s_add_u32 s75, s75, {WS_XID}\n  s_lshr_b32 s14, s2, 3\n  s_lshl_b32 s14, s14, 2\n  v_mov_b32 v{TMP+2}, s14\n  v_mov_b32 v{TMP+3}, s30")
    k(f"  s_cmp_eq_u32 s3, 0\n  s_cselect_b32 s10, 1, 0\n  s_mov_b32 s11, 0\n  v_and_b32 v89, 31, v2\n  v_lshlrev_b32 v89, 2, v89")
    vm.push("  s_mov_b64 exec, s[10:11]", f"  buffer_store_dword v{TMP+3}, v{TMP+2}, s[36:39], s75 offen sc1\n  s_mov_b64 exec, -1", "I")
    for ks in range(20):
        vm.push(xadv(ks, 8*QS), f"  buffer_load_dwordx2 v[{XV+4*ks}:{XV+4*ks+1}], v4, s[36:39], s7 offen{XF}", f"X1_{ks}")
        vm.push(None, f"  buffer_load_dwordx2 v[{XV+4*ks+2}:{XV+4*ks+3}], v15, s[36:39], s7 offen{XF}", f"X1_{ks}")
    for lt in range(5):
        vm.push(None, f"  buffer_load_dwordx4 v[{CS+4*lt}:{CS+4*lt+3}], v{TMP}, s[36:39], s{51 if lt < 4 else 52} offen offset:{(128*(lt>>1) + 16*(lt&1)) if lt < 4 else 0} sc1", "CS")
    for lt in range(5):
        vm.push(None, f"  buffer_load_dwordx2 v[{HP+2*lt}:{HP+2*lt+1}], v{15 if (lt < 4 and lt & 1) else 4}, s[36:39], s{72+(lt>>1)} offen{XF}", "H")
    vm.push(None, f"  buffer_load_dword v{PT+2}, v89, s[36:39], s75 offen sc1", "XID")
    k("  s_waitcnt lgkmcnt(0)")
    k(f"  s_mov_b32 s46, {ACT_BYTES}\n  s_mov_b32 s47, 0x00020000")
    if P("FLT", 1):
        k(f"  v_and_b32 v{TMP+4}, 15, v2\n  v_lshrrev_b32 v{TMP+5}, 4, v2\n  v_min_u32 v{TMP+5}, 2, v{TMP+5}\n  v_lshrrev_b32 v{TMP+6}, 1, v{TMP+5}\n  s_lshl_b32 s12, s19, 4\n  v_add_u32 v{TMP+4}, s12, v{TMP+4}\n  v_lshrrev_b32 v{TMP+4}, v{TMP+6}, v{TMP+4}")
        k(f"  v_lshlrev_b32 v{TMP+4}, 7, v{TMP+4}\n  v_lshl_add_u32 v{TMP+4}, v{TMP+5}, 14, v{TMP+4}\n  s_mov_b32 s12, {WS_FL1}")
        vm.issue(f"  buffer_load_dword v{PT+1}, v{TMP+4}, s[36:39], s12 offen sc1", "T")
    vm.upto(1)
    if P("GG_PRIO", 1): k("  s_setprio 2")
    if P("G1_TW", 0): vm.wait("T")
    k("  s_waitcnt lgkmcnt(0)\n  s_mov_b32 s77, 0")
    sp("g1t")
    MODE = (f"  s_mov_b32 s13, 0\nGG_xr:\n  v_cmp_ne_u32 vcc, 0, v{PT+2}\n  s_cmp_eq_u64 vcc, -1\n  s_cbranch_scc1 GG_xo\n  s_add_u32 s13, s13, 1\n  s_cmp_ge_u32 s13, {SPIN_LIMIT}\n  s_cbranch_scc1 GG_xo\n"
            f"  buffer_load_dword v{PT+2}, v89, s[36:39], s75 offen sc1\n  s_waitcnt vmcnt(0)\n  s_branch GG_xr\nGG_xo:\n"
            f"  v_cmp_eq_u32 vcc, s30, v{PT+2}\n  s_cmp_eq_u64 vcc, -1\n  s_cselect_b32 s75, {0 if os.environ.get('FORCE_SLOW') else 1}, 0")
    def pre1(NBS):
        o = [f"  v_cndmask_b32 v{ST+1}, v{GQ}, v{GQ+1}, s[42:43]", f"  v_cndmask_b32 v{ST+1}, v{ST+1}, v{GQ+2}, s[58:59]", f"  v_cndmask_b32 v{ST+1}, v{ST+1}, v{GQ+3}, s[78:79]",
             f"  v_cndmask_b32 v{ST+1}, 0, v{ST+1}, s[56:57]", f"  v_mov_b32 v{ST}, v{GS}"]
        red_q(o, ST+1, ST+2)
        mean_var(o, ST, ST+1)
        ln_s(o, ST, ST+1, MR, ST+3, ST+2)
        o += [f"  v_rcp_f32 v{MR+1}, v{ST+3}", f"  v_sub_f32 v{ST}, v{ST}, v{MR}", f"  v_mul_f32 v{ST}, v{ST}, v{MR+1}", f"  v_mul_f32 v{ST+1}, v{ST+1}, v{MR+1}", f"  v_mul_f32 v{ST+1}, v{ST+1}, v{MR+1}"]
        ln_s(o, ST, ST+1, ST+4, ST+5, ST+2)
        o += [f"  v_fma_f32 v12, -v{ST+4}, v{ST+3}, -v{MR}", f"  v_mul_f32 v15, v{ST+3}, v{ST+5}"]
        gelu_consts(o, 12, ST+2)
        o += [f"  s_lshl_b32 s14, s6, 8\n  s_add_u32 s14, s14, {WS_ST1}",
              hstore(f"  buffer_store_dwordx2 v[{MR}:{MR+1}], v{VS1}, s[36:39], s14 offen", "  s_mov_b64 exec, s[70:71]\n", "\n  s_mov_b64 exec, -1", local=False), "@VWCS", "@VWXID", MODE]
        return [(NBS + 3, t) for t in o]
    def epi1(nt, rt, pk):
        D = DR + 2 * (nt & 1)
        return gelu4(ACC + 4*nt, CS + 4*nt, 12, D, pk) + [f"  v_cndmask_b32 v{D}, 0, v{D}, s[60:61]", f"  v_cndmask_b32 v{D+1}, 0, v{D+1}, s[60:61]"]
    def store1(j, rt):
        w = 4 if j < 2 else 2
        return [hstore(f"  buffer_store_dwordx{w} v[{DR}:{DR+w-1}], v{5 if j < 2 else VH}, s[36:39], s{53+j} offen")]
    def extra1(step, inB):
        nt, ks = step
        if inB and nt < 2:
            x = XV + 4*ks
            if nt == 0: return [f"  v_mfma_f32_16x16x32_bf16 v[{GS}:{GS+3}], v[8:11], v[{x}:{x+3}], {'0' if ks == 0 else f'v[{GS}:{GS+3}]'}"]
            return [f"  v_mfma_f32_16x16x32_bf16 v[{GQ}:{GQ+3}], v[{x}:{x+3}], v[{x}:{x+3}], {'0' if ks == 0 else f'v[{GQ}:{GQ+3}]'}"]
        return []
    def before1():
        k(f"  s_and_b32 s12, s2, 63\n  s_lshl_b32 s12, s12, 7\n  s_add_u32 s12, s12, {WS_GOH}\n  v_lshl_add_u32 v{PT}, v2, 2, s12\n  s_mov_b32 s13, 0\n  s_mov_b64 exec, 0x1ff\nGG_gh:\n  buffer_load_dword v{PT+1}, v{PT}, s[36:39], 0 offen sc1\n  s_waitcnt vmcnt(0)\n  v_cmp_ne_u32 vcc, 0, v{PT+1}\n  s_add_u32 s13, s13, 1")
        k(f"  s_cmp_eq_u64 vcc, exec\n  s_cbranch_scc1 GG_go\n  s_sleep {P('GSLEEP', 4)}\n  s_cmp_lt_u32 s13, {SPIN_LIMIT}\n  s_cbranch_scc1 GG_gh\nGG_go:\n  s_mov_b64 exec, -1")
        vm.done = len(vm.ops) - 1
        sp("g0")
    X1R = lambda rt, ks: f"v[{XV+4*ks}:{XV+4*ks+3}]"
    R8 = list(st.ring)
    st.ring = (R8 + [76, 80, 84, 92, 164, 168])[:P("G1_WR", 14)]
    gemm_phase(1, 0, 5, 1, P("G1_NB", 5), X1R, pre1, epi1, store1, extra1, P("G1_LOOK", 16), P("G1_FPER", 2),
               lambda NBS: spd({2: "g1a", NBS // 2: "g1h", NBS - 1: "g1b"}), before=before1)
    sp("g1")
    k(f"  v_lshlrev_b32 v{ST+7}, 3, v6\n  v_add_u32 v{ST+7}, 8, v{ST+7}\n  v_cmp_eq_u32 vcc, 15, v6\n  v_mov_b32 v{ST+6}, {128+14*8}\n  v_cndmask_b32 v{ST+7}, v{ST+7}, v{ST+6}, vcc")
    vm.issue(f"  buffer_load_dwordx2 v[{MR}:{MR+1}], v{ST+7}, s[36:39], s14 offen sc1", "ST1")
    publish(1, f"  s_lshl_b32 s12, s6, 7\n  s_lshl_b32 s13, s5, 2\n  s_add_u32 s12, s12, s13\n  s_add_u32 s12, s12, {WS_FL1}")
    k(f"  s_mov_b32 s7, s17\n  s_add_u32 s17, s69, {SL_KG0}")
    xrot_setup(4*KGS, 65)
    for j in range(3): k(f"  s_add_u32 s{54+j}, s17, s{62+j}")
    st.t = 8
    st.ring = (R8 + [88, 92, 136, 144])[:P("G2_WR", 14)]
    for ks in range(20): xpush_s(2, ks, 0, XV + 4*ks, 68)
    k(f"  v_lshlrev_b32 v{ST+6}, 5, v7\n  s_mul_i32 s51, s25, 384\n  s_add_u32 s51, s51, {WS_CS3}")
    for nt in range(6): vm.push(None, f"  buffer_load_dwordx4 v[{CS+4*nt}:{CS+4*nt+3}], v{ST+6}, s[36:39], s51 offen offset:{128*(nt>>1) + 16*(nt&1)} sc1", "CS")
    XB = 68
    def before2():
        vm.wait("ST1")
        k(f"  s_mov_b32 s13, 0\nGG_s1:\n  v_cmp_ne_u32 vcc, 0, v{MR+1}\n  s_add_u32 s13, s13, 1\n  s_cmp_eq_u64 vcc, -1\n  s_cbranch_scc1 GG_s1o\n  s_cmp_ge_u32 s13, {SPIN_LIMIT}\n  s_cbranch_scc1 GG_s1o")
        k(f"  buffer_load_dwordx2 v[{MR}:{MR+1}], v{ST+7}, s[36:39], s14 offen sc1\n  s_waitcnt vmcnt(0)\n  s_branch GG_s1\nGG_s1o:")
        ls = []
        for i in range(10):
            o = XB + 2*i; r = HP + i; t = TMP + (i & 3)
            ls.append([f"  v_lshlrev_b32 v{o}, 16, v{r}", f"  v_and_b32 v{o+1}, s40, v{r}",
                    f"  v_pk_add_f32 v[{o}:{o+1}], v[{o}:{o+1}], v[{MR}:{MR+1}] op_sel_hi:[1,0] neg_lo:[0,1] neg_hi:[0,1]",
                    f"  v_cvt_pk_bf16_f32 v{t}, v{o}, v{o+1}", f"  v_lshlrev_b32 v{o}, 16, v{t}", f"  v_and_b32 v{o+1}, s40, v{t}",
                    f"  v_pk_mul_f32 v[{o}:{o+1}], v[{o}:{o+1}], v[{MR}:{MR+1}] op_sel:[0,1] op_sel_hi:[1,1]",
                    f"  v_cvt_pk_bf16_f32 v{t}, v{o}, v{o+1}", f"  v_lshlrev_b32 v{o}, 16, v{t}", f"  v_and_b32 v{o+1}, s40, v{t}"])
        for l in ls:
            for x in l: k(x)
        poll(1, f"  s_lshl_b32 s12, s6, 7\n  s_add_u32 s12, s12, {WS_FL1}\n  v_and_b32 v{PT+1}, 7, v2\n  v_lshl_add_u32 v{PT+1}, v{PT+1}, 2, s12")
        sp("s1")
    def epi2(nt, rt, pk):
        a = ACC + 4*nt; D = X1P + 2*nt; ls = []
        for h in range(2):
            t = TMP + 2*h; x = XB + 4*nt + 2*h
            add = [f"  v_pk_add_f32 v[{t}:{t+1}], v[{t}:{t+1}], v[{x}:{x+1}]"] if pk else [f"  v_add_f32 v{t}, v{t}, v{x}", f"  v_add_f32 v{t+1}, v{t+1}, v{x+1}"]
            ls.append([f"  v_cvt_pk_bf16_f32 v{D+h}, v{a+2*h}, v{a+2*h+1}", f"  v_lshlrev_b32 v{t}, 16, v{D+h}", f"  v_and_b32 v{t+1}, s40, v{D+h}"] + add + [f"  v_cvt_pk_bf16_f32 v{D+h}, v{t}, v{t+1}"])
        return zip_lists(*ls)
    def store2(j, rt):
        w = 4 if j < 2 else 2
        return [hstore(f"  buffer_store_dwordx{w} v[{X1P+4*j}:{X1P+4*j+w-1}], v{5 if j < 2 else VH}, s[36:39], s{54+j} offen")]
    gemm_phase(2, 5, 5, 1, P("G2_NB", 5), X1R, lambda NBS: [], epi2, store2, lambda s, b: [], P("G2_LOOK", 10), P("G2_FPER", 2),
               lambda NBS: spd({2: "g2a", NBS // 2: "g2h", NBS - 1: "g2b"}), before=before2)
    for i in range(10):
        k(f"  v_dot2_f32_bf16 v{ST+4}, v{X1P+i}, s41, {'0' if i == 0 else f'v{ST+4}'}\n  v_dot2_f32_bf16 v{ST+5}, v{X1P+i}, v{X1P+i}, {'0' if i == 0 else f'v{ST+5}'}")
    o = []; o2 = []; red_q(o, ST+4, TMP); red_q(o2, ST+5, TMP+1)
    for l in zip_lists(o, o2): k(l)
    k(f"  s_lshl_b32 s14, s68, 10\n  s_lshl_b32 s12, s5, 7\n  s_add_u32 s14, s14, s12\n  s_add_u32 s14, s14, s67\n  s_add_u32 s14, s14, {SL_ST2}\n  v_lshlrev_b32 v{TMP}, 3, v6")
    emit_hs(hstore(f"  buffer_store_dwordx2 v[{ST+4}:{ST+5}], v{TMP}, s[36:39], s14 offen", "  s_mov_b64 exec, 0xffff\n", "\n  s_mov_b64 exec, -1"))
    sp("g2")
    publish(2, f"  s_lshl_b32 s12, s6, 7\n  s_lshl_b32 s13, s5, 2\n  s_add_u32 s12, s12, s13\n  s_add_u32 s12, s12, {WS_FL2}")
    k(f"  s_lshl_b32 s7, s27, 8\n  s_add_u32 s7, s7, s67\n  s_add_u32 s7, s7, {SL_KG0}")
    xrot_setup(4*KGS, 66)
    k(f"  v_lshlrev_b32 v{TMP+1}, 3, v6\n  v_lshl_add_u32 v{TMP+1}, v7, 8, v{TMP+1}\n  s_lshl_b32 s14, s27, 10\n  s_add_u32 s14, s14, s67\n  s_add_u32 s14, s14, {SL_ST2}")
    k(f"  s_mul_i32 s17, s27, {48*1024}\n  s_mul_i32 s12, s25, 3072\n  s_add_u32 s17, s17, s12\n  s_add_u32 s17, s17, s67\n  s_add_u32 s17, s17, {SL_G}\n  s_add_u32 s16, s17, {48*1024}")
    st.ring = R8
    X3R = lambda rt, ks: f"v[{XV+((ks%10)*2+rt)*4}:{XV+((ks%10)*2+rt)*4+3}]"
    for ks in range(20):
        for rt in range(2):
            xpush_s(3, ks, rt, XV + ((ks % 10) * 2 + rt) * 4, 27)
        if ks == 3:
            for rt in range(2):
                for h in range(2): vm.push(None, f"  buffer_load_dwordx2 v[{ST+4*rt+2*h}:{ST+4*rt+2*h+1}], v{TMP+1}, s[36:39], s14 offen offset:{1024*rt+128*h} sc1", "ST")
    CN = [12, AL2]
    def before3():
        poll(2, f"  s_lshl_b32 s12, s26, 7\n  s_add_u32 s12, s12, {WS_FL2}\n  v_and_b32 v{PT+1}, 7, v2\n  v_lshl_add_u32 v{PT+1}, v{PT+1}, 2, s12\n  v_bfe_u32 v{PT}, v2, 3, 1\n  v_lshl_add_u32 v{PT+1}, v{PT}, 7, v{PT+1}")
        sp("s2")
    def pre3(NBS):
        pre = ["@VWST"]
        for rt in range(2):
            b = ST + 4*rt; C = CN[rt]
            pre += [f"  v_add_f32 v{b}, v{b}, v{b+2}", f"  v_add_f32 v{b+1}, v{b+1}, v{b+3}"]
            red_q(pre, b, b+2); red_q(pre, b+1, b+2)
            mean_var(pre, b, b+1)
            ln_s(pre, b, b+1, b+2, C+3, b+3)
            pre += [f"  v_sub_f32 v{C}, 0, v{b+2}"]
            gelu_consts(pre, C, b+3)
        return [(40, t) for t in pre]
    def epi3(nt, rt, pk): return gelu4(ACC + (nt*2+rt)*4, CS + 4*nt, CN[rt], DR + 4*rt + 2*(nt & 1), pk)
    def store3(j, rt):
        if SLT < 2: return [f"@ST  buffer_store_dwordx4 v[{DR+4*rt}:{DR+4*rt+3}], v3, s[36:39], s{17-rt} offen offset:{1024*j} sc1"]
        return [hstore(f"  buffer_store_dwordx4 v[{DR+4*rt}:{DR+4*rt+3}], v3, s[36:39], s{17-rt} offen offset:{1024*j}")]
    gemm_phase(3, 10, 6, 2, 6, X3R, pre3, epi3, store3, lambda s, b: [], min(16, P("G3_LOOK", 12)), 2,
               lambda NBS: spd({2: "g3a", NBS // 2: "g3h", NBS - 1: "g3b"}), before=before3)
    sp("g3")
    publish(3, f"  s_lshr_b32 s12, s26, 1\n  s_lshl_b32 s12, s12, 7\n  s_lshl_b32 s13, s25, 2\n  s_add_u32 s12, s12, s13\n  s_add_u32 s12, s12, {WS_FL3}")
    k(f"  s_and_b32 s12, s3, 1\n  s_lshl_b32 s12, s12, 11\n  s_mul_i32 s7, s68, {48*1024}\n  s_add_u32 s7, s7, s67\n  s_add_u32 s7, s7, s12\n  s_add_u32 s7, s7, {SL_G}")
    k(f"  s_xor_b32 s13, s68, 1\n  s_sub_u32 s15, s13, s68\n  s_mul_i32 s15, s15, {48*1024}")
    k(f"  v_add_u32 v8, s12, v3\n  v_add_u32 v9, 0x10000, v8\n  v_add_u32 v10, 0x20000, v8")
    k("  s_lshl_b32 s57, s20, 6\n  s_add_u32 s58, s57, 64\n  s_lshl_b32 s59, s21, 6\n  s_add_u32 s59, s59, s23")
    k("  s_lshl_b32 s12, s6, 4\n  v_add_u32 v11, s12, v6\n  s_movk_i32 s12, 1280\n  v_mul_lo_u32 v11, s12, v11\n  v_lshl_add_u32 v11, v7, 4, v11")
    XSL = SLO(21)
    k(f"  s_mul_i32 s12, s3, 5120\n  s_add_u32 s12, s12, {XSL}\n  v_add_u32 v12, s12, v3\n  s_xor_b32 s13, s3, 1\n  s_mul_i32 s13, s13, 5120\n  s_add_u32 s13, s13, {XSL}\n  v_add_u32 v13, s13, v3")
    st.t = 90
    XLEAD = min(3, P("G4_XLEAD", 3))
    pos = {}
    X4R = lambda c, j, o: XV + ((c % 5) * 4 + 2*j + o) * 4
    def x4(c):
        for j in range(2):
            for o in range(2):
                pre = "  s_add_u32 s31, s31, 1\n  s_cmp_eq_u32 s31, 12\n  s_cselect_b32 s31, 0, s31\n  s_lshl_b32 s11, s31, 12\n  s_add_u32 s11, s11, s7\n  s_add_u32 s14, s11, s15" if (j == 0 and o == 0) else None
                x = X4R(c, j, o)
                vm.push(pre, f"  buffer_load_dwordx4 v[{x}:{x+3}], v3, s[36:39], s{14 if o else 11} offen offset:{j*1024}{XF}", f"X4_{c}_{j}")
    for c in range(XLEAD + 1): x4(c)
    for c in range(12):
        pos[c] = len(vm.q)
        if c + XLEAD + 1 < 12: x4(c + XLEAD + 1)
    pos[12] = len(vm.q)
    steps = [(c, j, nt) for c in range(12) for j in range(2) for nt in range(5)]
    def mfma4(i, w):
        c, j, nt = steps[i]; out = []
        for o in range(2):
            a = ACC + 20*o + 4*nt; x = X4R(c, j, o)
            cc = "0" if (c == 0 and j == 0) else f"v[{a}:{a+3}]"
            out.append(f"  v_mfma_f32_16x16x32_bf16 v[{a}:{a+3}], v[{w}:{w+3}], v[{x}:{x+3}], {cc}")
        return out
    ready4 = {c * 10: 16 + c + 1 for c in range(12)}
    free4 = {c * 10 + 9: 16 + c + 1 for c in range(6)}
    def vt4(i):
        c = i // 10; f = (i % 10 + 1) / 10
        return pos[c] + int(f * (pos[c+1] - pos[c]) + 0.999)
    UX = CS; UH = 120
    fill4 = []
    for i in range(10):
        fill4 += [(20, f"  v_lshlrev_b32 v{UX+2*i}, 16, v{X1P+i}"), (20, f"  v_and_b32 v{UX+2*i+1}, s40, v{X1P+i}"),
                  (20, f"  v_lshlrev_b32 v{UH+2*i}, 16, v{HP+i}"), (20, f"  v_and_b32 v{UH+2*i+1}, s40, v{HP+i}")]
    def before4():
        poll(3, f"  s_lshr_b32 s12, s6, 1\n  s_lshl_b32 s12, s12, 7\n  s_add_u32 s12, s12, {WS_FL3}\n  v_lshl_add_u32 v{PT+1}, v6, 2, s12")
        sp("s3")
        vm.upto(vm.index_of("X4_1_1") + 1)
    st.run(len(steps), mfma4, lambda j: SLO(16 + steps[j][0]) + (steps[j][2] * 4 + steps[j][1]) * 1024, ready4, free4,
           lambda i: f"X4_{steps[i][0]}_{steps[i][1]}" if steps[i][2] == 0 else None, vt4, fill4, lambda i: [], FPER=1, stamps=spd({2: "g4a", 40: "g4b", 80: "g4c"}), bases=(8, 9, 10), hook=before4)
    sp("g4")
    k(f"GG_xw:\n  ds_read_b128 v[{RT4}:{RT4+3}], v{VFL} offset:16\n  s_add_u32 s76, s76, 1\n  s_waitcnt lgkmcnt(0)\n  v_min_u32 v{RT4}, v{RT4}, v{RT4+1}\n  v_min3_u32 v{RT4}, v{RT4}, v{RT4+2}, v{RT4+3}\n  v_readfirstlane_b32 s13, v{RT4}\n  s_cmp_ge_u32 s13, 22\n  s_cbranch_scc1 GG_xk\n  s_cmp_lt_u32 s76, {LDS_SPIN}\n  s_cbranch_scc1 GG_xw\nGG_xk:")
    for nt in range(5): k(f"  ds_write_b128 v12, v[{ACC+20+4*nt}:{ACC+23+4*nt}] offset:{1024*nt}")
    k("  s_waitcnt lgkmcnt(0)\n  s_barrier")
    for nt in range(5): k(f"  ds_read_b128 v[{WB+4*nt}:{WB+4*nt+3}], v13 offset:{1024*nt}")
    for nt in range(5):
        a = ACC + 4 * nt; ls = []
        k(f"  s_waitcnt lgkmcnt({4-nt})")
        for h in range(2):
            t = 140 + 2*h; D = XV + 2*nt + h; x = UX + 4*nt + 2*h; hh = UH + 4*nt + 2*h
            ls.append([f"  v_pk_add_f32 v[{a+2*h}:{a+2*h+1}], v[{a+2*h}:{a+2*h+1}], v[{WB+4*nt+2*h}:{WB+4*nt+2*h+1}]", f"  v_cvt_pk_bf16_f32 v{D}, v{a+2*h}, v{a+2*h+1}", f"  v_lshlrev_b32 v{t}, 16, v{D}", f"  v_and_b32 v{t+1}, s40, v{D}",
             f"  v_pk_add_f32 v[{t}:{t+1}], v[{t}:{t+1}], v[{x}:{x+1}]",
             f"  v_cvt_pk_bf16_f32 v{D}, v{t}, v{t+1}", f"  v_lshlrev_b32 v{t}, 16, v{D}", f"  v_and_b32 v{t+1}, s40, v{D}",
             f"  v_pk_add_f32 v[{t}:{t+1}], v[{t}:{t+1}], v[{hh}:{hh+1}]", f"  v_cvt_pk_bf16_f32 v{D}, v{t}, v{t+1}"])
        for l in zip_lists(*ls): k(l)
        if nt in (1, 3): k(f"  buffer_store_dwordx4 v[{XV+2*nt-2}:{XV+2*nt+1}], v11, s[44:47], s{57+(nt>>1)} offen")
        if nt == 4: k(f"  buffer_store_dwordx2 v[{XV+2*nt}:{XV+2*nt+1}], v11, s[44:47], s59 offen")
    k.stamp_out(1)
    k("  s_endpgm")
    k("GG_loader:")
    k(f"  s_sub_u32 s3, s3, 4\n  s_mul_i32 s9, s3, 5120\n  s_lshl_b32 s12, s3, 2\n  s_add_u32 s12, s12, {FLG}\n  v_mov_b32 v12, s12")
    if P("FAKEW", 0): k("  s_mov_b32 s5, 0\n  s_mov_b32 s25, 0")
    k(f"  s_mul_i32 s8, s5, {5*SLOT}\n  s_mul_i32 s12, s65, {5*5120}\n  s_add_u32 s12, s12, s9\n  s_add_u32 s12, s12, s8")
    k(f"  s_add_u32 s20, s12, {WS_W1P}\n  s_add_u32 s21, s12, {WS_W2P}\n  s_add_u32 s28, s8, {WS_W1P + 5*SLOT}\n  s_add_u32 s29, s8, {WS_W2P + 5*SLOT}")
    k(f"  s_mul_i32 s8, s25, {6*SLOT}\n  s_mul_i32 s12, s66, {6*5120}\n  s_add_u32 s12, s12, s9\n  s_add_u32 s12, s12, s8\n  s_add_u32 s22, s12, {WS_W3P}\n  s_add_u32 s30, s8, {WS_W3P + 6*SLOT}")
    k(f"  s_mul_i32 s8, s5, {12*SLOT}\n  s_mul_i32 s12, s74, {SLOT}\n  s_add_u32 s12, s12, s9\n  s_add_u32 s12, s12, s8\n  s_add_u32 s23, s12, {WS_W4P}\n  s_add_u32 s31, s8, {WS_W4P + 12*SLOT}")
    k(f"  s_add_u32 s16, s9, {NSL*SLOT}")
    k(f"  s_mov_b32 s10, s20\n  s_mov_b32 s17, s28\n  s_mov_b32 s18, {5*SLOT}\n  s_mov_b32 s11, s9\n  s_mov_b32 s12, 0")
    chk = f"  ds_read_b128 v[8:11], v{VFL} offset:16\n  s_waitcnt lgkmcnt(0)\n  v_min_u32 v8, v8, v9\n  v_min3_u32 v8, v8, v10, v11\n  v_readfirstlane_b32 s13, v8\n  s_add_u32 s76, s76, 1\n  s_cmp_ge_u32 s13, s15\n  s_cbranch_scc1 GG_ld_go"
    if LSTAMP: k("  v_mov_b32 v20, 0\n  v_mov_b32 v21, 0\n  v_mov_b32 v22, 0")
    k("  s_mov_b32 s13, 0")
    k("GG_ld:")
    k(f"  s_cmp_lt_u32 s12, {NSL}\n  s_cbranch_scc1 GG_ld_go\n  s_sub_u32 s15, s12, {NSL-1}\n  s_max_u32 s15, s15, {P('GATE1', 1)}\n  s_max_u32 s14, s15, {P('GATE2', 1)}\n  s_cmp_ge_u32 s12, 12\n  s_cselect_b32 s15, s14, s15")
    k("  s_cmp_ge_u32 s13, s15\n  s_cbranch_scc1 GG_ld_go")
    k(chk)
    k("  s_waitcnt vmcnt(0)\n  v_mov_b32 v14, s12\n  ds_write_b32 v12, v14")
    if LSTAMP: k("  s_memtime s[40:41]\n  s_waitcnt lgkmcnt(0)\n  s_sub_u32 s40, s40, s80\n  v_mov_b32 v24, s40\n  v_cmp_eq_u32 vcc, s12, v2\n  v_cndmask_b32 v22, v22, v24, vcc")
    k("GG_ld_sp:")
    k("  s_sleep 1")
    k(chk + f"\n  s_cmp_lt_u32 s76, {LDS_SPIN}\n  s_cbranch_scc1 GG_ld_sp")
    k("GG_ld_go:")
    if LSTAMP: k("  s_memtime s[40:41]\n  s_waitcnt lgkmcnt(0)\n  s_sub_u32 s40, s40, s80\n  v_mov_b32 v24, s40\n  v_cmp_eq_u32 vcc, s12, v2\n  v_cndmask_b32 v20, v20, v24, vcc")
    k("  s_mov_b32 m0, s11\n  s_add_u32 s14, s10, 4096")
    for i in range(4): k(f"  buffer_load_dwordx4 v3, s[36:39], s10 offen offset:{1024*i} sc1 lds")
    k("  s_add_u32 m0, s11, 4096\n  v_mov_b32 v14, s12\n  buffer_load_dwordx4 v3, s[36:39], s14 offen sc1 lds")
    k("  s_waitcnt vmcnt(5)\n  ds_write_b32 v12, v14")
    k(f"  s_add_u32 s12, s12, 1\n  s_add_u32 s11, s11, {SLOT}\n  s_cmp_eq_u32 s11, s16\n  s_cselect_b32 s11, s9, s11")
    k(f"  s_add_u32 s10, s10, {SLOT}\n  s_sub_u32 s14, s10, s18\n  s_cmp_ge_u32 s10, s17\n  s_cselect_b32 s10, s14, s10")
    for j, ph, size in ((5, 1, 5), (10, 2, 6), (16, 3, 12)):
        k(f"  s_cmp_eq_u32 s12, {j}\n  s_cselect_b32 s10, s{20+ph}, s10\n  s_cselect_b32 s17, s{28+ph}, s17\n  s_cselect_b32 s18, {size*SLOT}, s18")
    k("  s_cmp_lt_u32 s12, 28\n  s_cbranch_scc1 GG_ld")
    k("  s_waitcnt vmcnt(0)\n  v_mov_b32 v14, 28\n  ds_write_b32 v12, v14\n  s_waitcnt lgkmcnt(0)")
    if LSTAMP:
        k("  s_cmp_lg_u32 s3, 0\n  s_cbranch_scc1 GG_done\n  s_lshl_b32 s40, s2, 10\n  s_add_u32 s40, s40, 0x2c00000\n  v_lshl_add_u32 v23, v2, 2, s40")
        k("  global_store_dword v23, v20, s[32:33]\n  global_store_dword v23, v21, s[32:33] offset:256\n  global_store_dword v23, v22, s[32:33] offset:512")
    k("GG_done:\n  s_endpgm")
    L = k.lines; il = L.index("GG_loader:"); ib = [i for i, x in enumerate(L) if "s_cbranch_scc1 GG_loader" in x][0]
    L[ib] = L[ib].replace("s_cbranch_scc1 GG_loader", "s_cbranch_scc0 GG_comp")
    k.lines = L[:ib+1] + L[il:] + ["GG_comp:"] + L[ib+1:il]
```

```python
from asmfw import K
from layout import *
from k_common import *
import os
LOG2E = "0x3fb8aa3b"
CST = 4160; UOFF = 4 * CST; DREG = UOFF + 4608
RB = 4 * DREG; WREG = 8704; TBL = RB + 8 * WREG; TBS = 32 * TCS + 16
PC_LDS = TBL + 4 * TBS
SPIN = 400000
W3A = int(os.environ.get('W3A', 0))
SLT = int(os.environ.get('SLT', 0))
GG_FLG = 7 * 20480
PKF = os.environ.get('PKF', ' sc1')
PFL = os.environ.get('PFL', 'sc1')
TOUCH = {'12': ((WS_W1P, 50), (WS_W2P, 50)), '321': ((WS_W3P, 120), (WS_W2P, 50), (WS_W1P, 50)), '1': ((WS_W1P, 50),)}[os.environ.get('NTOUCH', '12')]
N_LN = 64; PK_FIRST = 440 if len(TOUCH) == 3 else 200

def cmul(k, d, x, w):
    k(f"  v_pk_mul_f32 v[{d}:{d+1}], v[{x}:{x+1}], v[{w}:{w+1}] op_sel:[0,0] op_sel_hi:[1,0]")
    k(f"  v_pk_fma_f32 v[{d}:{d+1}], v[{x}:{x+1}], v[{w}:{w+1}], v[{d}:{d+1}] op_sel:[1,1,0] op_sel_hi:[0,1,1] neg_lo:[1,0,0]")

def gen_pc(k):
    def poll_dbg(lbl, off, val, vt=250, slp=16):
        k(f"  v_mov_b32 v{vt}, {off}\n  s_mov_b32 s78, 0\n  s_mov_b64 exec, 1\n{lbl}:\n  global_load_dword v{vt+1}, v{vt}, s[34:35] {PFL}\n  s_waitcnt vmcnt(0)\n  v_readfirstlane_b32 s79, v{vt+1}\n  s_add_u32 s78, s78, 1")
        k(f"  s_cmp_ge_u32 s79, {val}\n  s_cbranch_scc1 {lbl}_ok\n  s_sleep {slp}\n  s_cmp_lt_u32 s78, {SPIN}\n  s_cbranch_scc1 {lbl}\n{lbl}_ok:\n  s_mov_b64 exec, -1")
    def add_dbg(off, val, vt=250):
        k(f"  v_mov_b32 v{vt}, {off}\n  v_mov_b32 v{vt+1}, {val}\n  s_mov_b64 exec, 1\n  global_atomic_add v{vt}, v{vt+1}, s[34:35] sc1\n  s_mov_b64 exec, -1")
    uid = [0]
    def arrive(base, off, total, last, vt=250):
        uid[0] += 1; u = uid[0]
        k(f"  v_mov_b32 v{vt}, {off}\n  v_mov_b32 v{vt+1}, 1\n  s_mov_b64 exec, 1\n  global_atomic_add v{vt+2}, v{vt}, v{vt+1}, s[{base}:{base+1}] sc0 sc1\n  s_waitcnt vmcnt(0)\n  v_readfirstlane_b32 s79, v{vt+2}\n  s_mov_b64 exec, -1")
        k(f"  s_cmp_lg_u32 s79, {total-1}\n  s_cbranch_scc1 F_ar{u}")
        last()
        k(f"F_ar{u}:")
    def set_dbg(off, vt=250):
        k(f"  v_mov_b32 v{vt}, {off}\n  v_mov_b32 v{vt+1}, 1\n  s_mov_b64 exec, 1\n  global_store_dword v{vt}, v{vt+1}, s[34:35] sc1\n  s_mov_b64 exec, -1")
    def set_goh(word):
        k(f"  v_lshlrev_b32 v250, 7, v2\n  v_mov_b32 v251, 1\n  s_lshl_b32 s79, {word}, 2\n  s_add_u32 s79, s79, {WS_GOH}\n  buffer_store_dword v251, v250, s[36:39], s79 offen sc1")
    top = lambda: arrive(32, WS_SHARD + 1024, 34, lambda: set_goh(8))
    k("  s_cmp_ge_u32 s2, 256\n  s_cbranch_scc1 GG_done")
    k.stamp(0); k.stamp(7, True)
    k("  s_load_dwordx16 s[16:31], s[0:1], 0")
    k(f"  s_load_dwordx4 s[32:35], s[0:1], {KA_DBG}")
    k(f"  s_load_dwordx8 s[48:55], s[0:1], {KA_W1}\n  s_load_dwordx2 s[56:57], s[0:1], {KA_DSK}")
    k("  v_lshrrev_b32 v1, 6, v0\n  v_and_b32 v2, 63, v0\n  v_readfirstlane_b32 s3, v1\n  v_lshlrev_b32 v3, 4, v2")
    k(f"  s_mov_b32 s40, 0xffff0000\n  s_and_b32 s79, s2, 63\n  s_lshl_b32 s79, s79, 7\n  s_add_u32 s79, s79, {WS_GOW}\n  v_mov_b32 v254, s79")
    def after_kernarg():
        k("  s_waitcnt lgkmcnt(0)")
        k("  s_mov_b64 s[36:37], s[34:35]\n  s_mov_b64 s[34:35], s[32:33]\n  s_mov_b64 s[32:33], s[36:37]")
        k(f"  s_mov_b32 s38, {WS_SPAN}\n  s_mov_b32 s39, 0x00020000")
    def gow_entry():
        k(f"  s_mov_b64 exec, 1\n  buffer_load_dword v255, v254, s[36:39], 0 offen sc1\n  s_mov_b64 exec, -1")
    def gow_set():
        k(f"  v_lshlrev_b32 v250, 7, v2\n  s_mov_b32 s79, {WS_GOW}\n  buffer_load_dword v251, v250, s[36:39], s79 offen sc1\n  s_waitcnt vmcnt(0)\n  v_add_u32 v251, 1, v251\n  buffer_store_dword v251, v250, s[36:39], s79 offen sc1")
        set_dbg(DBG_GOW)
    def gow_wait(lbl, slp):
        k(f"  s_waitcnt vmcnt(0)\n  v_readfirstlane_b32 s77, v255\n  v_mov_b32 v250, {DBG_GOW}\n  s_mov_b32 s78, 0\n  s_mov_b64 exec, 1\n{lbl}:\n  buffer_load_dword v251, v254, s[36:39], 0 offen sc1\n  s_waitcnt vmcnt(0)\n  v_readfirstlane_b32 s79, v251\n  s_add_u32 s78, s78, 1")
        k(f"  s_cmp_lg_u32 s79, s77\n  s_cbranch_scc1 {lbl}_ok\n  s_sleep {slp}\n  s_and_b32 s79, s78, 63\n  s_cmp_lg_u32 s79, 0\n  s_cbranch_scc1 {lbl}")
        k(f"  global_load_dword v251, v250, s[34:35] sc1\n  s_waitcnt vmcnt(0)\n  v_readfirstlane_b32 s79, v251\n  s_cmp_lg_u32 s79, 0\n  s_cbranch_scc1 {lbl}_ok\n  s_cmp_lt_u32 s78, {SPIN}\n  s_cbranch_scc1 {lbl}\n{lbl}_ok:\n  s_mov_b64 exec, -1")
    k("  s_cmp_ge_u32 s2, 160\n  s_cbranch_scc1 F_aux")
    k("  s_and_b32 s4, s2, 7\n  s_mul_i32 s4, s4, 20\n  s_lshr_b32 s5, s2, 3\n  s_add_u32 s4, s4, s5\n  s_lshl_b32 s4, s4, 2")
    k("  s_and_b32 s58, s3, 3\n  s_lshr_b32 s59, s3, 2\n  s_add_u32 s5, s4, s58")
    k(f"  s_mul_i32 s6, s58, {DREG}\n  s_mul_i32 s11, s3, {WREG}\n  s_add_u32 s11, s11, {RB}")
    k(f"  s_and_b32 s60, s2, 7\n  s_mul_i32 s61, s60, {SLAB}")
    k(f"  s_mul_i32 s10, s58, {TBS}\n  s_add_u32 s65, s10, {TBL}\n  v_mov_b32 v134, s65\n  v_mov_b32 v96, 0\n  v_mov_b32 v97, 0\n  ds_write_b64 v134, v[96:97] offset:{32*TCS}")
    k("  s_getpc_b64 s[8:9]\nF_pc:\n  s_add_u32 s8, s8, F_tab-F_pc\n  s_addc_u32 s9, s9, 0")
    k("  s_cmp_lg_u32 s59, 0\n  s_cbranch_scc1 F_nt")
    for it in range(4):
        k(f"  global_load_dwordx4 v[{176+6*it}:{179+6*it}], v3, s[8:9] offset:{1024*it}\n  global_load_dwordx2 v[{180+6*it}:{181+6*it}], v3, s[8:9] offset:{1024*it+16}")
    k("F_nt:")
    k("  s_mul_i32 s7, s5, 384\n  s_lshl_b32 s10, s59, 8\n  s_add_u32 s7, s7, s10\n  v_lshl_add_u32 v5, v2, 1, s7")
    k("  v_lshl_add_u32 v6, v2, 2, s11")
    k("  v_and_b32 v7, 31, v2\n  v_mul_u32_u24 v7, 272, v7\n  v_lshrrev_b32 v8, 5, v2\n  v_lshl_add_u32 v7, v8, 4, v7\n  v_add_u32 v7, s11, v7")
    k(f"  v_and_b32 v130, 31, v2\n  v_mul_u32_u24 v130, {TCS}, v130\n  v_lshl_add_u32 v130, v8, 3, v130\n  v_add_u32 v130, s65, v130")
    k(f"  s_add_u32 s10, s58, 4\n  s_mul_i32 s10, s10, {WREG}\n  s_add_u32 s10, s10, {RB}\n  v_add_u32 v131, s10, v3")
    k("  s_lshr_b32 s12, s5, 1\n  s_lshl_b32 s12, s12, 2\n  s_and_b32 s13, s5, 1\n  s_lshl_b32 s13, s13, 4")
    k("  v_and_b32 v4, 255, v0\n  v_lshlrev_b32 v4, 4, v4\n  s_lshl_b32 s10, s4, 1\n  v_mul_u32_u24 v133, 160, v4\n  v_add_u32 v133, s10, v133")
    after_kernarg()
    k("  s_barrier")
    k.stamp(1)
    for i, sb in enumerate((18, 20, 22, 24, 26, 28)): k(f"  global_load_ushort v{112+i}, v5, s[{sb}:{sb+1}]")
    k("  s_load_dword s14, s[30:31], s12\n  s_load_dwordx2 s[62:63], s[56:57], s10")
    k("  s_cmp_lg_u32 s59, 0\n  s_cbranch_scc1 F_hg")
    for i, sb in enumerate((18, 20, 22, 24, 26, 28)): k(f"  global_load_ushort v{118+i}, v5, s[{sb}:{sb+1}] offset:128")
    gow_entry()
    k("  s_waitcnt vmcnt(13)")
    for it in range(4):
        for i in range(11):
            src = 176 + 6*it + (i >> 1)
            k(f"  v_lshrrev_b32 v{200+11*it+i}, 16, v{src}" if i & 1 else f"  v_and_b32 v{200+11*it+i}, 0xffff, v{src}")
            k(f"  v_add_u32 v{200+11*it+i}, s65, v{200+11*it+i}")
    k("  s_waitcnt vmcnt(0)\n  s_branch F_hj")
    k("F_hg:")
    for i in range(1, 4): k(f"  v_add_u32 v{135+i}, {512*1280*i}, v133")
    k("  s_bfe_u32 s10, s2, 0x20003")
    for rot in range(4):
        if rot < 3: k(f"  s_cmp_lg_u32 s10, {rot}\n  s_cbranch_scc1 F_g{rot+1}")
        for ii in range(4):
            i = (ii + rot) & 3 if int(os.environ.get("GROT", 1)) else ii
            for r in range(2): k(f"  global_load_dwordx2 v[{176+4*i+2*r}:{177+4*i+2*r}], v{135+i if i else 133}, s[16:17] offset:{1280*r}")
        if rot < 3: k(f"  s_branch F_ge\nF_g{rot+1}:")
    k("F_ge:")
    k("  s_waitcnt vmcnt(8)")
    k("F_hj:")
    for i in range(2, 16): k(f"  v_mov_b32 v{96+i}, 0")
    k("  s_waitcnt lgkmcnt(0)")
    k("  s_lshr_b32 s14, s14, s13\n  s_lshl_b32 s14, s14, 16")
    k(f"  v_mov_b32 v9, {LOG2E}\n  v_mul_f32 v9, s14, v9\n  v_exp_f32 v9, v9\n  v_cvt_pk_bf16_f32 v9, v9, v9\n  v_lshlrev_b32 v132, 16, v9")
    k("  s_mov_b32 s15, s59")
    k.stamp(2)
    k("F_unit:")
    for i in range(6): k(f"  v_lshlrev_b32 v{10+i}, 16, v{112+i}")
    for i in range(6): k(f"  v_mov_b32 v{112+i}, v{118+i}")
    k("  v_mul_f32 v10, v132, v10\n  v_mul_f32 v11, v132, v11\n  v_mul_f32 v12, v132, v12\n  v_mul_f32 v13, v132, v13")
    k(f"  v_mul_f32 v10, {LOG2E}, v10\n  v_mul_f32 v11, 0.15915494, v11")
    for dst, e in ((16, None), (18, "0x41000000"), (20, "0x43800000")):
        if e is None: k(f"  v_exp_f32 v22, v10\n  v_fract_f32 v23, v11")
        else: k(f"  v_mul_f32 v22, {e}, v10\n  v_mul_f32 v23, {e}, v11\n  v_exp_f32 v22, v22\n  v_fract_f32 v23, v23")
        k(f"  v_cos_f32 v{dst}, v23\n  v_sin_f32 v{dst+1}, v23")
        k(f"  v_mul_f32 v{dst}, v22, v{dst}\n  v_mul_f32 v{dst+1}, v22, v{dst+1}")
    cmul(k, 24, 14, 12)
    def put(reg, row, neg):
        k(f"  v_cvt_pk_bf16_f32 v9, v{reg}, {'-' if neg else ''}v{reg+1}\n  ds_write_b32 v6, v9 offset:{row*272}")
    put(24, 0, True)
    for r in range(1, 8):
        cmul(k, 24 + 2*r, 24 + 2*(r-1), 16); put(24 + 2*r, r, True)
    for i, r in enumerate((0, 2, 4, 6)):
        cmul(k, 40 + 2*i, 24 + 2*r, 20); put(40 + 2*i, 8 + i, True)
    cmul(k, 48, 40, 20); put(48, 12, True)
    cmul(k, 50, 44, 20); put(50, 13, True)
    cmul(k, 52, 48, 20); put(52, 14, True)
    cmul(k, 54, 50, 20); put(54, 15, True)
    prev = 52
    for i in range(5):
        dst = 24 + 2*i
        cmul(k, dst, prev, 20); put(dst, 16 + i, True); prev = dst
    k("  s_waitcnt lgkmcnt(0)")
    for s in range(8): k(f"  ds_read_b128 v[{136+4*s}:{139+4*s}], v7 offset:{32*s}")
    k("  v_mov_b32 v9, 0x3f80\n  ds_write_b32 v6, v9 offset:0")
    put(18, 1, False)
    prev = 18
    for j in range(2, 32):
        dst = 24 + 2*(j & 1)
        cmul(k, dst, prev, 18); put(dst, j, False); prev = dst
    k("  s_waitcnt lgkmcnt(0)")
    for s in range(8): k(f"  ds_read_b128 v[{56+4*s}:{59+4*s}], v7 offset:{32*s}")
    for s in range(8):
        k(f"  s_waitcnt lgkmcnt({7-s})")
        k(f"  v_mfma_f32_32x32x16_bf16 v[96:111], v[{136+4*s}:{139+4*s}], v[{56+4*s}:{59+4*s}], v[96:111]")
    k("  s_add_u32 s15, s15, 1\n  s_cmp_lt_u32 s15, 2\n  s_cbranch_scc1 F_unit")
    k("  s_cmp_lg_u32 s59, 0\n  s_cbranch_scc1 F_help")
    k("  s_mov_b32 s78, 0")
    k(f"F_pw:\n  ds_read_b32 v9, v134 offset:{32*TCS+4}\n  s_add_u32 s78, s78, 1\n  s_waitcnt lgkmcnt(0)\n  v_readfirstlane_b32 s79, v9\n  s_cmp_lg_u32 s79, 0\n  s_cbranch_scc1 F_po\n  s_cmp_lt_u32 s78, {1<<23}\n  s_cbranch_scc1 F_pw\nF_po:")
    for g in range(3): k(f"  ds_read_b128 v[{16+4*g}:{19+4*g}], v131 offset:{1024*g}")
    k("  s_waitcnt lgkmcnt(0)")
    for g in range(6): k(f"  v_pk_add_f32 v[{96+2*g}:{97+2*g}], v[{96+2*g}:{97+2*g}], v[{16+2*g}:{17+2*g}]")
    for g in range(3):
        k(f"  v_cvt_pk_bf16_f32 v{10+2*g}, v{96+4*g}, v{97+4*g}\n  v_cvt_pk_bf16_f32 v{11+2*g}, v{98+4*g}, v{99+4*g}\n  ds_write_b64 v130, v[{10+2*g}:{11+2*g}] offset:{16*g}")
    k("  v_add_u32 v52, s6, v3")
    k(f"  v_bfe_u32 v16, v2, 1, 2\n  v_mul_u32_u24 v16, {CST}, v16\n  v_and_b32 v17, 1, v2\n  v_lshl_add_u32 v16, v17, 4, v16\n  v_add_u32 v16, s6, v16")
    k("  v_mov_b32 v20, 0\n  v_mov_b32 v21, 0\n  v_mov_b32 v22, 0\n  v_mov_b32 v23, 0\n  ds_write_b128 v16, v[20:23] offset:4096")
    k.stamp(3)
    k("  s_waitcnt lgkmcnt(0)")
    def ex_reads(it):
        for i in range(11): k(f"  ds_read_u16 v{56+12*(it&1)+i}, v{200+11*it+i}")
    ex_reads(0)
    for it in range(4):
        if it < 3: ex_reads(it + 1)
        k(f"  s_waitcnt lgkmcnt({11 if it < 3 else 0})")
        V = 56 + 12*(it & 1)
        for sg, st in ((3, 0), (2, 1), (1, 2), (0, 3)):
            O = 80 + 4*sg
            for j in range(4): k(f"  v_lshl_or_b32 v{O+j}, v{V+st+2*j+1}, 16, v{V+st+2*j}")
            k(f"  ds_write_b128 v52, v[{O}:{O+3}] offset:{1024*it + sg*CST}")
    k.stamp(4)
    k("  v_and_b32 v6, 15, v2\n  v_lshrrev_b32 v7, 4, v2")
    k(f"  v_and_b32 v8, 3, v6\n  v_mul_u32_u24 v8, {CST}, v8\n  v_lshrrev_b32 v9, 2, v6\n  v_lshlrev_b32 v9, 3, v9\n  v_sub_u32 v8, v8, v9\n  v_lshl_add_u32 v8, v7, 4, v8\n  v_add_u32 v8, {24+384}, v8\n  v_add_u32 v12, s6, v8")
    k(f"  v_lshlrev_b32 v8, 5, v6\n  v_lshl_add_u32 v8, v7, 4, v8\n  v_add_u32 v8, {UOFF+32+384}, v8\n  v_add_u32 v13, s6, v8")
    k(f"  s_lshl_b32 s10, s58, 12\n  s_add_u32 s10, s10, {RB}\n  v_lshlrev_b32 v8, 5, v6\n  v_lshl_add_u32 v8, v7, 3, v8\n  v_add_u32 v14, s10, v8")
    for i in range(32): k(f"  v_mov_b32 v{16+i}, 0")
    k("  s_waitcnt lgkmcnt(0)\n  s_barrier")
    k.stamp(5)
    SETS = ((48, 80), (112, 144))
    def reads(st, extra):
        A, B = SETS[st]; out = []
        for n in range(8):
            off = 512 * (7 - n) + 64 - extra
            out.append(f"  ds_read_b64 v[{A+4*n}:{A+4*n+1}], v12 offset:{off}")
            out.append(f"  ds_read_b64 v[{A+4*n+2}:{A+4*n+3}], v12 offset:{off+8}")
            out.append(f"  ds_read_b128 v[{B+4*n}:{B+4*n+3}], v13 offset:{512*n + 64 - extra}")
        return out
    def mfmas(st):
        A, B = SETS[st]; out = []
        for J in range(8):
            for n in range(J + 1):
                m = J - n
                out.append(f"  v_mfma_f32_16x16x32_bf16 v[{16+4*J}:{19+4*J}], v[{A+4*n}:{A+4*n+3}], v[{B+4*m}:{B+4*m+3}], v[{16+4*J}:{19+4*J}]")
        return out
    def inter(mf, rd):
        out = []
        for i, m in enumerate(mf):
            out.append(m)
            if i < len(rd): out.append(rd[i])
        return out
    k("  s_setprio 3")
    for l in reads(0, 0): k(l)
    k("  s_mov_b32 s15, 0")
    k("F_loop:")
    k("  s_waitcnt lgkmcnt(0)")
    for l in inter(mfmas(0), reads(1, 64)): k(l)
    k("  v_subrev_u32 v12, 128, v12\n  v_subrev_u32 v13, 128, v13")
    k("  s_waitcnt lgkmcnt(0)")
    k("  s_cmp_eq_u32 s15, 3\n  s_cbranch_scc1 F_last")
    for l in inter(mfmas(1), reads(0, 0)): k(l)
    k("  s_add_u32 s15, s15, 1\n  s_branch F_loop")
    k("F_last:")
    for l in mfmas(1): k(l)
    k.stamp(6)
    for J in range(8):
        k(f"  v_cvt_pk_bf16_f32 v{48+2*J}, v{16+4*J}, v{17+4*J}\n  v_cvt_pk_bf16_f32 v{49+2*J}, v{18+4*J}, v{19+4*J}")
        k(f"  ds_write_b64 v14, v[{48+2*J}:{49+2*J}] offset:{512*J}")
    k("  s_waitcnt lgkmcnt(0)\n  s_barrier\n  s_setprio 0")
    k("  s_cmp_lg_u32 s3, 0\n  s_cbranch_scc1 F_b5")
    gow_wait("F_pl5", 2)
    k("F_b5:")
    k("  s_barrier")
    k("  s_cmp_lg_u32 s3, 0\n  s_cbranch_scc1 F_fin")
    k(f"  s_lshl_b32 s10, s60, 7\n  s_add_u32 s10, s10, {WS_SHARD}")
    arrive(32, "s10", 20, lambda: set_goh("s60"))
    k("  s_branch F_fin")
    k("F_help:")
    k("  v_mov_b32 v252, 0\n  s_mov_b64 exec, 1\n  global_load_dword v253, v252, s[34:35] sc1\n  s_mov_b64 exec, -1")
    k(f"  v_and_b32 v9, 0x1f0, v3\n  v_add_u32 v9, s6, v9")
    k(f"  v_mov_b32 v12, 0\n  v_mov_b32 v13, 0\n  v_mov_b32 v14, 0\n  v_mov_b32 v15, 0\n  ds_write_b128 v9, v[12:15] offset:{UOFF}\n  s_nop 7")
    for g in range(3): k(f"  ds_write_b128 v131, v[{96+4*g}:{99+4*g}] offset:{1024*g}")
    k(f"  v_mov_b32 v9, 1\n  s_waitcnt lgkmcnt(0)\n  ds_write_b32 v134, v9 offset:{32*TCS+4}")
    k(f"  s_waitcnt vmcnt(0)\n  v_readfirstlane_b32 s79, v253\n  s_cmp_ge_u32 s79, {N_LN}\n  s_cbranch_scc1 F_st")
    poll_dbg("F_pl1", 0, N_LN)
    k("F_st:")
    k.stamp(1)
    k(f"  s_mov_b32 s10, {WS_ST0}")
    for i in range(4): k(f"  buffer_load_dwordx4 v[{192+4*i}:{195+4*i}], v4, s[36:39], s10 offen sc1\n  s_add_u32 s10, s10, 4096")
    for i in range(16): k(f"  v_lshlrev_b32 v{64+2*i}, 16, v{176+i}\n  v_and_b32 v{65+2*i}, s40, v{176+i}")
    k(f"  v_lshrrev_b32 v5, 2, v4\n  v_add_u32 v6, {UOFF+512}, v5\n  v_add_u32 v7, {2*DREG}, v6\n  v_add_u32 v5, {RB}, v5\n  v_lshlrev_b32 v8, 1, v4")
    k("  s_lshl_b32 s66, s62, 16\n  s_and_b32 s67, s62, s40\n  s_lshl_b32 s68, s63, 16\n  s_and_b32 s69, s63, s40\n  s_mov_b32 s41, 0x07060302")
    k("  s_waitcnt vmcnt(0)")
    k.stamp(2)
    for i in range(4):
        for r in range(2):
            o = 96 + 8*i + 4*r; x = 64 + 8*i + 4*r; st = 192 + 4*i + 2*r
            for h in range(2):
                a = o + 2*h
                k(f"  v_pk_add_f32 v[{a}:{a+1}], v[{x+2*h}:{x+2*h+1}], v[{st}:{st+1}] op_sel_hi:[1,0] neg_lo:[0,1] neg_hi:[0,1]\n  v_cvt_pk_bf16_f32 v9, v{a}, v{a+1}\n  v_lshlrev_b32 v{a}, 16, v9\n  v_and_b32 v{a+1}, s40, v9")
                k(f"  v_pk_mul_f32 v[{a}:{a+1}], v[{a}:{a+1}], v[{st}:{st+1}] op_sel:[0,1] op_sel_hi:[1,1]")
        for w in range(4):
            k(f"  v_cvt_pk_bf16_f32 v{48+4*i+w}, v{96+8*i+w}, v{100+8*i+w}\n  ds_write_b32 v{6 + (w >> 1)}, v{48+4*i+w} offset:{(w & 1)*DREG + 1024*i}")
    k.stamp(3)
    UDL = int(os.environ.get("UDL", 1))
    if UDL: k("  s_waitcnt lgkmcnt(0)\n  s_barrier"); k.stamp(5)
    for i in range(4):
        for r in range(2):
            o = 96 + 8*i + 4*r
            for w in range(4): k(f"  v_and_b32 v{o+w}, s40, v{48+4*i+w}" if r else f"  v_lshlrev_b32 v{o+w}, 16, v{48+4*i+w}")
            for h in range(2):
                k(f"  v_mul_f32 v{o+2*h}, s{66+2*h}, v{o+2*h}\n  v_mul_f32 v{o+2*h+1}, s{67+2*h}, v{o+2*h+1}\n  v_cvt_pk_bf16_f32 v9, v{o+2*h}, v{o+2*h+1}\n  v_lshlrev_b32 v{o+2*h}, 16, v9\n  v_and_b32 v{o+2*h+1}, s40, v9")
    if not UDL: k("  s_waitcnt lgkmcnt(0)\n  s_barrier"); k.stamp(5)
    k(f"  s_lshr_b32 s64, s4, 2\n  s_mul_i32 s64, s64, {QS}\n  s_add_u32 s64, s64, {WS_HQ}")
    k(f"  s_cmp_ge_u32 s2, {60 if W3A else 120}\n  s_cbranch_scc1 F_np")
    k(f"  s_lshl_b32 s75, s2, 2\n  s_add_u32 s75, s75, s58\n  s_add_u32 s75, s75, {240 if W3A else 0}\n  s_mov_b32 s46, {640*1536*2}\n  s_mov_b32 s47, 0x00020000\n  s_cmp_lt_u32 s75, 240\n  s_cbranch_scc0 F_c4")
    k(f"  s_mov_b32 s44, s52\n  s_mov_b32 s45, s53\n  s_mov_b32 s8, {WS_W3P}\n  s_movk_i32 s6, 3072\n  s_mov_b32 s12, 0\n  s_movk_i32 s13, 2731\n  s_mov_b32 s15, 24\n  s_mov_b32 s9, 122880\n  s_movk_i32 s10, 1024\n  s_movk_i32 s7, 24576\n  s_movk_i32 s41, 6144\n  s_mov_b32 s42, 6\n  s_movk_i32 s43, 171\n  s_branch F_cgo")
    k("F_c4:")
    k(f"  s_mov_b32 s44, s54\n  s_mov_b32 s45, s55\n  s_sub_u32 s75, s75, 240\n  s_mov_b32 s8, {WS_W4P}\n  s_movk_i32 s6, 1280\n  s_mov_b32 s12, 1\n  s_movk_i32 s13, 6554\n  s_mov_b32 s15, 10\n  s_mov_b32 s9, 245760\n  s_movk_i32 s10, 4096\n  s_movk_i32 s7, 20480\n  s_movk_i32 s41, 1024\n  s_mov_b32 s42, 5\n  s_movk_i32 s43, 205")
    k("F_cgo:")
    k(f"  s_mul_i32 s11, s75, s13\n  s_lshr_b32 s11, s11, 16\n  s_mul_i32 s13, s11, s15\n  s_sub_u32 s5, s75, s13\n  s_lshl_b32 s72, s58, 13\n  s_add_u32 s72, s72, {RB + 16384}")
    pack_load(k, 72, va=244, vb=245, vc=246, vd=247, so=66)
    k("  s_waitcnt vmcnt(0)")
    pack_store(k, PKF, vb=245, vc=246, vd=247, so=66, R=144)
    k("F_np:")
    k("  s_barrier")
    k.stamp(6)
    for i in range(4):
        for w in range(4): k(f"  ds_read_b32 v{48+4*i+w}, v5 offset:{4096*w + 1024*i}")
    for i in range(4):
        k(f"  s_waitcnt lgkmcnt({12-4*i})")
        for r in range(2):
            o = 128 + 4*r; u = 96 + 8*i + 4*r; x = 64 + 8*i + 4*r; d = 136 + 4*i + 2*r
            for w in range(4): k(f"  v_and_b32 v{o+w}, s40, v{48+4*i+w}" if r else f"  v_lshlrev_b32 v{o+w}, 16, v{48+4*i+w}")
            for h in range(2):
                a = o + 2*h
                k(f"  v_pk_add_f32 v[{a}:{a+1}], v[{a}:{a+1}], v[{u+2*h}:{u+2*h+1}]\n  v_cvt_pk_bf16_f32 v9, v{a}, v{a+1}\n  v_lshlrev_b32 v{a}, 16, v9\n  v_and_b32 v{a+1}, s40, v9")
                k(f"  v_pk_add_f32 v[{a}:{a+1}], v[{a}:{a+1}], v[{x+2*h}:{x+2*h+1}]\n  v_cvt_pk_bf16_f32 v{d+h}, v{a}, v{a+1}")
        k(f"  buffer_store_dwordx4 v[{136+4*i}:{139+4*i}], v4, s[36:39], s64 offen sc1\n  s_add_u32 s64, s64, 4096")
    k.stamp(4)
    k(f"  v_mov_b32 v248, {GG_FLG}\n  v_mov_b32 v244, 0\n  v_mov_b32 v245, 0\n  v_mov_b32 v246, 0\n  v_mov_b32 v247, 0\n  ds_write_b128 v248, v[244:247]\n  ds_write_b128 v248, v[244:247] offset:16")
    k("  s_waitcnt vmcnt(0) lgkmcnt(0)\n  s_barrier")
    k("  s_branch F_fin")
    k("F_aux:")
    k("  s_mov_b32 s71, 0")
    if int(os.environ.get("CW", 1)):
        k("  s_cmp_lt_u32 s2, 248\n  s_cbranch_scc1 F_ncw")
        k("  s_getpc_b64 s[8:9]\nF_pc2:\n  s_sub_u32 s8, s8, F_pc2-mk_kernel\n  s_subb_u32 s9, s9, 0")
        k("  v_lshlrev_b32 v10, 7, v0\n  s_mov_b32 s10, F_tab-mk_kernel\n  v_min_u32 v10, s10, v10\n  global_load_dword v11, v10, s[8:9]")
        k("F_ncw:")
    k("  s_sub_u32 s72, s2, 160")
    k(f"  s_cmp_ge_u32 s72, {N_LN}\n  s_cbranch_scc1 F_pk0")
    US = 1344
    k("  s_and_b32 s5, s72, 7\n  s_lshl_b32 s5, s5, 3\n  s_lshr_b32 s4, s72, 3\n  s_add_u32 s4, s4, s5")
    k("  v_lshrrev_b32 v4, 4, v0\n  v_and_b32 v5, 15, v0")
    k("  v_mul_u32_u24 v6, 1280, v4\n  v_lshl_add_u32 v6, v5, 4, v6\n  s_mul_i32 s5, s4, 40960\n  v_add_u32 v6, s5, v6")
    after_kernarg()
    k.stamp(1)
    for i in range(5): k(f"  global_load_dwordx4 v[{12+4*i}:{15+4*i}], v6, s[16:17] offset:{256*i}")
    gow_entry()
    k(f"  s_lshl_b32 s5, s4, 8\n  s_add_u32 s5, s5, {WS_ST0}\n  v_lshlrev_b32 v7, 3, v4\n  v_lshlrev_b32 v8, 3, v2")
    for i in range(5):
        k(f"  s_waitcnt vmcnt({5-i})")
        for h in range(4):
            r = 12 + 4*i + h; o = 32 + 8*i + 2*h
            k(f"  v_lshlrev_b32 v{o}, 16, v{r}\n  v_and_b32 v{o+1}, s40, v{r}")
    k.stamp(2)
    def reduce16(r):
        for sh in (8, 4, 2, 1): k(f"  v_add_f32_dpp v{r}, v{r}, v{r} row_ror:{sh} row_mask:0xf bank_mask:0xf")
    k("  v_pk_add_f32 v[72:73], v[32:33], v[34:35]")
    for i in range(2, 20): k(f"  v_pk_add_f32 v[72:73], v[72:73], v[{32+2*i}:{33+2*i}]")
    k("  v_add_f32 v72, v72, v73")
    reduce16(72)
    k("  v_mul_f32 v72, 0x3acccccd, v72\n  v_mov_b32 v73, v72\n  v_mov_b32 v74, 0\n  v_mov_b32 v75, 0")
    for i in range(20):
        k(f"  v_pk_add_f32 v[76:77], v[{32+2*i}:{33+2*i}], v[72:73] neg_lo:[0,1] neg_hi:[0,1]\n  v_pk_fma_f32 v[74:75], v[76:77], v[76:77], v[74:75]")
    k("  v_add_f32 v74, v74, v75")
    reduce16(74)
    k("  v_mul_f32 v74, 0x3acccccd, v74")
    k("  v_cvt_pk_bf16_f32 v76, v72, v74\n  v_lshlrev_b32 v72, 16, v76\n  v_and_b32 v74, s40, v76\n  v_mov_b32 v73, v72")
    k("  v_add_f32 v74, 0x3727c5ac, v74\n  v_cvt_pk_bf16_f32 v74, v74, v74\n  v_lshlrev_b32 v74, 16, v74")
    k("  v_sqrt_f32 v74, v74\n  v_cvt_pk_bf16_f32 v74, v74, v74\n  v_lshlrev_b32 v74, 16, v74\n  v_rcp_f32 v73, v74")
    k("  ds_write_b64 v7, v[72:73]")
    k.stamp(3)
    k("  s_waitcnt lgkmcnt(0)\n  s_barrier")
    k("  s_cmp_lg_u32 s3, 0\n  s_cbranch_scc1 F_ln2")
    k("  s_mov_b32 exec_hi, 0\n  ds_read_b64 v[72:73], v8\n  s_waitcnt lgkmcnt(0)\n  buffer_store_dwordx2 v[72:73], v8, s[36:39], s5 offen sc1\n  s_mov_b64 exec, -1")
    k("F_ln2:")
    k("  s_waitcnt vmcnt(0)\n  s_barrier\n  s_cmp_lg_u32 s3, 0\n  s_cbranch_scc1 F_ln3")
    add_dbg(0, 1)
    k.stamp(4)
    k("F_ln3:")
    k("  s_add_u32 s75, s72, 7\n  s_branch F_cs")
    k("F_pk0:")
    after_kernarg()
    gow_entry()
    k(f"  s_sub_u32 s73, s72, {N_LN}\n  s_sub_u32 s75, s73, 25\n  s_cmp_ge_u32 s73, 25\n  s_cbranch_scc1 F_cs")
    k("  s_lshl_b32 s4, s73, 3\n  s_add_u32 s4, s4, s3")
    k(f"  s_mov_b32 s44, s48\n  s_mov_b32 s45, s49\n  s_mov_b32 s46, {640*640*2}\n  s_mov_b32 s47, 0x00020000\n  s_mov_b32 s8, {WS_W1P}")
    k("  s_movk_i32 s6, 1280\n  s_mov_b32 s12, 1\n  s_mov_b32 s9, 102400\n  s_movk_i32 s10, 1024\n  s_movk_i32 s7, 20480\n  s_movk_i32 s41, 5120\n  s_mov_b32 s42, 5\n  s_movk_i32 s43, 205")
    k("  s_cmp_lt_u32 s4, 100\n  s_cbranch_scc1 F_go")
    k(f"  s_mov_b32 s44, s50\n  s_mov_b32 s45, s51\n  s_sub_u32 s4, s4, 100\n  s_mov_b32 s8, {WS_W2P}")
    k("F_go:")
    k("  s_mul_i32 s11, s4, 6554\n  s_lshr_b32 s11, s11, 16\n  s_mul_i32 s13, s11, 10\n  s_sub_u32 s5, s4, s13")
    k("F_go2:")
    k("  s_lshl_b32 s74, s3, 13")
    pack_load(k, 74)
    k("  s_waitcnt vmcnt(0)")
    pack_store(k, PKF)
    k("F_aw:")
    k("  s_waitcnt vmcnt(0)\n  s_barrier\n  s_cmp_lg_u32 s3, 0\n  s_cbranch_scc1 F_ax")
    arrive(34, 192, 25 + 6 + 30 * W3A, gow_set)
    k("  s_branch F_ax")
    k("F_cs:")
    k("  s_cmp_lt_u32 s75, 34\n  s_cbranch_scc0 F_fl")
    k("  s_mov_b32 s4, s75")
    k(f"  s_mov_b32 s44, s48\n  s_mov_b32 s45, s49\n  s_mov_b32 s46, {640*640*2}\n  s_mov_b32 s47, 0x00020000")
    k(f"  s_mov_b32 s5, s4\n  s_movk_i32 s6, 1280\n  s_mov_b32 s11, {WS_CS1}")
    k("  s_cmp_lt_u32 s4, 10\n  s_cbranch_scc1 F_cg")
    k(f"  s_mov_b32 s44, s52\n  s_mov_b32 s45, s53\n  s_mov_b32 s46, {640*1536*2}\n  s_sub_u32 s5, s4, 10\n  s_movk_i32 s6, 3072\n  s_mov_b32 s11, {WS_CS3}")
    k("F_cg:")
    k("  v_lshrrev_b32 v4, 3, v0\n  v_and_b32 v5, 7, v2")
    k("  v_mul_lo_u32 v6, s6, v4\n  s_lshl_b32 s14, s5, 7\n  v_lshl_add_u32 v6, v5, 4, v6\n  v_add_u32 v6, s14, v6")
    k("  s_lshl_b32 s15, s6, 6\n  s_mov_b32 s29, 0")
    for i in range(10): k(f"  buffer_load_dwordx4 v[{32+4*i}:{35+4*i}], v6, s[44:47], s29 offen\n  s_add_u32 s29, s29, s15")
    k("  s_mov_b32 s41, 0x00003f80\n  s_mov_b32 s42, 0x3f800000")
    for n in range(8): k(f"  v_mov_b32 v{16+n}, 0")
    for i in range(10):
        k(f"  s_waitcnt vmcnt({9-i})")
        for n in range(8): k(f"  v_dot2_f32_bf16 v{16+n}, v{32+4*i+(n>>1)}, s{42 if n & 1 else 41}, v{16+n}")
    for n in range(8):
        r = 16 + n
        k(f"  v_add_f32_dpp v{r}, v{r}, v{r} row_ror:8 row_mask:0xf bank_mask:0xf")
        k(f"  v_mov_b32 v24, v{r}\n  v_permlane16_swap_b32 v{r}, v24\n  v_add_f32 v{r}, v{r}, v24")
        k(f"  v_mov_b32 v24, v{r}\n  v_permlane32_swap_b32 v{r}, v24\n  v_add_f32 v{r}, v{r}, v24")
    k("  s_lshl_b32 s12, s3, 8\n  v_lshlrev_b32 v9, 5, v5\n  v_add_u32 v9, s12, v9")
    k("  ds_write_b128 v9, v[16:19]\n  ds_write_b128 v9, v[20:23] offset:16")
    k("  s_waitcnt lgkmcnt(0)\n  s_barrier")
    k("  s_cmp_lg_u32 s3, 3\n  s_cbranch_scc1 F_ax")
    k("  v_lshlrev_b32 v9, 2, v2")
    for w in range(8): k(f"  ds_read_b32 v{16+w}, v9 offset:{256*w}")
    k("  s_lshl_b32 s12, s5, 8\n  s_add_u32 s12, s12, s11")
    k("  s_waitcnt lgkmcnt(0)")
    for w in range(1, 8): k(f"  v_add_f32 v16, v16, v{16+w}")
    k("  buffer_store_dword v16, v9, s[36:39], s12 offen sc1\n  s_mov_b32 s71, 1")
    k("  s_branch F_ax")
    k("F_fl:")
    if W3A:
        k("  s_cmp_ge_u32 s72, 57\n  s_cbranch_scc1 F_fl2\n  s_sub_u32 s4, s72, 27\n  s_lshl_b32 s4, s4, 3\n  s_add_u32 s4, s4, s3")
        k(f"  s_mov_b32 s44, s52\n  s_mov_b32 s45, s53\n  s_mov_b32 s46, {640*1536*2}\n  s_mov_b32 s47, 0x00020000\n  s_mov_b32 s8, {WS_W3P}\n  s_movk_i32 s6, 3072\n  s_mov_b32 s12, 0\n  s_mov_b32 s9, 122880\n  s_movk_i32 s10, 1024\n  s_movk_i32 s7, 24576\n  s_movk_i32 s41, 6144\n  s_mov_b32 s42, 6\n  s_movk_i32 s43, 171")
        k("  s_mul_i32 s11, s4, 2731\n  s_lshr_b32 s11, s11, 16\n  s_mul_i32 s13, s11, 24\n  s_sub_u32 s5, s4, s13\n  s_branch F_go2")
        k("F_fl2:")
    k("  s_cmp_lt_u32 s72, 58\n  s_cbranch_scc1 F_ax\n  s_sub_u32 s5, s72, 58\n  s_lshl_b32 s5, s5, 14")
    k(f"  v_mov_b32 v16, 0\n  v_mov_b32 v17, 0\n  v_mov_b32 v18, 0\n  v_mov_b32 v19, 0\n  s_lshl_b32 s4, s3, 11\n  s_add_u32 s4, s4, s5\n  s_add_u32 s4, s4, {WS_FL1}")
    k("  buffer_store_dwordx4 v[16:19], v3, s[36:39], s4 offen sc1\n  buffer_store_dwordx4 v[16:19], v3, s[36:39], s4 offen offset:1024 sc1\n  s_branch F_aw")
    k("F_ax:")
    k.stamp(5)
    k("  s_cmp_lg_u32 s3, 0\n  s_cbranch_scc1 F_a2")
    gow_wait("F_pl6", int(os.environ.get("GWS", 8)))
    k("F_a2:")
    k(f"  v_mov_b32 v248, {GG_FLG}\n  v_mov_b32 v244, 0\n  v_mov_b32 v245, 0\n  v_mov_b32 v246, 0\n  v_mov_b32 v247, 0\n  ds_write_b128 v248, v[244:247]\n  ds_write_b128 v248, v[244:247] offset:16")
    k("  s_waitcnt lgkmcnt(0)\n  s_barrier")
    k.stamp(6)
    k("  s_cmp_eq_u32 s71, 0\n  s_cbranch_scc1 F_a3\n  s_waitcnt vmcnt(0)")
    top()
    k("F_a3:")
    if int(os.environ.get("WT", 0)):
        k(f"  s_lshr_b32 s12, s72, 3\n  s_lshl_b32 s12, s12, 3\n  s_add_u32 s74, s12, s3\n  s_mul_i32 s12, s74, {68*128}\n  v_min_u32 v10, 33, v2\n  v_lshlrev_b32 v10, 7, v10")
        for off in (WS_W1P, WS_W2P):
            for h in range(2): k(f"  s_add_u32 s13, s12, {off + h*34*128}\n  buffer_load_dword v11, v10, s[36:39], s13 offen sc1")
        if W3A and int(os.environ.get("W3T", 1)):
            k(f"  s_mul_i32 s12, s74, {160*128}\n  v_min_u32 v10, 39, v2\n  v_lshlrev_b32 v10, 7, v10")
            for h in range(4): k(f"  s_add_u32 s13, s12, {WS_W3P + h*40*128}\n  buffer_load_dword v11, v10, s[36:39], s13 offen sc1")
        if SLT:
            per = 57 if SLT == 1 else 61; n = 1 if SLT == 1 else 2
            k(f"  s_mul_i32 s12, s74, {per*n*128}\n  s_and_b32 s13, s2, 7\n  s_mul_i32 s13, s13, {SLAB}\n  s_add_u32 s12, s12, s13\n  v_min_u32 v10, {per-1}, v2\n  v_lshlrev_b32 v10, 7, v10")
            for i in range(n): k(f"  buffer_load_dword v11, v10, s[36:39], s12 offen\n  s_add_u32 s12, s12, {per*128}")
            assert 96 * per * n * 128 >= (SL_G if SLT == 1 else SL_G + 786432)
        k("  s_waitcnt vmcnt(0)")
    k("F_fin:")
    k.stamp_out(0, nw=8)
    tab = ktab_offsets()
    k.tail.append(".p2align 6\nF_tab:")
    for i in range(0, len(tab), 16):
        k.tail.append("  .short " + ", ".join(str(x) for x in tab[i:i+16]))
```

```python
from asmfw import K
from layout import *
from k_common import *
from k_gemm import VM, red_q, zip_lists, f32, K1, K2, P, INV640, EPS

SLOT = 20480
WR = 8; WB = 16
NSL = 7; FLG = NSL * SLOT
ACC = 48; CS = 96; ST = 120; TMP = 128; DR = 136; AL2 = 144; BE2 = 146; PT = 148; V128K = 152
HP = 154; X1P = 164; MR = 174; XV = 176
CK1, CONE = 8, 10
SPIN_LIMIT = 400000
LDS_SPIN = 1 << 23
SLACK = 4
GS = 68; GQ = 72

def cost(t):
    t = t.lstrip()
    if t.startswith("s_") or t.startswith("@VW"): return 0
    return 2 if t.split()[0] in ("v_exp_f32", "v_rcp_f32", "v_sqrt_f32") else 1

def gelu4(a, cs, C, D, pk):
    T = TMP; o = []
    if pk:
        ls = []
        for h in range(2):
            x = T + 4*h; y = x + 2; A = a + 2*h; c = cs + 2*h
            ls.append([f"  v_pk_fma_f32 v[{x}:{x+1}], v[{C}:{C+1}], v[{c}:{c+1}], v[{A}:{A+1}] op_sel_hi:[0,1,1]",
                       f"  v_pk_mul_f32 v[{y}:{y+1}], v[{x}:{x+1}], v[{x}:{x+1}]",
                       f"  v_pk_fma_f32 v[{y}:{y+1}], v[{C+2}:{C+3}], v[{y}:{y+1}], v[{C}:{C+1}] op_sel:[0,0,1] op_sel_hi:[0,1,1]",
                       f"  v_pk_mul_f32 v[{y}:{y+1}], v[{y}:{y+1}], v[{x}:{x+1}]",
                       f"  v_exp_f32 v{y}, v{y}", f"  v_exp_f32 v{y+1}, v{y+1}",
                       f"  v_pk_fma_f32 v[{y}:{y+1}], v[{y}:{y+1}], v[{C+2}:{C+3}], v[{C+2}:{C+3}] op_sel:[0,1,1] op_sel_hi:[1,1,1]",
                       f"  v_rcp_f32 v{y}, v{y}", f"  v_rcp_f32 v{y+1}, v{y+1}",
                       f"  v_pk_mul_f32 v[{x}:{x+1}], v[{x}:{x+1}], v[{y}:{y+1}]",
                       f"  v_cvt_pk_bf16_f32 v{D+h}, v{x}, v{x+1}"])
        return zip_lists(*ls)
    ls = []
    for e in range(4):
        x = T + e; y = T + 4 + e
        ls.append([f"  v_fma_f32 v{x}, v{C}, v{cs+e}, v{a+e}", f"  v_mul_f32 v{y}, v{x}, v{x}", f"  v_fma_f32 v{y}, v{C+2}, v{y}, v{C+1}",
                   f"  v_mul_f32 v{y}, v{y}, v{x}", f"  v_exp_f32 v{y}, v{y}", f"  v_fma_f32 v{y}, v{y}, v{C+3}, v{C+3}", f"  v_rcp_f32 v{y}, v{y}",
                   f"  v_mul_f32 v{x}, v{x}, v{y}"])
    for i in range(8):
        for l in ls: o.append(l[i])
    return o + [f"  v_cvt_pk_bf16_f32 v{D}, v{T}, v{T+1}", f"  v_cvt_pk_bf16_f32 v{D+1}, v{T+2}, v{T+3}"]

def ln_s(out, mean, var, m, s, t):
    out += [f"  v_cvt_pk_bf16_f32 v{t}, v{mean}, v{var}", f"  v_lshlrev_b32 v{m}, 16, v{t}", f"  v_and_b32 v{s}, s40, v{t}",
            f"  v_add_f32 v{s}, {EPS}, v{s}", f"  v_cvt_pk_bf16_f32 v{s}, v{s}, v{s}", f"  v_lshlrev_b32 v{s}, 16, v{s}",
            f"  v_sqrt_f32 v{s}, v{s}", f"  v_cvt_pk_bf16_f32 v{s}, v{s}, v{s}", f"  v_lshlrev_b32 v{s}, 16, v{s}"]
def mean_var(out, s1, s2):
    out += [f"  v_mul_f32 v{s1}, {INV640}, v{s1}", f"  v_mul_f32 v{s2}, {INV640}, v{s2}", f"  v_fma_f32 v{s2}, -v{s1}, v{s1}, v{s2}", f"  v_max_f32 v{s2}, 0, v{s2}"]
def gelu_consts(out, C, t):
    out += [f"  v_rcp_f32 v{t}, v{C+3}", f"  v_mul_f32 v{C+1}, {f32(K1)}, v{t}", f"  v_mul_f32 v{C+2}, v{t}, v{t}", f"  v_mul_f32 v{C+2}, v{C+2}, v{t}", f"  v_mul_f32 v{C+2}, {f32(K2)}, v{C+2}"]

class Stream:
    def __init__(self, k, vm): self.k = k; self.vm = vm; self.uid = 0; self.t = 90; self.ring = [WB + 4*i for i in range(8)]
    def need_ready(self, n):
        self.uid += 1; u = self.uid; k = self.k
        k(f"  s_cmp_ge_u32 s77, {n}\n  s_cbranch_scc1 GG_ro{u}")
        k(f"GG_rd{u}:\n  ds_read_b128 v[{RT4}:{RT4+3}], v{VFL}\n  s_add_u32 s76, s76, 1\n  s_waitcnt lgkmcnt(0)\n  v_min_u32 v{RT4}, v{RT4}, v{RT4+1}\n  v_min3_u32 v{RT4}, v{RT4}, v{RT4+2}, v{RT4+3}\n  v_readfirstlane_b32 s77, v{RT4}\n  s_cmp_ge_u32 s77, {n}\n  s_cbranch_scc1 GG_ro{u}\n  s_cmp_lt_u32 s76, {LDS_SPIN}\n  s_cbranch_scc1 GG_rd{u}\nGG_ro{u}:")
    def free_text(self, n): return f"  v_mov_b32 v{self.t+1}, {n}\n  ds_write_b32 v{VFW}, v{self.t+1}"
    def run(self, N, mfma_of, lds_off_of, ready_before, free_after, xwait_of, vtarget, fillers, extra_of, GW=2, FPER=2, stamps={}, bases=(3, 1, V128K), hook=None):
        PD = len(self.ring) - 1; k = self.k; vm = self.vm; fi = [0]; ops = []; st = {"nrd": 0, "cov": -1}
        def rd():
            j = st["nrd"]; st["nrd"] += 1
            if j in ready_before: self.need_ready(ready_before[j])
            off = lds_off_of(j); r = self.ring[j % len(self.ring)]
            k(f"  ds_read_b128 v[{r}:{r+3}], v{bases[off >> 16]} offset:{off & 65535}"); ops.append(j)
        def fill(i, n):
            while n > 0 and fi[0] < len(fillers) and fillers[fi[0]][0] <= i:
                t = fillers[fi[0]][1]; fi[0] += 1
                if t.startswith("@ST") or t.startswith("@HS"): vm.issue(t[3:], "S")
                elif t.startswith("@VW"): vm.wait(t[3:]); continue
                else: k(t)
                n -= cost(t)
        pend = []
        def shadow(i, last_of_step):
            lim = min(N, i + PD + (1 if last_of_step else 0))
            if st["nrd"] < lim and st["nrd"] <= i + PD - 1 + (1 if last_of_step else 0) and (st["nrd"] < i + PD - 1 or not (vm.qpos < min(vtarget(i), len(vm.q)) or pend) or last_of_step): rd()
            elif vm.qpos < min(vtarget(i), len(vm.q)): vm.upto(vm.qpos + 1)
            elif pend: k(pend.pop(0)); ops.append(None)
            else: fill(i, FPER)
        while st["nrd"] < min(PD, N): rd()
        if hook: hook()
        for i in range(N):
            if i in stamps: k.stamp(stamps[i])
            while st["nrd"] <= i: rd()
            if st["cov"] < i:
                last = min(st["nrd"] - 1, i + GW - 1)
                idx = ops.index(last); k(f"  s_waitcnt lgkmcnt({min(15, len(ops) - 1 - idx)})"); del ops[:idx + 1]; st["cov"] = last
            xt = xwait_of(i)
            if xt and not P("NOXW", 0): vm.wait(xt)
            ms = mfma_of(i, self.ring[i % len(self.ring)]); ex = extra_of(i)
            for n, m in enumerate(ms + ex):
                k(m); shadow(i, n >= len(ms) - 1)
            if len(ms) + len(ex) == 1:
                if vm.qpos < min(vtarget(i), len(vm.q)): vm.upto(vm.qpos + 1)
                elif pend: k(pend.pop(0)); ops.append(None)
            if i in free_after: pend.append(self.free_text(free_after[i]))
        for p_ in pend: k(p_)
        vm.upto(10**9)
        fill(10**9, 10**9)

import os
STP = os.environ.get("STP", "g1,s1,g2,s2,g3,s3").split(",")
XF = os.environ.get('XF', ' sc1')
SLT = int(os.environ.get('SLT', 0))
KGS = KG_STRIDE; PSL = P("PSLEEP", 0)
LSTAMP = bool(os.environ.get('STAMPS'))
VH = 151; RT4 = 140; VFL2 = 13; VFL = 153; VFW = 0
def gen_gg(k):
    def sp(name):
        if name in STP: k.stamp(1 + STP.index(name))
    def spd(d): return {i: 1 + STP.index(n) for i, n in d.items() if n in STP}
    vm = VM(k); st = Stream(k, vm)
    uid = [0]
    def hstore(text, pre="", post="", local=SLT >= 1):
        if not local: return f"@HS{pre}{text} sc1{post}"
        uid[0] += 1; n = uid[0]
        return f"@HS{pre}  s_cmp_lg_u32 s75, 0\n  s_cbranch_scc1 GG_hf{n}\n{text} sc1\n  s_branch GG_he{n}\nGG_hf{n}:\n{text}\nGG_he{n}:{post}"
    k(f"  s_load_dwordx2 s[44:45], s[0:1], {KA_OUT}")
    k(f"  v_lshlrev_b32 v3, 4, v2\n  v_mov_b32 v{VFL}, {FLG}")
    k(f"  s_and_b32 s19, s2, 7\n  s_lshl_b32 s4, s19, 2\n  s_bfe_u32 s5, s2, 0x20003\n  s_add_u32 s4, s4, s5\n  s_lshr_b32 s5, s2, 5\n  s_lshr_b32 s25, s2, 4")
    k("  s_and_b32 s74, s4, 3\n  s_lshl_b32 s74, s74, 1\n  s_add_u32 s74, s74, s5\n  s_mul_i32 s74, s74, 3\n  s_lshr_b32 s74, s74, 1\n  s_sub_u32 s12, s74, 12\n  s_cmp_ge_u32 s74, 12\n  s_cselect_b32 s74, s12, s74")
    k("  s_add_u32 s65, s4, s5\n  s_and_b32 s65, s65, 3\n  s_bfe_u32 s66, s2, 0x10003\n  s_lshl_b32 s66, s66, 1\n  s_add_u32 s66, s66, s25\n  s_and_b32 s66, s66, 3")
    k("  s_mov_b32 s76, 0\n  s_cmp_ge_u32 s3, 4\n  s_cbranch_scc1 GG_loader")
    k(f"  v_and_b32 v6, 15, v2\n  v_lshrrev_b32 v7, 4, v2\n  v_add_u32 v1, 0x10000, v3\n  v_add_u32 v{V128K}, 0x20000, v3")
    k(f"  s_lshl_b32 s12, s3, 2\n  s_add_u32 s12, s12, {FLG+16}\n  v_mov_b32 v{VFW}, s12")
    k(f"  v_mul_u32_u24 v4, {2*QS}, v7\n  v_lshl_add_u32 v4, v6, 3, v4\n  v_add_u32 v15, {QS}, v4\n  v_mul_u32_u24 v5, {KGS}, v7\n  v_lshl_add_u32 v5, v6, 4, v5")
    k("  s_mov_b32 s40, 0xffff0000\n  s_mov_b32 s41, 0x3f803f80")
    k("  v_mov_b32 v8, s41\n  v_mov_b32 v9, s41\n  v_mov_b32 v10, s41\n  v_mov_b32 v11, s41")
    k(f"  s_mul_i32 s67, s19, {SLAB}")
    k("  s_mul_i32 s20, s5, 5\n  s_add_u32 s20, s20, 1\n  s_lshr_b32 s20, s20, 1\n  s_lshr_b32 s21, s5, 1\n  s_mul_i32 s21, s21, 5\n  s_add_u32 s21, s21, 2\n  s_and_b32 s22, s5, 1")
    k(f"  s_mul_i32 s48, s20, {8*QS}\n  s_add_u32 s49, s48, {8*QS}\n  s_mul_i32 s50, s21, {8*QS}\n  s_lshl_b32 s23, s22, 3\n  s_mul_i32 s12, s22, {QS}\n  s_add_u32 s50, s50, s12")
    k(f"  s_mul_i32 s62, s20, {4*KGS}\n  s_add_u32 s63, s62, {4*KGS}\n  s_mul_i32 s64, s21, {4*KGS}\n  s_lshl_b32 s12, s22, 11\n  s_add_u32 s64, s64, s12")
    k("  s_lshl_b32 s6, s4, 2\n  s_add_u32 s6, s6, s3\n  s_lshl_b32 s18, s6, 7\n  s_and_b32 s68, s6, 15")
    k("  s_lshl_b32 s69, s68, 8\n  s_add_u32 s69, s69, s67\n  s_lshl_b32 s12, s68, 7\n  s_sub_u32 s64, s64, s12")
    k(f"  v_mul_u32_u24 v{VH}, {KGS}, v7\n  v_lshl_add_u32 v{VH}, v6, 3, v{VH}")
    k("  s_lshl_b32 s24, s19, 1\n  s_bfe_u32 s27, s2, 0x10003\n  s_add_u32 s24, s24, s27")
    k("  s_lshl_b32 s26, s24, 3\n  s_lshl_b32 s12, s3, 1\n  s_add_u32 s26, s26, s12\n  s_and_b32 s27, s26, 15")
    k("  s_sub_u32 s31, s74, 1")
    SLO = lambda j: (j % NSL) * SLOT
    def emit_hs(t): vm.issue(t[3:], "S")
    def publish(n, flag_off):
        vm.wait("S"); sp(f"s{n}a")
        k(flag_off)
        k(f"  v_mov_b32 v{PT}, 1\n  v_mov_b32 v{PT+1}, 0\n  s_mov_b64 exec, 1")
        t = f"  buffer_store_dword v{PT}, v{PT+1}, s[36:39], s12 offen"
        vm.issue(f"  s_cmp_lg_u32 s75, 0\n  s_cbranch_scc1 GG_ff{n}\n{t} sc1\n  s_branch GG_fe{n}\nGG_ff{n}:\n{t}\nGG_fe{n}:", "F")
        k("  s_mov_b64 exec, -1")
    def poll(n, setup):
        k(setup)
        k("  s_mov_b32 s13, 0\n  s_mov_b64 exec, 0xffff")
        k(f"GG_poll{n}:")
        k(f"  buffer_load_dword v{PT}, v{PT+1}, s[36:39], 0 offen sc1\n  s_waitcnt vmcnt(0)\n  v_cmp_ne_u32 vcc, 0, v{PT}\n  s_add_u32 s13, s13, 1")
        k(f"  s_cmp_eq_u64 vcc, exec\n  s_cbranch_scc1 GG_np{n}\n  {('s_sleep %d' % PSL) if PSL else 's_nop 0'}\n  s_cmp_lt_u32 s13, {SPIN_LIMIT}\n  s_cbranch_scc1 GG_poll{n}")
        k(f"GG_np{n}:\n  s_mov_b64 exec, -1")
        vm.done = len(vm.ops) - 1

    def xrot_setup(stride, rreg):
        k(f"  s_mov_b32 s8, s7\n  s_add_u32 s9, s7, {20*stride}\n  s_mul_i32 s12, s{rreg}, {5*stride}\n  s_add_u32 s7, s7, s12\n  s_sub_u32 s7, s7, {stride}")
    def xadv(i, stride):
        return f"  s_add_u32 s7, s7, {stride}" + ("\n  s_cmp_eq_u32 s7, s9\n  s_cselect_b32 s7, s8, s7" if (i % 5 == 0 and i) else "")
    def xpush_s(which, i, rt, reg, lrt_reg):
        pre = xadv(i, 4*KGS) if rt == 0 else None
        if i % 5 != 2:
            vm.push(pre, f"  buffer_load_dwordx4 v[{reg}:{reg+3}], v5, s[36:39], s7 offen offset:{256*rt}{XF}", f"X{which}_{i}")
        else:
            if rt == 0: pre += f"\n  s_lshl_b32 s11, s{lrt_reg}, 7\n  s_sub_u32 s11, s7, s11"
            vm.push(pre, f"  buffer_load_dwordx2 v[{reg}:{reg+1}], v{VH}, s[36:39], s11 offen offset:{128*rt}{XF}", f"X{which}_{i}")
            vm.push(None, f"  buffer_load_dwordx2 v[{reg+2}:{reg+3}], v{VH}, s[36:39], s11 offen offset:{2048+128*rt}{XF}", f"X{which}_{i}")

    def gemm_phase(which, J0, NT, RT, NB, XR, pre_fill, epi_tile, store, extra, LOOK, FPER, stamps, before=None):
        KS = 20
        steps = [(nt, ks) for ks in range(KS) for nt in range(NB)] + [(nt, ks) for nt in range(NB, NT) for ks in range(KS)]
        last_step = {nt: max(i for i, s in enumerate(steps) if s[0] == nt) for nt in range(NT)}
        NBS = NB * KS
        fillers = list(pre_fill(NBS))
        N = len(steps); cur = 0.0
        for e, x in fillers: cur = max(cur, e) + cost(x) / (FPER * RT)
        inside = True
        for j in range(3):
            tiles = [t for t in (2*j, 2*j+1) if t < NT]
            for t in tiles:
                for rt in range(RT):
                    e = max(last_step[t], NBS - 1) + 3
                    u = epi_tile(t, rt, False)
                    need = sum(cost(x) for x in u) / (FPER * RT)
                    if inside and max(cur, e) + need <= N + SLACK: cur = max(cur, e) + need
                    else: inside = False; u = epi_tile(t, rt, True); e = 10**8
                    fillers += [(e, x) for x in u]
                    if t == tiles[-1]: fillers += [(e, x) for x in store(j, rt)]
        def mfma_of(i, w):
            nt, ks = steps[i]; out = []
            for rt in range(RT):
                a = ACC + (nt * RT + rt) * 4
                c = "0" if ks == 0 else f"v[{a}:{a+3}]"
                out.append(f"  v_mfma_f32_16x16x32_bf16 v[{a}:{a+3}], v[{w}:{w+3}], {XR(rt, ks)}, {c}")
            return out
        xt = lambda ks: f"X{which}_{ks}"
        def xwait(i): return xt(steps[i][1]) if (i < NBS and steps[i][0] == 0) else None
        def vtarget(i): return vm.index_of(xt(steps[i][1])) + 1 + LOOK if i < NBS else vm.qpos + 1
        assert NB == NT
        ready = {20 * c: J0 + c + 1 for c in range(NT)}; free = {20 * c + 19: J0 + c + 1 for c in range(NT)}
        def hook():
            if before: before()
            vm.upto(vm.index_of(xt(P("XFIRST", 4))) + 1)
        if before is None: hook()
        st.run(N, mfma_of, lambda j: SLO(J0 + j // 20) + (j % 20) * 1024, ready, free, xwait, vtarget, fillers,
               lambda i: extra(steps[i], i < NBS), GW=P('GW', 4) if RT == 1 else 2, FPER=FPER, stamps=stamps(NBS), hook=hook if before else None)

    VS1 = 88
    k("  s_lshr_b32 s12, s5, 1\n  s_lshr_b32 s13, s12, 1\n  s_add_u32 s13, s13, 1\n  s_sub_u32 s14, 0, s13\n  s_and_b32 s12, s12, 1\n  s_cmp_eq_u32 s12, 0\n  s_cselect_b32 s13, s14, s13")
    k(f"  s_lshl_b32 s12, s13, 3\n  s_add_u32 s7, s18, s12\n  s_add_u32 s7, s7, {WS_HQ}")
    xrot_setup(8*QS, 65)
    k(f"  s_lshl_b32 s12, s6, 4\n  s_add_u32 s12, s12, s13\n  v_add_u32 v{TMP+1}, s12, v6\n  s_movk_i32 s12, 0x800\n  v_cmp_gt_u32 s[60:61], s12, v{TMP+1}")
    k(f"  v_lshlrev_b32 v{VS1}, 3, v6\n  s_and_b32 s12, s5, 5\n  s_cmp_eq_u32 s12, 0\n  s_cselect_b32 s70, 0xffff, 0\n  s_mov_b32 s71, 0\n  s_lshl_b32 s12, s5, 6\n  v_add_u32 v{VS1}, s12, v{VS1}")
    k(f"  v_lshlrev_b32 v{TMP}, 5, v7\n  s_lshl_b32 s51, s20, 7\n  s_add_u32 s51, s51, {WS_CS1}\n  s_lshl_b32 s52, s21, 7\n  s_lshl_b32 s12, s22, 4\n  s_add_u32 s52, s52, s12\n  s_add_u32 s52, s52, {WS_CS1}")
    k(f"  v_and_b32 v{ST}, 3, v6\n  v_cmp_eq_u32 s[42:43], 1, v{ST}\n  v_cmp_eq_u32 s[58:59], 2, v{ST}\n  v_cmp_eq_u32 s[78:79], 3, v{ST}\n  v_lshrrev_b32 v{ST}, 2, v6\n  v_cmp_eq_u32 s[56:57], v7, v{ST}")
    k(f"  s_add_u32 s17, s69, {SL_KG1}")
    for j in range(3): k(f"  s_add_u32 s{53+j}, s{62+j}, s17")
    k(f"  s_add_u32 s16, s18, {WS_HQ}")
    for j in range(3): k(f"  s_add_u32 s{72+j}, s16, s{48+j}")
    k("  s_getreg_b32 s30, hwreg(HW_REG_XCC_ID, 0, 4)\n  s_or_b32 s30, s30, 0x100")
    k(f"  s_lshl_b32 s75, s19, 7\n  s_add_u32 s75, s75, {WS_XID}\n  s_lshr_b32 s14, s2, 3\n  s_lshl_b32 s14, s14, 2\n  v_mov_b32 v{TMP+2}, s14\n  v_mov_b32 v{TMP+3}, s30")
    k(f"  s_cmp_eq_u32 s3, 0\n  s_cselect_b32 s10, 1, 0\n  s_mov_b32 s11, 0\n  v_and_b32 v89, 31, v2\n  v_lshlrev_b32 v89, 2, v89")
    vm.push("  s_mov_b64 exec, s[10:11]", f"  buffer_store_dword v{TMP+3}, v{TMP+2}, s[36:39], s75 offen sc1\n  s_mov_b64 exec, -1", "I")
    for ks in range(20):
        vm.push(xadv(ks, 8*QS), f"  buffer_load_dwordx2 v[{XV+4*ks}:{XV+4*ks+1}], v4, s[36:39], s7 offen{XF}", f"X1_{ks}")
        vm.push(None, f"  buffer_load_dwordx2 v[{XV+4*ks+2}:{XV+4*ks+3}], v15, s[36:39], s7 offen{XF}", f"X1_{ks}")
    for lt in range(5):
        vm.push(None, f"  buffer_load_dwordx4 v[{CS+4*lt}:{CS+4*lt+3}], v{TMP}, s[36:39], s{51 if lt < 4 else 52} offen offset:{(128*(lt>>1) + 16*(lt&1)) if lt < 4 else 0} sc1", "CS")
    for lt in range(5):
        vm.push(None, f"  buffer_load_dwordx2 v[{HP+2*lt}:{HP+2*lt+1}], v{15 if (lt < 4 and lt & 1) else 4}, s[36:39], s{72+(lt>>1)} offen{XF}", "H")
    vm.push(None, f"  buffer_load_dword v{PT+2}, v89, s[36:39], s75 offen sc1", "XID")
    k("  s_waitcnt lgkmcnt(0)")
    k(f"  s_mov_b32 s46, {ACT_BYTES}\n  s_mov_b32 s47, 0x00020000")
    if P("FLT", 1):
        k(f"  v_and_b32 v{TMP+4}, 15, v2\n  v_lshrrev_b32 v{TMP+5}, 4, v2\n  v_min_u32 v{TMP+5}, 2, v{TMP+5}\n  v_lshrrev_b32 v{TMP+6}, 1, v{TMP+5}\n  s_lshl_b32 s12, s19, 4\n  v_add_u32 v{TMP+4}, s12, v{TMP+4}\n  v_lshrrev_b32 v{TMP+4}, v{TMP+6}, v{TMP+4}")
        k(f"  v_lshlrev_b32 v{TMP+4}, 7, v{TMP+4}\n  v_lshl_add_u32 v{TMP+4}, v{TMP+5}, 14, v{TMP+4}\n  s_mov_b32 s12, {WS_FL1}")
        vm.issue(f"  buffer_load_dword v{PT+1}, v{TMP+4}, s[36:39], s12 offen sc1", "T")
    vm.upto(1)
    if P("GG_PRIO", 1): k("  s_setprio 2")
    if P("G1_TW", 0): vm.wait("T")
    k("  s_waitcnt lgkmcnt(0)\n  s_mov_b32 s77, 0")
    sp("g1t")
    MODE = (f"  s_mov_b32 s13, 0\nGG_xr:\n  v_cmp_ne_u32 vcc, 0, v{PT+2}\n  s_cmp_eq_u64 vcc, -1\n  s_cbranch_scc1 GG_xo\n  s_add_u32 s13, s13, 1\n  s_cmp_ge_u32 s13, {SPIN_LIMIT}\n  s_cbranch_scc1 GG_xo\n"
            f"  buffer_load_dword v{PT+2}, v89, s[36:39], s75 offen sc1\n  s_waitcnt vmcnt(0)\n  s_branch GG_xr\nGG_xo:\n"
            f"  v_cmp_eq_u32 vcc, s30, v{PT+2}\n  s_cmp_eq_u64 vcc, -1\n  s_cselect_b32 s75, {0 if os.environ.get('FORCE_SLOW') else 1}, 0")
    def pre1(NBS):
        o = [f"  v_cndmask_b32 v{ST+1}, v{GQ}, v{GQ+1}, s[42:43]", f"  v_cndmask_b32 v{ST+1}, v{ST+1}, v{GQ+2}, s[58:59]", f"  v_cndmask_b32 v{ST+1}, v{ST+1}, v{GQ+3}, s[78:79]",
             f"  v_cndmask_b32 v{ST+1}, 0, v{ST+1}, s[56:57]", f"  v_mov_b32 v{ST}, v{GS}"]
        red_q(o, ST+1, ST+2)
        mean_var(o, ST, ST+1)
        ln_s(o, ST, ST+1, MR, ST+3, ST+2)
        o += [f"  v_rcp_f32 v{MR+1}, v{ST+3}", f"  v_sub_f32 v{ST}, v{ST}, v{MR}", f"  v_mul_f32 v{ST}, v{ST}, v{MR+1}", f"  v_mul_f32 v{ST+1}, v{ST+1}, v{MR+1}", f"  v_mul_f32 v{ST+1}, v{ST+1}, v{MR+1}"]
        ln_s(o, ST, ST+1, ST+4, ST+5, ST+2)
        o += [f"  v_fma_f32 v12, -v{ST+4}, v{ST+3}, -v{MR}", f"  v_mul_f32 v15, v{ST+3}, v{ST+5}"]
        gelu_consts(o, 12, ST+2)
        o += [f"  s_lshl_b32 s14, s6, 8\n  s_add_u32 s14, s14, {WS_ST1}",
              hstore(f"  buffer_store_dwordx2 v[{MR}:{MR+1}], v{VS1}, s[36:39], s14 offen", "  s_mov_b64 exec, s[70:71]\n", "\n  s_mov_b64 exec, -1", local=False), "@VWCS", "@VWXID", MODE]
        return [(NBS + 3, t) for t in o]
    def epi1(nt, rt, pk):
        D = DR + 2 * (nt & 1)
        return gelu4(ACC + 4*nt, CS + 4*nt, 12, D, pk) + [f"  v_cndmask_b32 v{D}, 0, v{D}, s[60:61]", f"  v_cndmask_b32 v{D+1}, 0, v{D+1}, s[60:61]"]
    def store1(j, rt):
        w = 4 if j < 2 else 2
        return [hstore(f"  buffer_store_dwordx{w} v[{DR}:{DR+w-1}], v{5 if j < 2 else VH}, s[36:39], s{53+j} offen")]
    def extra1(step, inB):
        nt, ks = step
        if inB and nt < 2:
            x = XV + 4*ks
            if nt == 0: return [f"  v_mfma_f32_16x16x32_bf16 v[{GS}:{GS+3}], v[8:11], v[{x}:{x+3}], {'0' if ks == 0 else f'v[{GS}:{GS+3}]'}"]
            return [f"  v_mfma_f32_16x16x32_bf16 v[{GQ}:{GQ+3}], v[{x}:{x+3}], v[{x}:{x+3}], {'0' if ks == 0 else f'v[{GQ}:{GQ+3}]'}"]
        return []
    def before1():
        k(f"  s_and_b32 s12, s2, 63\n  s_lshl_b32 s12, s12, 7\n  s_add_u32 s12, s12, {WS_GOH}\n  v_lshl_add_u32 v{PT}, v2, 2, s12\n  s_mov_b32 s13, 0\n  s_mov_b64 exec, 0x1ff\nGG_gh:\n  buffer_load_dword v{PT+1}, v{PT}, s[36:39], 0 offen sc1\n  s_waitcnt vmcnt(0)\n  v_cmp_ne_u32 vcc, 0, v{PT+1}\n  s_add_u32 s13, s13, 1")
        k(f"  s_cmp_eq_u64 vcc, exec\n  s_cbranch_scc1 GG_go\n  s_sleep {P('GSLEEP', 4)}\n  s_cmp_lt_u32 s13, {SPIN_LIMIT}\n  s_cbranch_scc1 GG_gh\nGG_go:\n  s_mov_b64 exec, -1")
        vm.done = len(vm.ops) - 1
        sp("g0")
    X1R = lambda rt, ks: f"v[{XV+4*ks}:{XV+4*ks+3}]"
    R8 = list(st.ring)
    st.ring = (R8 + [76, 80, 84, 92, 164, 168])[:P("G1_WR", 14)]
    gemm_phase(1, 0, 5, 1, P("G1_NB", 5), X1R, pre1, epi1, store1, extra1, P("G1_LOOK", 16), P("G1_FPER", 2),
               lambda NBS: spd({2: "g1a", NBS // 2: "g1h", NBS - 1: "g1b"}), before=before1)
    sp("g1")
    k(f"  v_lshlrev_b32 v{ST+7}, 3, v6\n  v_add_u32 v{ST+7}, 8, v{ST+7}\n  v_cmp_eq_u32 vcc, 15, v6\n  v_mov_b32 v{ST+6}, {128+14*8}\n  v_cndmask_b32 v{ST+7}, v{ST+7}, v{ST+6}, vcc")
    vm.issue(f"  buffer_load_dwordx2 v[{MR}:{MR+1}], v{ST+7}, s[36:39], s14 offen sc1", "ST1")
    publish(1, f"  s_lshl_b32 s12, s6, 7\n  s_lshl_b32 s13, s5, 2\n  s_add_u32 s12, s12, s13\n  s_add_u32 s12, s12, {WS_FL1}")
    k(f"  s_mov_b32 s7, s17\n  s_add_u32 s17, s69, {SL_KG0}")
    xrot_setup(4*KGS, 65)
    for j in range(3): k(f"  s_add_u32 s{54+j}, s17, s{62+j}")
    st.t = 8
    st.ring = (R8 + [88, 92, 136, 144])[:P("G2_WR", 14)]
    for ks in range(20): xpush_s(2, ks, 0, XV + 4*ks, 68)
    k(f"  v_lshlrev_b32 v{ST+6}, 5, v7\n  s_mul_i32 s51, s25, 384\n  s_add_u32 s51, s51, {WS_CS3}")
    for nt in range(6): vm.push(None, f"  buffer_load_dwordx4 v[{CS+4*nt}:{CS+4*nt+3}], v{ST+6}, s[36:39], s51 offen offset:{128*(nt>>1) + 16*(nt&1)} sc1", "CS")
    XB = 68
    def before2():
        vm.wait("ST1")
        k(f"  s_mov_b32 s13, 0\nGG_s1:\n  v_cmp_ne_u32 vcc, 0, v{MR+1}\n  s_add_u32 s13, s13, 1\n  s_cmp_eq_u64 vcc, -1\n  s_cbranch_scc1 GG_s1o\n  s_cmp_ge_u32 s13, {SPIN_LIMIT}\n  s_cbranch_scc1 GG_s1o")
        k(f"  buffer_load_dwordx2 v[{MR}:{MR+1}], v{ST+7}, s[36:39], s14 offen sc1\n  s_waitcnt vmcnt(0)\n  s_branch GG_s1\nGG_s1o:")
        ls = []
        for i in range(10):
            o = XB + 2*i; r = HP + i; t = TMP + (i & 3)
            ls.append([f"  v_lshlrev_b32 v{o}, 16, v{r}", f"  v_and_b32 v{o+1}, s40, v{r}",
                    f"  v_pk_add_f32 v[{o}:{o+1}], v[{o}:{o+1}], v[{MR}:{MR+1}] op_sel_hi:[1,0] neg_lo:[0,1] neg_hi:[0,1]",
                    f"  v_cvt_pk_bf16_f32 v{t}, v{o}, v{o+1}", f"  v_lshlrev_b32 v{o}, 16, v{t}", f"  v_and_b32 v{o+1}, s40, v{t}",
                    f"  v_pk_mul_f32 v[{o}:{o+1}], v[{o}:{o+1}], v[{MR}:{MR+1}] op_sel:[0,1] op_sel_hi:[1,1]",
                    f"  v_cvt_pk_bf16_f32 v{t}, v{o}, v{o+1}", f"  v_lshlrev_b32 v{o}, 16, v{t}", f"  v_and_b32 v{o+1}, s40, v{t}"])
        for l in ls:
            for x in l: k(x)
        poll(1, f"  s_lshl_b32 s12, s6, 7\n  s_add_u32 s12, s12, {WS_FL1}\n  v_and_b32 v{PT+1}, 7, v2\n  v_lshl_add_u32 v{PT+1}, v{PT+1}, 2, s12")
        sp("s1")
    def epi2(nt, rt, pk):
        a = ACC + 4*nt; D = X1P + 2*nt; ls = []
        for h in range(2):
            t = TMP + 2*h; x = XB + 4*nt + 2*h
            add = [f"  v_pk_add_f32 v[{t}:{t+1}], v[{t}:{t+1}], v[{x}:{x+1}]"] if pk else [f"  v_add_f32 v{t}, v{t}, v{x}", f"  v_add_f32 v{t+1}, v{t+1}, v{x+1}"]
            ls.append([f"  v_cvt_pk_bf16_f32 v{D+h}, v{a+2*h}, v{a+2*h+1}", f"  v_lshlrev_b32 v{t}, 16, v{D+h}", f"  v_and_b32 v{t+1}, s40, v{D+h}"] + add + [f"  v_cvt_pk_bf16_f32 v{D+h}, v{t}, v{t+1}"])
        return zip_lists(*ls)
    def store2(j, rt):
        w = 4 if j < 2 else 2
        return [hstore(f"  buffer_store_dwordx{w} v[{X1P+4*j}:{X1P+4*j+w-1}], v{5 if j < 2 else VH}, s[36:39], s{54+j} offen")]
    gemm_phase(2, 5, 5, 1, P("G2_NB", 5), X1R, lambda NBS: [], epi2, store2, lambda s, b: [], P("G2_LOOK", 10), P("G2_FPER", 2),
               lambda NBS: spd({2: "g2a", NBS // 2: "g2h", NBS - 1: "g2b"}), before=before2)
    for i in range(10):
        k(f"  v_dot2_f32_bf16 v{ST+4}, v{X1P+i}, s41, {'0' if i == 0 else f'v{ST+4}'}\n  v_dot2_f32_bf16 v{ST+5}, v{X1P+i}, v{X1P+i}, {'0' if i == 0 else f'v{ST+5}'}")
    o = []; o2 = []; red_q(o, ST+4, TMP); red_q(o2, ST+5, TMP+1)
    for l in zip_lists(o, o2): k(l)
    k(f"  s_lshl_b32 s14, s68, 10\n  s_lshl_b32 s12, s5, 7\n  s_add_u32 s14, s14, s12\n  s_add_u32 s14, s14, s67\n  s_add_u32 s14, s14, {SL_ST2}\n  v_lshlrev_b32 v{TMP}, 3, v6")
    emit_hs(hstore(f"  buffer_store_dwordx2 v[{ST+4}:{ST+5}], v{TMP}, s[36:39], s14 offen", "  s_mov_b64 exec, 0xffff\n", "\n  s_mov_b64 exec, -1"))
    sp("g2")
    publish(2, f"  s_lshl_b32 s12, s6, 7\n  s_lshl_b32 s13, s5, 2\n  s_add_u32 s12, s12, s13\n  s_add_u32 s12, s12, {WS_FL2}")
    k(f"  s_lshl_b32 s7, s27, 8\n  s_add_u32 s7, s7, s67\n  s_add_u32 s7, s7, {SL_KG0}")
    xrot_setup(4*KGS, 66)
    k(f"  v_lshlrev_b32 v{TMP+1}, 3, v6\n  v_lshl_add_u32 v{TMP+1}, v7, 8, v{TMP+1}\n  s_lshl_b32 s14, s27, 10\n  s_add_u32 s14, s14, s67\n  s_add_u32 s14, s14, {SL_ST2}")
    k(f"  s_mul_i32 s17, s27, {48*1024}\n  s_mul_i32 s12, s25, 3072\n  s_add_u32 s17, s17, s12\n  s_add_u32 s17, s17, s67\n  s_add_u32 s17, s17, {SL_G}\n  s_add_u32 s16, s17, {48*1024}")
    st.ring = R8
    X3R = lambda rt, ks: f"v[{XV+((ks%10)*2+rt)*4}:{XV+((ks%10)*2+rt)*4+3}]"
    for ks in range(20):
        for rt in range(2):
            xpush_s(3, ks, rt, XV + ((ks % 10) * 2 + rt) * 4, 27)
        if ks == 3:
            for rt in range(2):
                for h in range(2): vm.push(None, f"  buffer_load_dwordx2 v[{ST+4*rt+2*h}:{ST+4*rt+2*h+1}], v{TMP+1}, s[36:39], s14 offen offset:{1024*rt+128*h} sc1", "ST")
    CN = [12, AL2]
    def before3():
        poll(2, f"  s_lshl_b32 s12, s26, 7\n  s_add_u32 s12, s12, {WS_FL2}\n  v_and_b32 v{PT+1}, 7, v2\n  v_lshl_add_u32 v{PT+1}, v{PT+1}, 2, s12\n  v_bfe_u32 v{PT}, v2, 3, 1\n  v_lshl_add_u32 v{PT+1}, v{PT}, 7, v{PT+1}")
        sp("s2")
    def pre3(NBS):
        pre = ["@VWST"]
        for rt in range(2):
            b = ST + 4*rt; C = CN[rt]
            pre += [f"  v_add_f32 v{b}, v{b}, v{b+2}", f"  v_add_f32 v{b+1}, v{b+1}, v{b+3}"]
            red_q(pre, b, b+2); red_q(pre, b+1, b+2)
            mean_var(pre, b, b+1)
            ln_s(pre, b, b+1, b+2, C+3, b+3)
            pre += [f"  v_sub_f32 v{C}, 0, v{b+2}"]
            gelu_consts(pre, C, b+3)
        return [(40, t) for t in pre]
    def epi3(nt, rt, pk): return gelu4(ACC + (nt*2+rt)*4, CS + 4*nt, CN[rt], DR + 4*rt + 2*(nt & 1), pk)
    def store3(j, rt):
        if SLT < 2: return [f"@ST  buffer_store_dwordx4 v[{DR+4*rt}:{DR+4*rt+3}], v3, s[36:39], s{17-rt} offen offset:{1024*j} sc1"]
        return [hstore(f"  buffer_store_dwordx4 v[{DR+4*rt}:{DR+4*rt+3}], v3, s[36:39], s{17-rt} offen offset:{1024*j}")]
    gemm_phase(3, 10, 6, 2, 6, X3R, pre3, epi3, store3, lambda s, b: [], min(16, P("G3_LOOK", 12)), 2,
               lambda NBS: spd({2: "g3a", NBS // 2: "g3h", NBS - 1: "g3b"}), before=before3)
    sp("g3")
    publish(3, f"  s_lshr_b32 s12, s26, 1\n  s_lshl_b32 s12, s12, 7\n  s_lshl_b32 s13, s25, 2\n  s_add_u32 s12, s12, s13\n  s_add_u32 s12, s12, {WS_FL3}")
    k(f"  s_and_b32 s12, s3, 1\n  s_lshl_b32 s12, s12, 11\n  s_mul_i32 s7, s68, {48*1024}\n  s_add_u32 s7, s7, s67\n  s_add_u32 s7, s7, s12\n  s_add_u32 s7, s7, {SL_G}")
    k(f"  s_xor_b32 s13, s68, 1\n  s_sub_u32 s15, s13, s68\n  s_mul_i32 s15, s15, {48*1024}")
    k(f"  v_add_u32 v8, s12, v3\n  v_add_u32 v9, 0x10000, v8\n  v_add_u32 v10, 0x20000, v8")
    k("  s_lshl_b32 s57, s20, 6\n  s_add_u32 s58, s57, 64\n  s_lshl_b32 s59, s21, 6\n  s_add_u32 s59, s59, s23")
    k("  s_lshl_b32 s12, s6, 4\n  v_add_u32 v11, s12, v6\n  s_movk_i32 s12, 1280\n  v_mul_lo_u32 v11, s12, v11\n  v_lshl_add_u32 v11, v7, 4, v11")
    XSL = SLO(21)
    k(f"  s_mul_i32 s12, s3, 5120\n  s_add_u32 s12, s12, {XSL}\n  v_add_u32 v12, s12, v3\n  s_xor_b32 s13, s3, 1\n  s_mul_i32 s13, s13, 5120\n  s_add_u32 s13, s13, {XSL}\n  v_add_u32 v13, s13, v3")
    st.t = 90
    XLEAD = min(3, P("G4_XLEAD", 3))
    pos = {}
    X4R = lambda c, j, o: XV + ((c % 5) * 4 + 2*j + o) * 4
    def x4(c):
        for j in range(2):
            for o in range(2):
                pre = "  s_add_u32 s31, s31, 1\n  s_cmp_eq_u32 s31, 12\n  s_cselect_b32 s31, 0, s31\n  s_lshl_b32 s11, s31, 12\n  s_add_u32 s11, s11, s7\n  s_add_u32 s14, s11, s15" if (j == 0 and o == 0) else None
                x = X4R(c, j, o)
                vm.push(pre, f"  buffer_load_dwordx4 v[{x}:{x+3}], v3, s[36:39], s{14 if o else 11} offen offset:{j*1024}{XF}", f"X4_{c}_{j}")
    for c in range(XLEAD + 1): x4(c)
    for c in range(12):
        pos[c] = len(vm.q)
        if c + XLEAD + 1 < 12: x4(c + XLEAD + 1)
    pos[12] = len(vm.q)
    steps = [(c, j, nt) for c in range(12) for j in range(2) for nt in range(5)]
    def mfma4(i, w):
        c, j, nt = steps[i]; out = []
        for o in range(2):
            a = ACC + 20*o + 4*nt; x = X4R(c, j, o)
            cc = "0" if (c == 0 and j == 0) else f"v[{a}:{a+3}]"
            out.append(f"  v_mfma_f32_16x16x32_bf16 v[{a}:{a+3}], v[{w}:{w+3}], v[{x}:{x+3}], {cc}")
        return out
    ready4 = {c * 10: 16 + c + 1 for c in range(12 if not P('NORDY', 0) else 1)}
    free4 = {c * 10 + 9: 16 + c + 1 for c in range(6)}
    def vt4(i):
        c = i // 10; f = (i % 10 + 1) / 10
        return pos[c] + int(f * (pos[c+1] - pos[c]) + 0.999)
    UX = CS; UH = 120
    fill4 = []
    for i in range(10):
        fill4 += [(20, f"  v_lshlrev_b32 v{UX+2*i}, 16, v{X1P+i}"), (20, f"  v_and_b32 v{UX+2*i+1}, s40, v{X1P+i}"),
                  (20, f"  v_lshlrev_b32 v{UH+2*i}, 16, v{HP+i}"), (20, f"  v_and_b32 v{UH+2*i+1}, s40, v{HP+i}")]
    def before4():
        poll(3, f"  s_lshr_b32 s12, s6, 1\n  s_lshl_b32 s12, s12, 7\n  s_add_u32 s12, s12, {WS_FL3}\n  v_lshl_add_u32 v{PT+1}, v6, 2, s12")
        sp("s3")
        vm.upto(vm.index_of("X4_1_1") + 1)
    st.run(len(steps), mfma4, lambda j: SLO(16 + steps[j][0]) + (steps[j][2] * 4 + steps[j][1]) * 1024, ready4, free4,
           lambda i: f"X4_{steps[i][0]}_{steps[i][1]}" if steps[i][2] == 0 else None, vt4, fill4, lambda i: [], FPER=1, stamps=spd({2: "g4a", 40: "g4b", 80: "g4c"}), bases=(8, 9, 10), hook=before4)
    sp("g4")
    k(f"GG_xw:\n  ds_read_b128 v[{RT4}:{RT4+3}], v{VFL} offset:16\n  s_add_u32 s76, s76, 1\n  s_waitcnt lgkmcnt(0)\n  v_min_u32 v{RT4}, v{RT4}, v{RT4+1}\n  v_min3_u32 v{RT4}, v{RT4}, v{RT4+2}, v{RT4+3}\n  v_readfirstlane_b32 s13, v{RT4}\n  s_cmp_ge_u32 s13, 22\n  s_cbranch_scc1 GG_xk\n  s_cmp_lt_u32 s76, {LDS_SPIN}\n  s_cbranch_scc1 GG_xw\nGG_xk:")
    for nt in range(5): k(f"  ds_write_b128 v12, v[{ACC+20+4*nt}:{ACC+23+4*nt}] offset:{1024*nt}")
    k("  s_waitcnt lgkmcnt(0)\n  s_barrier")
    for nt in range(5): k(f"  ds_read_b128 v[{WB+4*nt}:{WB+4*nt+3}], v13 offset:{1024*nt}")
    for nt in range(5):
        a = ACC + 4 * nt; ls = []
        k(f"  s_waitcnt lgkmcnt({4-nt})")
        for h in range(2):
            t = 140 + 2*h; D = XV + 2*nt + h; x = UX + 4*nt + 2*h; hh = UH + 4*nt + 2*h
            ls.append([f"  v_pk_add_f32 v[{a+2*h}:{a+2*h+1}], v[{a+2*h}:{a+2*h+1}], v[{WB+4*nt+2*h}:{WB+4*nt+2*h+1}]", f"  v_cvt_pk_bf16_f32 v{D}, v{a+2*h}, v{a+2*h+1}", f"  v_lshlrev_b32 v{t}, 16, v{D}", f"  v_and_b32 v{t+1}, s40, v{D}",
             f"  v_pk_add_f32 v[{t}:{t+1}], v[{t}:{t+1}], v[{x}:{x+1}]",
             f"  v_cvt_pk_bf16_f32 v{D}, v{t}, v{t+1}", f"  v_lshlrev_b32 v{t}, 16, v{D}", f"  v_and_b32 v{t+1}, s40, v{D}",
             f"  v_pk_add_f32 v[{t}:{t+1}], v[{t}:{t+1}], v[{hh}:{hh+1}]", f"  v_cvt_pk_bf16_f32 v{D}, v{t}, v{t+1}"])
        for l in zip_lists(*ls): k(l)
        if nt in (1, 3): k(f"  buffer_store_dwordx4 v[{XV+2*nt-2}:{XV+2*nt+1}], v11, s[44:47], s{57+(nt>>1)} offen")
        if nt == 4: k(f"  buffer_store_dwordx2 v[{XV+2*nt}:{XV+2*nt+1}], v11, s[44:47], s59 offen")
    k.stamp_out(1)
    k("  s_endpgm")
    k("GG_loader:")
    k(f"  s_sub_u32 s3, s3, 4\n  s_mul_i32 s9, s3, 5120\n  s_lshl_b32 s12, s3, 2\n  s_add_u32 s12, s12, {FLG}\n  v_mov_b32 v12, s12")
    if P("FAKEW", 0): k("  s_mov_b32 s5, 0\n  s_mov_b32 s25, 0")
    k(f"  s_mul_i32 s8, s5, {5*SLOT}\n  s_mul_i32 s12, s65, {5*5120}\n  s_add_u32 s12, s12, s9\n  s_add_u32 s12, s12, s8")
    k(f"  s_add_u32 s20, s12, {WS_W1P}\n  s_add_u32 s21, s12, {WS_W2P}\n  s_add_u32 s28, s8, {WS_W1P + 5*SLOT}\n  s_add_u32 s29, s8, {WS_W2P + 5*SLOT}")
    k(f"  s_mul_i32 s8, s25, {6*SLOT}\n  s_mul_i32 s12, s66, {6*5120}\n  s_add_u32 s12, s12, s9\n  s_add_u32 s12, s12, s8\n  s_add_u32 s22, s12, {WS_W3P}\n  s_add_u32 s30, s8, {WS_W3P + 6*SLOT}")
    k(f"  s_mul_i32 s8, s5, {12*SLOT}\n  s_mul_i32 s12, s74, {SLOT}\n  s_add_u32 s12, s12, s9\n  s_add_u32 s12, s12, s8\n  s_add_u32 s23, s12, {WS_W4P}\n  s_add_u32 s31, s8, {WS_W4P + 12*SLOT}")
    k(f"  s_add_u32 s16, s9, {NSL*SLOT}")
    k(f"  s_mov_b32 s10, s20\n  s_mov_b32 s17, s28\n  s_mov_b32 s18, {5*SLOT}\n  s_mov_b32 s11, s9\n  s_mov_b32 s12, 0")
    chk = f"  ds_read_b128 v[8:11], v{VFL} offset:16\n  s_waitcnt lgkmcnt(0)\n  v_min_u32 v8, v8, v9\n  v_min3_u32 v8, v8, v10, v11\n  v_readfirstlane_b32 s13, v8\n  s_add_u32 s76, s76, 1\n  s_cmp_ge_u32 s13, s15\n  s_cbranch_scc1 GG_ld_go"
    if LSTAMP: k("  v_mov_b32 v20, 0\n  v_mov_b32 v21, 0\n  v_mov_b32 v22, 0")
    k("  s_mov_b32 s13, 0")
    k("GG_ld:")
    k(f"  s_cmp_lt_u32 s12, {NSL}\n  s_cbranch_scc1 GG_ld_go\n  s_sub_u32 s15, s12, {NSL-1}\n  s_max_u32 s15, s15, {P('GATE1', 1)}\n  s_max_u32 s14, s15, {P('GATE2', 1)}\n  s_cmp_ge_u32 s12, 12\n  s_cselect_b32 s15, s14, s15")
    k("  s_cmp_ge_u32 s13, s15\n  s_cbranch_scc1 GG_ld_go")
    k(chk)
    k("  s_waitcnt vmcnt(0)\n  v_mov_b32 v14, s12\n  ds_write_b32 v12, v14")
    if LSTAMP: k("  s_memtime s[40:41]\n  s_waitcnt lgkmcnt(0)\n  s_sub_u32 s40, s40, s80\n  v_mov_b32 v24, s40\n  v_cmp_eq_u32 vcc, s12, v2\n  v_cndmask_b32 v22, v22, v24, vcc")
    k("GG_ld_sp:")
    k("  s_sleep 1")
    k(chk + f"\n  s_cmp_lt_u32 s76, {LDS_SPIN}\n  s_cbranch_scc1 GG_ld_sp")
    k("GG_ld_go:")
    if LSTAMP: k("  s_memtime s[40:41]\n  s_waitcnt lgkmcnt(0)\n  s_sub_u32 s40, s40, s80\n  v_mov_b32 v24, s40\n  v_cmp_eq_u32 vcc, s12, v2\n  v_cndmask_b32 v20, v20, v24, vcc")
    k("  s_mov_b32 m0, s11\n  s_add_u32 s14, s10, 4096")
    for i in range(4): k(f"  buffer_load_dwordx4 v3, s[36:39], s10 offen offset:{1024*i} sc1 lds")
    k("  s_add_u32 m0, s11, 4096\n  v_mov_b32 v14, s12\n  buffer_load_dwordx4 v3, s[36:39], s14 offen sc1 lds")
    k("  s_waitcnt vmcnt(5)\n  ds_write_b32 v12, v14")
    k(f"  s_add_u32 s12, s12, 1\n  s_add_u32 s11, s11, {SLOT}\n  s_cmp_eq_u32 s11, s16\n  s_cselect_b32 s11, s9, s11")
    k(f"  s_add_u32 s10, s10, {SLOT}\n  s_sub_u32 s14, s10, s18\n  s_cmp_ge_u32 s10, s17\n  s_cselect_b32 s10, s14, s10")
    for j, ph, size in ((5, 1, 5), (10, 2, 6), (16, 3, 12)):
        k(f"  s_cmp_eq_u32 s12, {j}\n  s_cselect_b32 s10, s{20+ph}, s10\n  s_cselect_b32 s17, s{28+ph}, s17\n  s_cselect_b32 s18, {size*SLOT}, s18")
    JD = P("JD", 28)
    k(f"  s_cmp_lt_u32 s12, {JD}\n  s_cbranch_scc1 GG_ld")
    k("  v_add_u32 v4, s9, v3\n  v_add_u32 v5, 0x10000, v4\n  v_add_u32 v6, 0x20000, v4")
    for j in range(JD, 28):
        k("  s_add_u32 s14, s10, 4096")
        for i in range(5):
            r = 32 + (j - JD) * 20 + 4*i
            k(f"  buffer_load_dwordx4 v[{r}:{r+3}], v3, s[36:39], s{10 if i < 4 else 14} offen offset:{1024*(i&3)} sc1")
        k(f"  s_add_u32 s10, s10, {SLOT}\n  s_sub_u32 s14, s10, s18\n  s_cmp_ge_u32 s10, s17\n  s_cselect_b32 s10, s14, s10")
    k(f"  v_mov_b32 v14, {JD}\n  s_waitcnt vmcnt({5*(28-JD)})\n  ds_write_b32 v12, v14")
    for j in range(JD, 28):
        n = j - NSL + 1
        k(f"  s_cmp_ge_u32 s13, {n}\n  s_cbranch_scc1 GG_lf{j}\nGG_lw{j}:\n  s_sleep 1\n  ds_read_b128 v[8:11], v{VFL} offset:16\n  s_waitcnt lgkmcnt(0)\n  v_min_u32 v8, v8, v9\n  v_min3_u32 v8, v8, v10, v11\n  v_readfirstlane_b32 s13, v8\n  s_add_u32 s76, s76, 1")
        k(f"  s_cmp_ge_u32 s13, {n}\n  s_cbranch_scc1 GG_lf{j}\n  s_cmp_lt_u32 s76, {LDS_SPIN}\n  s_cbranch_scc1 GG_lw{j}\nGG_lf{j}:\n  s_waitcnt vmcnt({5*(27-j)})")
        for i in range(5):
            r = 32 + (j - JD) * 20 + 4*i; o = SLO(j) + 1024*i
            k(f"  ds_write_b128 v{4 + (o >> 16)}, v[{r}:{r+3}] offset:{o & 65535}")
        k(f"  v_mov_b32 v14, {j+1}\n  s_waitcnt lgkmcnt(0)\n  ds_write_b32 v12, v14")
    k("  s_waitcnt lgkmcnt(0)")
    if LSTAMP:
        k("  s_cmp_lg_u32 s3, 0\n  s_cbranch_scc1 GG_done\n  s_lshl_b32 s40, s2, 10\n  s_add_u32 s40, s40, 0x2c00000\n  v_lshl_add_u32 v23, v2, 2, s40")
        k("  global_store_dword v23, v20, s[32:33]\n  global_store_dword v23, v21, s[32:33] offset:256\n  global_store_dword v23, v22, s[32:33] offset:512")
    k("GG_done:\n  s_endpgm")
    L = k.lines; il = L.index("GG_loader:"); ib = [i for i, x in enumerate(L) if "s_cbranch_scc1 GG_loader" in x][0]
    L[ib] = L[ib].replace("s_cbranch_scc1 GG_loader", "s_cbranch_scc0 GG_comp")
    k.lines = L[:ib+1] + L[il:] + ["GG_comp:"] + L[ib+1:il]
```

```python
from asmfw import K
from layout import *
from k_common import *
import os
LOG2E = "0x3fb8aa3b"
CST = 4160; UOFF = 4 * CST; DREG = UOFF + 4608
RB = 4 * DREG; WREG = 8704; TBL = RB + 8 * WREG; TBS = 32 * TCS + 16
PC_LDS = TBL + 4 * TBS
SPIN = 400000
PKA = int(os.environ.get('PKA', 0))
W3A = int(os.environ.get('W3A', 0))
SLT = int(os.environ.get('SLT', 0))
GG_FLG = 7 * 20480
PKF = os.environ.get('PKF', ' sc1')
PFL = os.environ.get('PFL', 'sc1')
TOUCH = {'12': ((WS_W1P, 50), (WS_W2P, 50)), '321': ((WS_W3P, 120), (WS_W2P, 50), (WS_W1P, 50)), '1': ((WS_W1P, 50),)}[os.environ.get('NTOUCH', '12')]
N_LN = 64; PK_FIRST = 440 if len(TOUCH) == 3 else 200

def cmul(k, d, x, w):
    k(f"  v_pk_mul_f32 v[{d}:{d+1}], v[{x}:{x+1}], v[{w}:{w+1}] op_sel:[0,0] op_sel_hi:[1,0]")
    k(f"  v_pk_fma_f32 v[{d}:{d+1}], v[{x}:{x+1}], v[{w}:{w+1}], v[{d}:{d+1}] op_sel:[1,1,0] op_sel_hi:[0,1,1] neg_lo:[1,0,0]")

def gen_pc(k):
    def poll_dbg(lbl, off, val, vt=250, slp=16):
        k(f"  v_mov_b32 v{vt}, {off}\n  s_mov_b32 s78, 0\n  s_mov_b64 exec, 1\n{lbl}:\n  global_load_dword v{vt+1}, v{vt}, s[34:35] {PFL}\n  s_waitcnt vmcnt(0)\n  v_readfirstlane_b32 s79, v{vt+1}\n  s_add_u32 s78, s78, 1")
        k(f"  s_cmp_ge_u32 s79, {val}\n  s_cbranch_scc1 {lbl}_ok\n  s_sleep {slp}\n  s_cmp_lt_u32 s78, {SPIN}\n  s_cbranch_scc1 {lbl}\n{lbl}_ok:\n  s_mov_b64 exec, -1")
    def add_dbg(off, val, vt=250):
        k(f"  v_mov_b32 v{vt}, {off}\n  v_mov_b32 v{vt+1}, {val}\n  s_mov_b64 exec, 1\n  global_atomic_add v{vt}, v{vt+1}, s[34:35] sc1\n  s_mov_b64 exec, -1")
    uid = [0]
    def arrive(base, off, total, last, vt=250):
        uid[0] += 1; u = uid[0]
        k(f"  v_mov_b32 v{vt}, {off}\n  v_mov_b32 v{vt+1}, 1\n  s_mov_b64 exec, 1\n  global_atomic_add v{vt+2}, v{vt}, v{vt+1}, s[{base}:{base+1}] sc0 sc1\n  s_waitcnt vmcnt(0)\n  v_readfirstlane_b32 s79, v{vt+2}\n  s_mov_b64 exec, -1")
        k(f"  s_cmp_lg_u32 s79, {total-1}\n  s_cbranch_scc1 F_ar{u}")
        last()
        k(f"F_ar{u}:")
    def set_dbg(off, vt=250):
        k(f"  v_mov_b32 v{vt}, {off}\n  v_mov_b32 v{vt+1}, 1\n  s_mov_b64 exec, 1\n  global_store_dword v{vt}, v{vt+1}, s[34:35] sc1\n  s_mov_b64 exec, -1")
    def set_goh(word):
        k(f"  v_lshlrev_b32 v250, 7, v2\n  v_mov_b32 v251, 1\n  s_lshl_b32 s79, {word}, 2\n  s_add_u32 s79, s79, {WS_GOH}\n  buffer_store_dword v251, v250, s[36:39], s79 offen sc1")
    top = lambda: arrive(32, WS_SHARD + 1024, 96 if SLT else (27 + 60 if PKA else 34), lambda: set_goh(8))
    k("  s_cmp_ge_u32 s2, 256\n  s_cbranch_scc1 GG_done")
    k.stamp(0); k.stamp(7, True)
    k("  s_load_dwordx16 s[16:31], s[0:1], 0")
    k(f"  s_load_dwordx4 s[32:35], s[0:1], {KA_DBG}")
    k(f"  s_load_dwordx8 s[48:55], s[0:1], {KA_W1}\n  s_load_dwordx2 s[56:57], s[0:1], {KA_DSK}")
    k("  v_lshrrev_b32 v1, 6, v0\n  v_and_b32 v2, 63, v0\n  v_readfirstlane_b32 s3, v1\n  v_lshlrev_b32 v3, 4, v2")
    k(f"  s_mov_b32 s40, 0xffff0000\n  s_and_b32 s79, s2, 63\n  s_lshl_b32 s79, s79, 7\n  s_add_u32 s79, s79, {WS_GOW}\n  v_mov_b32 v254, s79")
    def after_kernarg():
        k("  s_waitcnt lgkmcnt(0)")
        k("  s_mov_b64 s[36:37], s[34:35]\n  s_mov_b64 s[34:35], s[32:33]\n  s_mov_b64 s[32:33], s[36:37]")
        k(f"  s_mov_b32 s38, {WS_SPAN}\n  s_mov_b32 s39, 0x00020000")
    def gow_entry():
        k(f"  s_mov_b64 exec, 1\n  buffer_load_dword v255, v254, s[36:39], 0 offen sc1\n  s_mov_b64 exec, -1")
    def gow_set():
        k(f"  v_lshlrev_b32 v250, 7, v2\n  s_mov_b32 s79, {WS_GOW}\n  buffer_load_dword v251, v250, s[36:39], s79 offen sc1\n  s_waitcnt vmcnt(0)\n  v_add_u32 v251, 1, v251\n  buffer_store_dword v251, v250, s[36:39], s79 offen sc1")
        set_dbg(DBG_GOW)
    def gow_wait(lbl, slp):
        k(f"  s_waitcnt vmcnt(0)\n  v_readfirstlane_b32 s77, v255\n  v_mov_b32 v250, {DBG_GOW}\n  s_mov_b32 s78, 0\n  s_mov_b64 exec, 1\n{lbl}:\n  buffer_load_dword v251, v254, s[36:39], 0 offen sc1\n  s_waitcnt vmcnt(0)\n  v_readfirstlane_b32 s79, v251\n  s_add_u32 s78, s78, 1")
        k(f"  s_cmp_lg_u32 s79, s77\n  s_cbranch_scc1 {lbl}_ok\n  s_sleep {slp}\n  s_and_b32 s79, s78, 31\n  s_cmp_lg_u32 s79, 0\n  s_cbranch_scc1 {lbl}")
        k(f"  global_load_dword v251, v250, s[34:35] sc1\n  s_waitcnt vmcnt(0)\n  v_readfirstlane_b32 s79, v251\n  s_cmp_lg_u32 s79, 0\n  s_cbranch_scc1 {lbl}_ok\n  s_cmp_lt_u32 s78, {SPIN}\n  s_cbranch_scc1 {lbl}\n{lbl}_ok:\n  s_mov_b64 exec, -1")
    k("  s_cmp_ge_u32 s2, 160\n  s_cbranch_scc1 F_aux")
    k("  s_and_b32 s4, s2, 7\n  s_mul_i32 s4, s4, 20\n  s_lshr_b32 s5, s2, 3\n  s_add_u32 s4, s4, s5\n  s_lshl_b32 s4, s4, 2")
    k("  s_and_b32 s58, s3, 3\n  s_lshr_b32 s59, s3, 2\n  s_add_u32 s5, s4, s58")
    k(f"  s_mul_i32 s6, s58, {DREG}\n  s_mul_i32 s11, s3, {WREG}\n  s_add_u32 s11, s11, {RB}")
    k(f"  s_and_b32 s60, s2, 7\n  s_mul_i32 s61, s60, {SLAB}")
    k(f"  s_mul_i32 s10, s58, {TBS}\n  s_add_u32 s65, s10, {TBL}\n  v_mov_b32 v134, s65\n  v_mov_b32 v96, 0\n  v_mov_b32 v97, 0\n  ds_write_b64 v134, v[96:97] offset:{32*TCS}")
    k("  s_getpc_b64 s[8:9]\nF_pc:\n  s_add_u32 s8, s8, F_tab-F_pc\n  s_addc_u32 s9, s9, 0")
    k("  s_cmp_lg_u32 s59, 0\n  s_cbranch_scc1 F_nt")
    for it in range(4):
        k(f"  global_load_dwordx4 v[{176+6*it}:{179+6*it}], v3, s[8:9] offset:{1024*it}\n  global_load_dwordx2 v[{180+6*it}:{181+6*it}], v3, s[8:9] offset:{1024*it+16}")
    k("F_nt:")
    k("  s_mul_i32 s7, s5, 384\n  s_lshl_b32 s10, s59, 8\n  s_add_u32 s7, s7, s10\n  v_lshl_add_u32 v5, v2, 1, s7")
    k("  v_lshl_add_u32 v6, v2, 2, s11")
    k("  v_and_b32 v7, 31, v2\n  v_mul_u32_u24 v7, 272, v7\n  v_lshrrev_b32 v8, 5, v2\n  v_lshl_add_u32 v7, v8, 4, v7\n  v_add_u32 v7, s11, v7")
    k(f"  v_and_b32 v130, 31, v2\n  v_mul_u32_u24 v130, {TCS}, v130\n  v_lshl_add_u32 v130, v8, 3, v130\n  v_add_u32 v130, s65, v130")
    k(f"  s_add_u32 s10, s58, 4\n  s_mul_i32 s10, s10, {WREG}\n  s_add_u32 s10, s10, {RB}\n  v_add_u32 v131, s10, v3")
    k("  s_lshr_b32 s12, s5, 1\n  s_lshl_b32 s12, s12, 2\n  s_and_b32 s13, s5, 1\n  s_lshl_b32 s13, s13, 4")
    k("  v_and_b32 v4, 255, v0\n  v_lshlrev_b32 v4, 4, v4\n  s_lshl_b32 s10, s4, 1\n  v_mul_u32_u24 v133, 160, v4\n  v_add_u32 v133, s10, v133")
    after_kernarg()
    k("  s_barrier")
    k.stamp(1)
    for i, sb in enumerate((18, 20, 22, 24, 26, 28)): k(f"  global_load_ushort v{112+i}, v5, s[{sb}:{sb+1}]")
    k("  s_load_dword s14, s[30:31], s12\n  s_load_dwordx2 s[62:63], s[56:57], s10")
    k("  s_cmp_lg_u32 s59, 0\n  s_cbranch_scc1 F_hg")
    for i, sb in enumerate((18, 20, 22, 24, 26, 28)): k(f"  global_load_ushort v{118+i}, v5, s[{sb}:{sb+1}] offset:128")
    gow_entry()
    k("  s_waitcnt vmcnt(13)")
    for it in range(4):
        for i in range(11):
            src = 176 + 6*it + (i >> 1)
            k(f"  v_lshrrev_b32 v{200+11*it+i}, 16, v{src}" if i & 1 else f"  v_and_b32 v{200+11*it+i}, 0xffff, v{src}")
            k(f"  v_add_u32 v{200+11*it+i}, s65, v{200+11*it+i}")
    k("  s_waitcnt vmcnt(0)\n  s_branch F_hj")
    k("F_hg:")
    for i in range(1, 4): k(f"  v_add_u32 v{135+i}, {512*1280*i}, v133")
    k("  s_bfe_u32 s10, s2, 0x20003")
    for rot in range(4):
        if rot < 3: k(f"  s_cmp_lg_u32 s10, {rot}\n  s_cbranch_scc1 F_g{rot+1}")
        for ii in range(4):
            i = (ii + rot) & 3 if int(os.environ.get("GROT", 1)) else ii
            for r in range(2): k(f"  global_load_dwordx2 v[{176+4*i+2*r}:{177+4*i+2*r}], v{135+i if i else 133}, s[16:17] offset:{1280*r}")
        if rot < 3: k(f"  s_branch F_ge\nF_g{rot+1}:")
    k("F_ge:")
    k("  s_waitcnt vmcnt(8)")
    k("F_hj:")
    for i in range(2, 16): k(f"  v_mov_b32 v{96+i}, 0")
    k("  s_waitcnt lgkmcnt(0)")
    k("  s_lshr_b32 s14, s14, s13\n  s_lshl_b32 s14, s14, 16")
    k(f"  v_mov_b32 v9, {LOG2E}\n  v_mul_f32 v9, s14, v9\n  v_exp_f32 v9, v9\n  v_cvt_pk_bf16_f32 v9, v9, v9\n  v_lshlrev_b32 v132, 16, v9")
    k("  s_mov_b32 s15, s59")
    k.stamp(2)
    k("F_unit:")
    for i in range(6): k(f"  v_lshlrev_b32 v{10+i}, 16, v{112+i}")
    for i in range(6): k(f"  v_mov_b32 v{112+i}, v{118+i}")
    k("  v_mul_f32 v10, v132, v10\n  v_mul_f32 v11, v132, v11\n  v_mul_f32 v12, v132, v12\n  v_mul_f32 v13, v132, v13")
    k(f"  v_mul_f32 v10, {LOG2E}, v10\n  v_mul_f32 v11, 0.15915494, v11")
    for dst, e in ((16, None), (18, "0x41000000"), (20, "0x43800000")):
        if e is None: k(f"  v_exp_f32 v22, v10\n  v_fract_f32 v23, v11")
        else: k(f"  v_mul_f32 v22, {e}, v10\n  v_mul_f32 v23, {e}, v11\n  v_exp_f32 v22, v22\n  v_fract_f32 v23, v23")
        k(f"  v_cos_f32 v{dst}, v23\n  v_sin_f32 v{dst+1}, v23")
        k(f"  v_mul_f32 v{dst}, v22, v{dst}\n  v_mul_f32 v{dst+1}, v22, v{dst+1}")
    cmul(k, 24, 14, 12)
    def put(reg, row, neg):
        k(f"  v_cvt_pk_bf16_f32 v9, v{reg}, {'-' if neg else ''}v{reg+1}\n  ds_write_b32 v6, v9 offset:{row*272}")
    put(24, 0, True)
    for r in range(1, 8):
        cmul(k, 24 + 2*r, 24 + 2*(r-1), 16); put(24 + 2*r, r, True)
    for i, r in enumerate((0, 2, 4, 6)):
        cmul(k, 40 + 2*i, 24 + 2*r, 20); put(40 + 2*i, 8 + i, True)
    cmul(k, 48, 40, 20); put(48, 12, True)
    cmul(k, 50, 44, 20); put(50, 13, True)
    cmul(k, 52, 48, 20); put(52, 14, True)
    cmul(k, 54, 50, 20); put(54, 15, True)
    prev = 52
    for i in range(5):
        dst = 24 + 2*i
        cmul(k, dst, prev, 20); put(dst, 16 + i, True); prev = dst
    k("  s_waitcnt lgkmcnt(0)")
    for s in range(8): k(f"  ds_read_b128 v[{136+4*s}:{139+4*s}], v7 offset:{32*s}")
    k("  v_mov_b32 v9, 0x3f80\n  ds_write_b32 v6, v9 offset:0")
    put(18, 1, False)
    prev = 18
    for j in range(2, 32):
        dst = 24 + 2*(j & 1)
        cmul(k, dst, prev, 18); put(dst, j, False); prev = dst
    k("  s_waitcnt lgkmcnt(0)")
    for s in range(8): k(f"  ds_read_b128 v[{56+4*s}:{59+4*s}], v7 offset:{32*s}")
    for s in range(8):
        k(f"  s_waitcnt lgkmcnt({7-s})")
        k(f"  v_mfma_f32_32x32x16_bf16 v[96:111], v[{136+4*s}:{139+4*s}], v[{56+4*s}:{59+4*s}], v[96:111]")
    k("  s_add_u32 s15, s15, 1\n  s_cmp_lt_u32 s15, 2\n  s_cbranch_scc1 F_unit")
    k("  s_cmp_lg_u32 s59, 0\n  s_cbranch_scc1 F_help")
    k("  s_mov_b32 s78, 0")
    k(f"F_pw:\n  ds_read_b32 v9, v134 offset:{32*TCS+4}\n  s_add_u32 s78, s78, 1\n  s_waitcnt lgkmcnt(0)\n  v_readfirstlane_b32 s79, v9\n  s_cmp_lg_u32 s79, 0\n  s_cbranch_scc1 F_po\n  s_cmp_lt_u32 s78, {1<<23}\n  s_cbranch_scc1 F_pw\nF_po:")
    for g in range(3): k(f"  ds_read_b128 v[{16+4*g}:{19+4*g}], v131 offset:{1024*g}")
    k("  s_waitcnt lgkmcnt(0)")
    for g in range(6): k(f"  v_pk_add_f32 v[{96+2*g}:{97+2*g}], v[{96+2*g}:{97+2*g}], v[{16+2*g}:{17+2*g}]")
    for g in range(3):
        k(f"  v_cvt_pk_bf16_f32 v{10+2*g}, v{96+4*g}, v{97+4*g}\n  v_cvt_pk_bf16_f32 v{11+2*g}, v{98+4*g}, v{99+4*g}\n  ds_write_b64 v130, v[{10+2*g}:{11+2*g}] offset:{16*g}")
    k("  v_add_u32 v52, s6, v3")
    k(f"  v_bfe_u32 v16, v2, 1, 2\n  v_mul_u32_u24 v16, {CST}, v16\n  v_and_b32 v17, 1, v2\n  v_lshl_add_u32 v16, v17, 4, v16\n  v_add_u32 v16, s6, v16")
    k("  v_mov_b32 v20, 0\n  v_mov_b32 v21, 0\n  v_mov_b32 v22, 0\n  v_mov_b32 v23, 0\n  ds_write_b128 v16, v[20:23] offset:4096")
    k.stamp(3)
    k("  s_waitcnt lgkmcnt(0)")
    def ex_reads(it):
        for i in range(11): k(f"  ds_read_u16 v{56+12*(it&1)+i}, v{200+11*it+i}")
    ex_reads(0)
    for it in range(4):
        if it < 3: ex_reads(it + 1)
        k(f"  s_waitcnt lgkmcnt({11 if it < 3 else 0})")
        V = 56 + 12*(it & 1)
        for sg, st in ((3, 0), (2, 1), (1, 2), (0, 3)):
            O = 80 + 4*sg
            for j in range(4): k(f"  v_lshl_or_b32 v{O+j}, v{V+st+2*j+1}, 16, v{V+st+2*j}")
            k(f"  ds_write_b128 v52, v[{O}:{O+3}] offset:{1024*it + sg*CST}")
    k.stamp(4)
    k("  v_and_b32 v6, 15, v2\n  v_lshrrev_b32 v7, 4, v2")
    k(f"  v_and_b32 v8, 3, v6\n  v_mul_u32_u24 v8, {CST}, v8\n  v_lshrrev_b32 v9, 2, v6\n  v_lshlrev_b32 v9, 3, v9\n  v_sub_u32 v8, v8, v9\n  v_lshl_add_u32 v8, v7, 4, v8\n  v_add_u32 v8, {24+384}, v8\n  v_add_u32 v12, s6, v8")
    k(f"  v_lshlrev_b32 v8, 5, v6\n  v_lshl_add_u32 v8, v7, 4, v8\n  v_add_u32 v8, {UOFF+32+384}, v8\n  v_add_u32 v13, s6, v8")
    k(f"  s_lshl_b32 s10, s58, 12\n  s_add_u32 s10, s10, {RB}\n  v_lshlrev_b32 v8, 5, v6\n  v_lshl_add_u32 v8, v7, 3, v8\n  v_add_u32 v14, s10, v8")
    for i in range(32): k(f"  v_mov_b32 v{16+i}, 0")
    k("  s_waitcnt lgkmcnt(0)\n  s_barrier")
    k.stamp(5)
    SETS = ((48, 80), (112, 144))
    def reads(st, extra):
        A, B = SETS[st]; out = []
        for n in range(8):
            off = 512 * (7 - n) + 64 - extra
            out.append(f"  ds_read_b64 v[{A+4*n}:{A+4*n+1}], v12 offset:{off}")
            out.append(f"  ds_read_b64 v[{A+4*n+2}:{A+4*n+3}], v12 offset:{off+8}")
            out.append(f"  ds_read_b128 v[{B+4*n}:{B+4*n+3}], v13 offset:{512*n + 64 - extra}")
        return out
    def mfmas(st):
        A, B = SETS[st]; out = []
        for J in range(8):
            for n in range(J + 1):
                m = J - n
                out.append(f"  v_mfma_f32_16x16x32_bf16 v[{16+4*J}:{19+4*J}], v[{A+4*n}:{A+4*n+3}], v[{B+4*m}:{B+4*m+3}], v[{16+4*J}:{19+4*J}]")
        return out
    def inter(mf, rd):
        out = []
        for i, m in enumerate(mf):
            out.append(m)
            if i < len(rd): out.append(rd[i])
        return out
    k("  s_setprio 3")
    for l in reads(0, 0): k(l)
    k("  s_mov_b32 s15, 0")
    k("F_loop:")
    k("  s_waitcnt lgkmcnt(0)")
    for l in inter(mfmas(0), reads(1, 64)): k(l)
    k("  v_subrev_u32 v12, 128, v12\n  v_subrev_u32 v13, 128, v13")
    k("  s_waitcnt lgkmcnt(0)")
    k("  s_cmp_eq_u32 s15, 3\n  s_cbranch_scc1 F_last")
    for l in inter(mfmas(1), reads(0, 0)): k(l)
    k("  s_add_u32 s15, s15, 1\n  s_branch F_loop")
    k("F_last:")
    A, B = SETS[1]; pend = []; cnt = 0
    for J in range(7, -1, -1):
        for n in range(J + 1):
            k(f"  v_mfma_f32_16x16x32_bf16 v[{16+4*J}:{19+4*J}], v[{A+4*n}:{A+4*n+3}], v[{B+4*(J-n)}:{B+4*(J-n)+3}], v[{16+4*J}:{19+4*J}]")
            cnt += 1
            if pend and pend[0][0] <= cnt: k(pend.pop(0)[1])
        pend += [(cnt + 6, f"  v_cvt_pk_bf16_f32 v{48+2*J}, v{16+4*J}, v{17+4*J}\n  v_cvt_pk_bf16_f32 v{49+2*J}, v{18+4*J}, v{19+4*J}"),
                 (cnt + 7, f"  ds_write_b64 v14, v[{48+2*J}:{49+2*J}] offset:{512*J}")]
    for _, t in pend: k(t)
    k.stamp(6)
    k("  s_waitcnt lgkmcnt(0)\n  s_barrier\n  s_setprio 0")
    k("  s_cmp_lg_u32 s3, 0\n  s_cbranch_scc1 F_b5")
    gow_wait("F_pl5", 2)
    k("F_b5:")
    k("  s_barrier")
    k("  s_cmp_lg_u32 s3, 0\n  s_cbranch_scc1 F_fin")
    k(f"  s_lshl_b32 s10, s60, 7\n  s_add_u32 s10, s10, {WS_SHARD}")
    arrive(32, "s10", 20, lambda: set_goh("s60"))
    k("  s_branch F_fin")
    k("F_help:")
    k("  v_mov_b32 v252, 0\n  s_mov_b64 exec, 1\n  global_load_dword v253, v252, s[34:35] sc1\n  s_mov_b64 exec, -1")
    k(f"  v_and_b32 v9, 0x1f0, v3\n  v_add_u32 v9, s6, v9")
    k(f"  v_mov_b32 v12, 0\n  v_mov_b32 v13, 0\n  v_mov_b32 v14, 0\n  v_mov_b32 v15, 0\n  ds_write_b128 v9, v[12:15] offset:{UOFF}\n  s_nop 7")
    for g in range(3): k(f"  ds_write_b128 v131, v[{96+4*g}:{99+4*g}] offset:{1024*g}")
    k(f"  v_mov_b32 v9, 1\n  s_waitcnt lgkmcnt(0)\n  ds_write_b32 v134, v9 offset:{32*TCS+4}")
    k(f"  s_waitcnt vmcnt(0)\n  v_readfirstlane_b32 s79, v253\n  s_cmp_ge_u32 s79, {N_LN}\n  s_cbranch_scc1 F_st")
    poll_dbg("F_pl1", 0, N_LN)
    k("F_st:")
    k.stamp(1)
    k(f"  s_mov_b32 s10, {WS_ST0}")
    for i in range(4): k(f"  buffer_load_dwordx4 v[{192+4*i}:{195+4*i}], v4, s[36:39], s10 offen sc1\n  s_add_u32 s10, s10, 4096")
    for i in range(16): k(f"  v_lshlrev_b32 v{64+2*i}, 16, v{176+i}\n  v_and_b32 v{65+2*i}, s40, v{176+i}")
    k(f"  v_lshrrev_b32 v5, 2, v4\n  v_add_u32 v6, {UOFF+512}, v5\n  v_add_u32 v7, {2*DREG}, v6\n  v_add_u32 v5, {RB}, v5\n  v_lshlrev_b32 v8, 1, v4")
    k("  s_lshl_b32 s66, s62, 16\n  s_and_b32 s67, s62, s40\n  s_lshl_b32 s68, s63, 16\n  s_and_b32 s69, s63, s40\n  s_mov_b32 s41, 0x07060302")
    k("  s_waitcnt vmcnt(0)")
    k.stamp(2)
    for i in range(4):
        for r in range(2):
            o = 96 + 8*i + 4*r; x = 64 + 8*i + 4*r; st = 192 + 4*i + 2*r
            for h in range(2):
                a = o + 2*h
                k(f"  v_pk_add_f32 v[{a}:{a+1}], v[{x+2*h}:{x+2*h+1}], v[{st}:{st+1}] op_sel_hi:[1,0] neg_lo:[0,1] neg_hi:[0,1]\n  v_cvt_pk_bf16_f32 v9, v{a}, v{a+1}\n  v_lshlrev_b32 v{a}, 16, v9\n  v_and_b32 v{a+1}, s40, v9")
                k(f"  v_pk_mul_f32 v[{a}:{a+1}], v[{a}:{a+1}], v[{st}:{st+1}] op_sel:[0,1] op_sel_hi:[1,1]")
        for w in range(4):
            k(f"  v_cvt_pk_bf16_f32 v{48+4*i+w}, v{96+8*i+w}, v{100+8*i+w}\n  ds_write_b32 v{6 + (w >> 1)}, v{48+4*i+w} offset:{(w & 1)*DREG + 1024*i}")
    k.stamp(3)
    UDL = int(os.environ.get("UDL", 1))
    if UDL: k("  s_waitcnt lgkmcnt(0)\n  s_barrier"); k.stamp(5)
    for i in range(4):
        for r in range(2):
            o = 96 + 8*i + 4*r
            for w in range(4): k(f"  v_and_b32 v{o+w}, s40, v{48+4*i+w}" if r else f"  v_lshlrev_b32 v{o+w}, 16, v{48+4*i+w}")
            for h in range(2):
                k(f"  v_mul_f32 v{o+2*h}, s{66+2*h}, v{o+2*h}\n  v_mul_f32 v{o+2*h+1}, s{67+2*h}, v{o+2*h+1}\n  v_cvt_pk_bf16_f32 v9, v{o+2*h}, v{o+2*h+1}\n  v_lshlrev_b32 v{o+2*h}, 16, v9\n  v_and_b32 v{o+2*h+1}, s40, v9")
    if not UDL: k("  s_waitcnt lgkmcnt(0)\n  s_barrier"); k.stamp(5)
    k(f"  s_lshr_b32 s64, s4, 2\n  s_mul_i32 s64, s64, {QS}\n  s_add_u32 s64, s64, {WS_HQ}")
    if not PKA:
        k(f"  s_cmp_ge_u32 s2, {60 if W3A else 120}\n  s_cbranch_scc1 F_np")
        k(f"  s_lshl_b32 s75, s2, 2\n  s_add_u32 s75, s75, s58\n  s_add_u32 s75, s75, {240 if W3A else 0}\n  s_mov_b32 s46, {640*1536*2}\n  s_mov_b32 s47, 0x00020000\n  s_cmp_lt_u32 s75, 240\n  s_cbranch_scc0 F_c4")
        k(f"  s_mov_b32 s44, s52\n  s_mov_b32 s45, s53\n  s_mov_b32 s8, {WS_W3P}\n  s_movk_i32 s6, 3072\n  s_mov_b32 s12, 0\n  s_movk_i32 s13, 2731\n  s_mov_b32 s15, 24\n  s_mov_b32 s9, 122880\n  s_movk_i32 s10, 1024\n  s_movk_i32 s7, 24576\n  s_movk_i32 s41, 6144\n  s_mov_b32 s42, 6\n  s_movk_i32 s43, 171\n  s_branch F_cgo")
        k("F_c4:")
        k(f"  s_mov_b32 s44, s54\n  s_mov_b32 s45, s55\n  s_sub_u32 s75, s75, 240\n  s_mov_b32 s8, {WS_W4P}\n  s_movk_i32 s6, 1280\n  s_mov_b32 s12, 1\n  s_movk_i32 s13, 6554\n  s_mov_b32 s15, 10\n  s_mov_b32 s9, 245760\n  s_movk_i32 s10, 4096\n  s_movk_i32 s7, 20480\n  s_movk_i32 s41, 1024\n  s_mov_b32 s42, 5\n  s_movk_i32 s43, 205")
        k("F_cgo:")
        k(f"  s_mul_i32 s11, s75, s13\n  s_lshr_b32 s11, s11, 16\n  s_mul_i32 s13, s11, s15\n  s_sub_u32 s5, s75, s13\n  s_lshl_b32 s72, s58, 13\n  s_add_u32 s72, s72, {RB + 16384}")
        pack_load(k, 72, va=244, vb=245, vc=246, vd=247, so=66)
        k("  s_waitcnt vmcnt(0)")
        pack_store(k, PKF, vb=245, vc=246, vd=247, so=66, R=144)
    k("F_np:")
    k("  s_barrier")
    k.stamp(6)
    for i in range(4):
        for w in range(4): k(f"  ds_read_b32 v{48+4*i+w}, v5 offset:{4096*w + 1024*i}")
    for i in range(4):
        k(f"  s_waitcnt lgkmcnt({12-4*i})")
        for r in range(2):
            o = 128 + 4*r; u = 96 + 8*i + 4*r; x = 64 + 8*i + 4*r; d = 136 + 4*i + 2*r
            for w in range(4): k(f"  v_and_b32 v{o+w}, s40, v{48+4*i+w}" if r else f"  v_lshlrev_b32 v{o+w}, 16, v{48+4*i+w}")
            for h in range(2):
                a = o + 2*h
                k(f"  v_pk_add_f32 v[{a}:{a+1}], v[{a}:{a+1}], v[{u+2*h}:{u+2*h+1}]\n  v_cvt_pk_bf16_f32 v9, v{a}, v{a+1}\n  v_lshlrev_b32 v{a}, 16, v9\n  v_and_b32 v{a+1}, s40, v9")
                k(f"  v_pk_add_f32 v[{a}:{a+1}], v[{a}:{a+1}], v[{x+2*h}:{x+2*h+1}]\n  v_cvt_pk_bf16_f32 v{d+h}, v{a}, v{a+1}")
        k(f"  buffer_store_dwordx4 v[{136+4*i}:{139+4*i}], v4, s[36:39], s64 offen sc1\n  s_add_u32 s64, s64, 4096")
    k.stamp(4)
    k(f"  v_mov_b32 v248, {GG_FLG}\n  v_mov_b32 v244, 0\n  v_mov_b32 v245, 0\n  v_mov_b32 v246, 0\n  v_mov_b32 v247, 0\n  ds_write_b128 v248, v[244:247]\n  ds_write_b128 v248, v[244:247] offset:16")
    k("  s_waitcnt vmcnt(0) lgkmcnt(0)\n  s_barrier")
    k("  s_branch F_fin")
    k("F_aux:")
    k("  s_mov_b32 s71, 0")
    if int(os.environ.get("CW", 1)):
        k("  s_cmp_lt_u32 s2, 248\n  s_cbranch_scc1 F_ncw")
        k("  s_getpc_b64 s[8:9]\nF_pc2:\n  s_sub_u32 s8, s8, F_pc2-mk_kernel\n  s_subb_u32 s9, s9, 0")
        k("  v_lshlrev_b32 v10, 7, v0\n  s_mov_b32 s10, F_tab-mk_kernel\n  v_min_u32 v10, s10, v10\n  global_load_dword v11, v10, s[8:9]")
        k("F_ncw:")
    k("  s_sub_u32 s72, s2, 160")
    k(f"  s_cmp_ge_u32 s72, {N_LN}\n  s_cbranch_scc1 F_pk0")
    US = 1344
    k("  s_and_b32 s5, s72, 7\n  s_lshl_b32 s5, s5, 3\n  s_lshr_b32 s4, s72, 3\n  s_add_u32 s4, s4, s5")
    k("  v_lshrrev_b32 v4, 4, v0\n  v_and_b32 v5, 15, v0")
    k("  v_mul_u32_u24 v6, 1280, v4\n  v_lshl_add_u32 v6, v5, 4, v6\n  s_mul_i32 s5, s4, 40960\n  v_add_u32 v6, s5, v6")
    after_kernarg()
    k.stamp(1)
    for i in range(5): k(f"  global_load_dwordx4 v[{12+4*i}:{15+4*i}], v6, s[16:17] offset:{256*i}")
    gow_entry()
    k(f"  s_lshl_b32 s5, s4, 8\n  s_add_u32 s5, s5, {WS_ST0}\n  v_lshlrev_b32 v7, 3, v4\n  v_lshlrev_b32 v8, 3, v2")
    for i in range(5):
        k(f"  s_waitcnt vmcnt({5-i})")
        for h in range(4):
            r = 12 + 4*i + h; o = 32 + 8*i + 2*h
            k(f"  v_lshlrev_b32 v{o}, 16, v{r}\n  v_and_b32 v{o+1}, s40, v{r}")
    k.stamp(2)
    def reduce16(r):
        for sh in (8, 4, 2, 1): k(f"  v_add_f32_dpp v{r}, v{r}, v{r} row_ror:{sh} row_mask:0xf bank_mask:0xf")
    k("  v_pk_add_f32 v[72:73], v[32:33], v[34:35]")
    for i in range(2, 20): k(f"  v_pk_add_f32 v[72:73], v[72:73], v[{32+2*i}:{33+2*i}]")
    k("  v_add_f32 v72, v72, v73")
    reduce16(72)
    k("  v_mul_f32 v72, 0x3acccccd, v72\n  v_mov_b32 v73, v72\n  v_mov_b32 v74, 0\n  v_mov_b32 v75, 0")
    for i in range(20):
        k(f"  v_pk_add_f32 v[76:77], v[{32+2*i}:{33+2*i}], v[72:73] neg_lo:[0,1] neg_hi:[0,1]\n  v_pk_fma_f32 v[74:75], v[76:77], v[76:77], v[74:75]")
    k("  v_add_f32 v74, v74, v75")
    reduce16(74)
    k("  v_mul_f32 v74, 0x3acccccd, v74")
    k("  v_cvt_pk_bf16_f32 v76, v72, v74\n  v_lshlrev_b32 v72, 16, v76\n  v_and_b32 v74, s40, v76\n  v_mov_b32 v73, v72")
    k("  v_add_f32 v74, 0x3727c5ac, v74\n  v_cvt_pk_bf16_f32 v74, v74, v74\n  v_lshlrev_b32 v74, 16, v74")
    k("  v_sqrt_f32 v74, v74\n  v_cvt_pk_bf16_f32 v74, v74, v74\n  v_lshlrev_b32 v74, 16, v74\n  v_rcp_f32 v73, v74")
    k("  ds_write_b64 v7, v[72:73]")
    k.stamp(3)
    k("  s_waitcnt lgkmcnt(0)\n  s_barrier")
    k("  s_cmp_lg_u32 s3, 0\n  s_cbranch_scc1 F_ln2")
    k("  s_mov_b32 exec_hi, 0\n  ds_read_b64 v[72:73], v8\n  s_waitcnt lgkmcnt(0)\n  buffer_store_dwordx2 v[72:73], v8, s[36:39], s5 offen sc1\n  s_mov_b64 exec, -1")
    k("F_ln2:")
    k("  s_waitcnt vmcnt(0)\n  s_barrier\n  s_cmp_lg_u32 s3, 0\n  s_cbranch_scc1 F_ln3")
    add_dbg(0, 1)
    k.stamp(4)
    k("F_ln3:")
    k("  s_add_u32 s75, s72, 7\n  s_branch F_cs")
    k("F_pk0:")
    after_kernarg()
    gow_entry()
    k(f"  s_sub_u32 s73, s72, {N_LN}\n  s_sub_u32 s75, s73, 25\n  s_cmp_ge_u32 s73, 25\n  s_cbranch_scc1 F_cs")
    k("  s_lshl_b32 s4, s73, 3\n  s_add_u32 s4, s4, s3")
    k(f"  s_mov_b32 s44, s48\n  s_mov_b32 s45, s49\n  s_mov_b32 s46, {640*640*2}\n  s_mov_b32 s47, 0x00020000\n  s_mov_b32 s8, {WS_W1P}")
    k("  s_movk_i32 s6, 1280\n  s_mov_b32 s12, 1\n  s_mov_b32 s9, 102400\n  s_movk_i32 s10, 1024\n  s_movk_i32 s7, 20480\n  s_movk_i32 s41, 5120\n  s_mov_b32 s42, 5\n  s_movk_i32 s43, 205")
    k("  s_cmp_lt_u32 s4, 100\n  s_cbranch_scc1 F_go")
    k(f"  s_mov_b32 s44, s50\n  s_mov_b32 s45, s51\n  s_sub_u32 s4, s4, 100\n  s_mov_b32 s8, {WS_W2P}")
    k("F_go:")
    k("  s_mul_i32 s11, s4, 6554\n  s_lshr_b32 s11, s11, 16\n  s_mul_i32 s13, s11, 10\n  s_sub_u32 s5, s4, s13")
    k("F_go2:")
    k("  s_lshl_b32 s74, s3, 13")
    pack_load(k, 74)
    k("  s_waitcnt vmcnt(0)")
    pack_store(k, PKF)
    k("F_aw:")
    k("  s_waitcnt vmcnt(0)\n  s_barrier\n  s_cmp_lg_u32 s3, 0\n  s_cbranch_scc1 F_ax")
    arrive(34, 192, 25 + 6 + 30 * W3A, gow_set)
    k("  s_branch F_ax")
    k("F_cs:")
    k("  s_cmp_lt_u32 s75, 34\n  s_cbranch_scc0 F_fl")
    k("  s_mov_b32 s4, s75")
    k(f"  s_mov_b32 s44, s48\n  s_mov_b32 s45, s49\n  s_mov_b32 s46, {640*640*2}\n  s_mov_b32 s47, 0x00020000")
    k(f"  s_mov_b32 s5, s4\n  s_movk_i32 s6, 1280\n  s_mov_b32 s11, {WS_CS1}")
    k("  s_cmp_lt_u32 s4, 10\n  s_cbranch_scc1 F_cg")
    k(f"  s_mov_b32 s44, s52\n  s_mov_b32 s45, s53\n  s_mov_b32 s46, {640*1536*2}\n  s_sub_u32 s5, s4, 10\n  s_movk_i32 s6, 3072\n  s_mov_b32 s11, {WS_CS3}")
    k("F_cg:")
    k("  v_lshrrev_b32 v4, 3, v0\n  v_and_b32 v5, 7, v2")
    k("  v_mul_lo_u32 v6, s6, v4\n  s_lshl_b32 s14, s5, 7\n  v_lshl_add_u32 v6, v5, 4, v6\n  v_add_u32 v6, s14, v6")
    k("  s_lshl_b32 s15, s6, 6\n  s_mov_b32 s29, 0")
    for i in range(10): k(f"  buffer_load_dwordx4 v[{32+4*i}:{35+4*i}], v6, s[44:47], s29 offen\n  s_add_u32 s29, s29, s15")
    k("  s_mov_b32 s41, 0x00003f80\n  s_mov_b32 s42, 0x3f800000")
    for n in range(8): k(f"  v_mov_b32 v{16+n}, 0")
    for i in range(10):
        k(f"  s_waitcnt vmcnt({9-i})")
        for n in range(8): k(f"  v_dot2_f32_bf16 v{16+n}, v{32+4*i+(n>>1)}, s{42 if n & 1 else 41}, v{16+n}")
    for n in range(8):
        r = 16 + n
        k(f"  v_add_f32_dpp v{r}, v{r}, v{r} row_ror:8 row_mask:0xf bank_mask:0xf")
        k(f"  v_mov_b32 v24, v{r}\n  v_permlane16_swap_b32 v{r}, v24\n  v_add_f32 v{r}, v{r}, v24")
        k(f"  v_mov_b32 v24, v{r}\n  v_permlane32_swap_b32 v{r}, v24\n  v_add_f32 v{r}, v{r}, v24")
    k("  s_lshl_b32 s12, s3, 8\n  v_lshlrev_b32 v9, 5, v5\n  v_add_u32 v9, s12, v9")
    k("  ds_write_b128 v9, v[16:19]\n  ds_write_b128 v9, v[20:23] offset:16")
    k("  s_waitcnt lgkmcnt(0)\n  s_barrier")
    k("  s_cmp_lg_u32 s3, 3\n  s_cbranch_scc1 F_ax")
    k("  v_lshlrev_b32 v9, 2, v2")
    for w in range(8): k(f"  ds_read_b32 v{16+w}, v9 offset:{256*w}")
    k("  s_lshl_b32 s12, s5, 8\n  s_add_u32 s12, s12, s11")
    k("  s_waitcnt lgkmcnt(0)")
    for w in range(1, 8): k(f"  v_add_f32 v16, v16, v{16+w}")
    k("  buffer_store_dword v16, v9, s[36:39], s12 offen sc1\n  s_mov_b32 s71, 1")
    k("  s_branch F_ax")
    k("F_fl:")
    if W3A:
        k("  s_cmp_ge_u32 s72, 57\n  s_cbranch_scc1 F_fl2\n  s_sub_u32 s4, s72, 27\n  s_lshl_b32 s4, s4, 3\n  s_add_u32 s4, s4, s3")
        k(f"  s_mov_b32 s44, s52\n  s_mov_b32 s45, s53\n  s_mov_b32 s46, {640*1536*2}\n  s_mov_b32 s47, 0x00020000\n  s_mov_b32 s8, {WS_W3P}\n  s_movk_i32 s6, 3072\n  s_mov_b32 s12, 0\n  s_mov_b32 s9, 122880\n  s_movk_i32 s10, 1024\n  s_movk_i32 s7, 24576\n  s_movk_i32 s41, 6144\n  s_mov_b32 s42, 6\n  s_movk_i32 s43, 171")
        k("  s_mul_i32 s11, s4, 2731\n  s_lshr_b32 s11, s11, 16\n  s_mul_i32 s13, s11, 24\n  s_sub_u32 s5, s4, s13\n  s_branch F_go2")
        k("F_fl2:")
    k("  s_cmp_lt_u32 s72, 58\n  s_cbranch_scc1 F_ax\n  s_sub_u32 s5, s72, 58\n  s_lshl_b32 s5, s5, 14")
    k(f"  v_mov_b32 v16, 0\n  v_mov_b32 v17, 0\n  v_mov_b32 v18, 0\n  v_mov_b32 v19, 0\n  s_lshl_b32 s4, s3, 11\n  s_add_u32 s4, s4, s5\n  s_add_u32 s4, s4, {WS_FL1}")
    k("  buffer_store_dwordx4 v[16:19], v3, s[36:39], s4 offen sc1\n  buffer_store_dwordx4 v[16:19], v3, s[36:39], s4 offen offset:1024 sc1\n  s_branch F_aw")
    k("F_ax:")
    k.stamp(5)
    k("  s_cmp_lg_u32 s3, 0\n  s_cbranch_scc1 F_a2")
    gow_wait("F_pl6", int(os.environ.get("GWS", 8)))
    k("F_a2:")
    k(f"  v_mov_b32 v248, {GG_FLG}\n  v_mov_b32 v244, 0\n  v_mov_b32 v245, 0\n  v_mov_b32 v246, 0\n  v_mov_b32 v247, 0\n  ds_write_b128 v248, v[244:247]\n  ds_write_b128 v248, v[244:247] offset:16")
    k("  s_waitcnt lgkmcnt(0)\n  s_barrier")
    k.stamp(6)
    if SLT:
        NKB = 8 if SLT == 1 else 16
        assert 96 * NKB * 1024 >= (SL_G if SLT == 1 else SL_G + 786432) and 96 * NKB * 1024 <= SLAB
        k(f"  s_lshr_b32 s12, s72, 3\n  s_lshl_b32 s12, s12, 3\n  s_add_u32 s12, s12, s3\n  s_mul_i32 s12, s12, {NKB*1024}\n  s_and_b32 s13, s2, 7\n  s_mul_i32 s13, s13, {SLAB}\n  s_add_u32 s12, s12, s13\n  s_mov_b32 s13, s12")
        k("  v_mov_b32 v16, 0\n  v_mov_b32 v17, 0\n  v_mov_b32 v18, 0\n  v_mov_b32 v19, 0\n  v_lshlrev_b32 v10, 7, v2")
        for i in range(NKB):
            k(f"  buffer_store_dwordx4 v[16:19], v3, s[36:39], s12 offen offset:{1024*(i&3)} sc1" + ("\n  s_add_u32 s12, s12, 4096" if i & 3 == 3 else ""))
        k("  s_waitcnt vmcnt(0)\n  s_barrier")
        for i in range(NKB // 8): k(f"  buffer_load_dword v11, v10, s[36:39], s13 offen\n  s_add_u32 s13, s13, 8192")
        k("  s_waitcnt vmcnt(0)")
    if PKA:
        k("  s_cmp_lt_u32 s72, 36\n  s_cbranch_scc1 F_np9")
        k(f"  s_sub_u32 s75, s72, 36\n  s_lshl_b32 s75, s75, 3\n  s_add_u32 s75, s75, s3\n  s_mov_b32 s46, {640*1536*2}\n  s_mov_b32 s47, 0x00020000\n  s_cmp_lt_u32 s75, 240\n  s_cbranch_scc0 F_c4")
        k(f"  s_mov_b32 s44, s52\n  s_mov_b32 s45, s53\n  s_mov_b32 s8, {WS_W3P}\n  s_movk_i32 s6, 3072\n  s_mov_b32 s12, 0\n  s_movk_i32 s13, 2731\n  s_mov_b32 s15, 24\n  s_mov_b32 s9, 122880\n  s_movk_i32 s10, 1024\n  s_movk_i32 s7, 24576\n  s_movk_i32 s41, 6144\n  s_mov_b32 s42, 6\n  s_movk_i32 s43, 171\n  s_branch F_cgo")
        k("F_c4:")
        k(f"  s_mov_b32 s44, s54\n  s_mov_b32 s45, s55\n  s_sub_u32 s75, s75, 240\n  s_mov_b32 s8, {WS_W4P}\n  s_movk_i32 s6, 1280\n  s_mov_b32 s12, 1\n  s_movk_i32 s13, 6554\n  s_mov_b32 s15, 10\n  s_mov_b32 s9, 245760\n  s_movk_i32 s10, 4096\n  s_movk_i32 s7, 20480\n  s_movk_i32 s41, 1024\n  s_mov_b32 s42, 5\n  s_movk_i32 s43, 205")
        k("F_cgo:")
        k(f"  s_mul_i32 s11, s75, s13\n  s_lshr_b32 s11, s11, 16\n  s_mul_i32 s13, s11, s15\n  s_sub_u32 s5, s75, s13\n  s_lshl_b32 s73, s3, 13")
        pack_load(k, 73, va=244, vb=245, vc=246, vd=247, so=66)
        k("  s_waitcnt vmcnt(0)")
        pack_store(k, PKF, vb=245, vc=246, vd=247, so=66, R=144)
        k("  s_waitcnt vmcnt(0)\n  s_barrier\n  s_cmp_eq_u32 s3, 3\n  s_cselect_b32 s71, 1, 0")
        k("F_np9:")
    if SLT: k("  s_cmp_lg_u32 s3, 3\n  s_cbranch_scc1 F_a3\n  s_waitcnt vmcnt(0)")
    else: k("  s_cmp_eq_u32 s71, 0\n  s_cbranch_scc1 F_a3\n  s_waitcnt vmcnt(0)")
    top()
    k("F_a3:")
    k("F_fin:")
    k.stamp_out(0, nw=8)
    tab = ktab_offsets()
    k.tail.append(".p2align 6\nF_tab:")
    for i in range(0, len(tab), 16):
        k.tail.append("  .short " + ", ".join(str(x) for x in tab[i:i+16]))
```

```python
from asmfw import K
from layout import *
from k_common import *
import os
LOG2E = "0x3fb8aa3b"
CST = 4160; UOFF = 4 * CST; DREG = UOFF + 4608
RB = 4 * DREG; WREG = 8704; TBL = RB + 8 * WREG; TBS = 32 * TCS + 16
PC_LDS = TBL + 4 * TBS
SPIN = 400000
PKA = int(os.environ.get('PKA', 0))
W3A = int(os.environ.get('W3A', 0))
SLT = int(os.environ.get('SLT', 0))
GG_FLG = 7 * 20480
PKF = os.environ.get('PKF', ' sc1')
PFL = os.environ.get('PFL', 'sc1')
TOUCH = {'12': ((WS_W1P, 50), (WS_W2P, 50)), '321': ((WS_W3P, 120), (WS_W2P, 50), (WS_W1P, 50)), '1': ((WS_W1P, 50),)}[os.environ.get('NTOUCH', '12')]
N_LN = 64; PK_FIRST = 440 if len(TOUCH) == 3 else 200

def cmul(k, d, x, w):
    k(f"  v_pk_mul_f32 v[{d}:{d+1}], v[{x}:{x+1}], v[{w}:{w+1}] op_sel:[0,0] op_sel_hi:[1,0]")
    k(f"  v_pk_fma_f32 v[{d}:{d+1}], v[{x}:{x+1}], v[{w}:{w+1}], v[{d}:{d+1}] op_sel:[1,1,0] op_sel_hi:[0,1,1] neg_lo:[1,0,0]")

def gen_pc(k):
    def poll_dbg(lbl, off, val, vt=250, slp=16):
        k(f"  v_mov_b32 v{vt}, {off}\n  s_mov_b32 s78, 0\n  s_mov_b64 exec, 1\n{lbl}:\n  global_load_dword v{vt+1}, v{vt}, s[34:35] {PFL}\n  s_waitcnt vmcnt(0)\n  v_readfirstlane_b32 s79, v{vt+1}\n  s_add_u32 s78, s78, 1")
        k(f"  s_cmp_ge_u32 s79, {val}\n  s_cbranch_scc1 {lbl}_ok\n  s_sleep {slp}\n  s_cmp_lt_u32 s78, {SPIN}\n  s_cbranch_scc1 {lbl}\n{lbl}_ok:\n  s_mov_b64 exec, -1")
    def add_dbg(off, val, vt=250):
        k(f"  v_mov_b32 v{vt}, {off}\n  v_mov_b32 v{vt+1}, {val}\n  s_mov_b64 exec, 1\n  global_atomic_add v{vt}, v{vt+1}, s[34:35] sc1\n  s_mov_b64 exec, -1")
    uid = [0]
    def arrive(base, off, total, last, vt=250):
        uid[0] += 1; u = uid[0]
        k(f"  v_mov_b32 v{vt}, {off}\n  v_mov_b32 v{vt+1}, 1\n  s_mov_b64 exec, 1\n  global_atomic_add v{vt+2}, v{vt}, v{vt+1}, s[{base}:{base+1}] sc0 sc1\n  s_waitcnt vmcnt(0)\n  v_readfirstlane_b32 s79, v{vt+2}\n  s_mov_b64 exec, -1")
        k(f"  s_cmp_lg_u32 s79, {total-1}\n  s_cbranch_scc1 F_ar{u}")
        last()
        k(f"F_ar{u}:")
    def set_dbg(off, vt=250):
        k(f"  v_mov_b32 v{vt}, {off}\n  v_mov_b32 v{vt+1}, 1\n  s_mov_b64 exec, 1\n  global_store_dword v{vt}, v{vt+1}, s[34:35] sc1\n  s_mov_b64 exec, -1")
    def set_goh(word):
        k(f"  v_lshlrev_b32 v250, 7, v2\n  v_mov_b32 v251, 1\n  s_lshl_b32 s79, {word}, 2\n  s_add_u32 s79, s79, {WS_GOH}\n  buffer_store_dword v251, v250, s[36:39], s79 offen sc1")
    top = lambda: arrive(32, WS_SHARD + 1024, 96 if SLT else (27 + 60 if PKA else 34), lambda: set_goh(8))
    k("  s_cmp_ge_u32 s2, 256\n  s_cbranch_scc1 GG_done")
    k.stamp(0); k.stamp(7, True)
    k("  s_load_dwordx16 s[16:31], s[0:1], 0")
    k(f"  s_load_dwordx4 s[32:35], s[0:1], {KA_DBG}")
    k(f"  s_load_dwordx8 s[48:55], s[0:1], {KA_W1}\n  s_load_dwordx2 s[56:57], s[0:1], {KA_DSK}")
    k("  v_lshrrev_b32 v1, 6, v0\n  v_and_b32 v2, 63, v0\n  v_readfirstlane_b32 s3, v1\n  v_lshlrev_b32 v3, 4, v2")
    k(f"  s_mov_b32 s40, 0xffff0000\n  s_and_b32 s79, s2, 63\n  s_lshl_b32 s79, s79, 7\n  s_add_u32 s79, s79, {WS_GOW}\n  v_mov_b32 v254, s79")
    def after_kernarg():
        k("  s_waitcnt lgkmcnt(0)")
        k("  s_mov_b64 s[36:37], s[34:35]\n  s_mov_b64 s[34:35], s[32:33]\n  s_mov_b64 s[32:33], s[36:37]")
        k(f"  s_mov_b32 s38, {WS_SPAN}\n  s_mov_b32 s39, 0x00020000")
    def gow_entry():
        k(f"  s_mov_b64 exec, 1\n  buffer_load_dword v255, v254, s[36:39], 0 offen sc1\n  s_mov_b64 exec, -1")
    def gow_set():
        k(f"  v_lshlrev_b32 v250, 7, v2\n  s_mov_b32 s79, {WS_GOW}\n  buffer_load_dword v251, v250, s[36:39], s79 offen sc1\n  s_waitcnt vmcnt(0)\n  v_add_u32 v251, 1, v251\n  buffer_store_dword v251, v250, s[36:39], s79 offen sc1")
        set_dbg(DBG_GOW)
    def gow_wait(lbl, slp, first):
        k(f"  s_waitcnt vmcnt(0)\n  v_readfirstlane_b32 s77, v255\n  v_mov_b32 v250, {DBG_GOW}\n  s_mov_b32 s78, 0\n  s_mov_b64 exec, 1\n{lbl}:\n  buffer_load_dword v251, v254, s[36:39], 0 offen sc1\n  s_waitcnt vmcnt(0)\n  v_readfirstlane_b32 s79, v251\n  s_add_u32 s78, s78, 1")
        k(f"  s_cmp_lg_u32 s79, s77\n  s_cbranch_scc1 {lbl}_ok\n  s_sleep {slp}\n  s_and_b32 s79, s78, 15\n  s_cmp_lg_u32 s79, {first}\n  s_cbranch_scc1 {lbl}")
        k(f"  global_load_dword v251, v250, s[34:35] sc1\n  s_waitcnt vmcnt(0)\n  v_readfirstlane_b32 s79, v251\n  s_cmp_lg_u32 s79, 0\n  s_cbranch_scc1 {lbl}_ok\n  s_cmp_lt_u32 s78, {SPIN}\n  s_cbranch_scc1 {lbl}\n{lbl}_ok:\n  s_mov_b64 exec, -1")
    k("  s_cmp_ge_u32 s2, 160\n  s_cbranch_scc1 F_aux")
    k("  s_and_b32 s4, s2, 7\n  s_mul_i32 s4, s4, 20\n  s_lshr_b32 s5, s2, 3\n  s_add_u32 s4, s4, s5\n  s_lshl_b32 s4, s4, 2")
    k("  s_and_b32 s58, s3, 3\n  s_lshr_b32 s59, s3, 2\n  s_add_u32 s5, s4, s58")
    k(f"  s_mul_i32 s6, s58, {DREG}\n  s_mul_i32 s11, s3, {WREG}\n  s_add_u32 s11, s11, {RB}")
    k(f"  s_and_b32 s60, s2, 7\n  s_mul_i32 s61, s60, {SLAB}")
    k(f"  s_mul_i32 s10, s58, {TBS}\n  s_add_u32 s65, s10, {TBL}\n  v_mov_b32 v134, s65\n  v_mov_b32 v96, 0\n  v_mov_b32 v97, 0\n  ds_write_b64 v134, v[96:97] offset:{32*TCS}")
    k("  s_getpc_b64 s[8:9]\nF_pc:\n  s_add_u32 s8, s8, F_tab-F_pc\n  s_addc_u32 s9, s9, 0")
    k("  s_cmp_lg_u32 s59, 0\n  s_cbranch_scc1 F_nt")
    for it in range(4):
        k(f"  global_load_dwordx4 v[{176+6*it}:{179+6*it}], v3, s[8:9] offset:{1024*it}\n  global_load_dwordx2 v[{180+6*it}:{181+6*it}], v3, s[8:9] offset:{1024*it+16}")
    k("F_nt:")
    k("  s_mul_i32 s7, s5, 384\n  s_lshl_b32 s10, s59, 8\n  s_add_u32 s7, s7, s10\n  v_lshl_add_u32 v5, v2, 1, s7")
    k("  v_lshl_add_u32 v6, v2, 2, s11")
    k("  v_and_b32 v7, 31, v2\n  v_mul_u32_u24 v7, 272, v7\n  v_lshrrev_b32 v8, 5, v2\n  v_lshl_add_u32 v7, v8, 4, v7\n  v_add_u32 v7, s11, v7")
    k(f"  v_and_b32 v130, 31, v2\n  v_mul_u32_u24 v130, {TCS}, v130\n  v_lshl_add_u32 v130, v8, 3, v130\n  v_add_u32 v130, s65, v130")
    k(f"  s_add_u32 s10, s58, 4\n  s_mul_i32 s10, s10, {WREG}\n  s_add_u32 s10, s10, {RB}\n  v_add_u32 v131, s10, v3")
    k("  s_lshr_b32 s12, s5, 1\n  s_lshl_b32 s12, s12, 2\n  s_and_b32 s13, s5, 1\n  s_lshl_b32 s13, s13, 4")
    k("  v_and_b32 v4, 255, v0\n  v_lshlrev_b32 v4, 4, v4\n  s_lshl_b32 s10, s4, 1\n  v_mul_u32_u24 v133, 160, v4\n  v_add_u32 v133, s10, v133")
    after_kernarg()
    k("  s_barrier")
    k.stamp(1)
    for i, sb in enumerate((18, 20, 22, 24, 26, 28)): k(f"  global_load_ushort v{112+i}, v5, s[{sb}:{sb+1}]")
    k("  s_load_dword s14, s[30:31], s12\n  s_load_dwordx2 s[62:63], s[56:57], s10")
    k("  s_cmp_lg_u32 s59, 0\n  s_cbranch_scc1 F_hg")
    for i, sb in enumerate((18, 20, 22, 24, 26, 28)): k(f"  global_load_ushort v{118+i}, v5, s[{sb}:{sb+1}] offset:128")
    gow_entry()
    k("  s_waitcnt vmcnt(13)")
    for it in range(4):
        for i in range(11):
            src = 176 + 6*it + (i >> 1)
            k(f"  v_lshrrev_b32 v{200+11*it+i}, 16, v{src}" if i & 1 else f"  v_and_b32 v{200+11*it+i}, 0xffff, v{src}")
            k(f"  v_add_u32 v{200+11*it+i}, s65, v{200+11*it+i}")
    k("  s_waitcnt vmcnt(0)\n  s_branch F_hj")
    k("F_hg:")
    for i in range(1, 4): k(f"  v_add_u32 v{135+i}, {512*1280*i}, v133")
    k("  s_bfe_u32 s10, s2, 0x20003")
    for rot in range(4):
        if rot < 3: k(f"  s_cmp_lg_u32 s10, {rot}\n  s_cbranch_scc1 F_g{rot+1}")
        for ii in range(4):
            i = (ii + rot) & 3 if int(os.environ.get("GROT", 1)) else ii
            for r in range(2): k(f"  global_load_dwordx2 v[{176+4*i+2*r}:{177+4*i+2*r}], v{135+i if i else 133}, s[16:17] offset:{1280*r}")
        if rot < 3: k(f"  s_branch F_ge\nF_g{rot+1}:")
    k("F_ge:")
    k("  s_waitcnt vmcnt(8)")
    k("F_hj:")
    for i in range(2, 16): k(f"  v_mov_b32 v{96+i}, 0")
    k("  s_waitcnt lgkmcnt(0)")
    k("  s_lshr_b32 s14, s14, s13\n  s_lshl_b32 s14, s14, 16")
    k(f"  v_mov_b32 v9, {LOG2E}\n  v_mul_f32 v9, s14, v9\n  v_exp_f32 v9, v9\n  v_cvt_pk_bf16_f32 v9, v9, v9\n  v_lshlrev_b32 v132, 16, v9")
    k("  s_mov_b32 s15, s59")
    k.stamp(2)
    k("F_unit:")
    for i in range(6): k(f"  v_lshlrev_b32 v{10+i}, 16, v{112+i}")
    for i in range(6): k(f"  v_mov_b32 v{112+i}, v{118+i}")
    k("  v_mul_f32 v10, v132, v10\n  v_mul_f32 v11, v132, v11\n  v_mul_f32 v12, v132, v12\n  v_mul_f32 v13, v132, v13")
    k(f"  v_mul_f32 v10, {LOG2E}, v10\n  v_mul_f32 v11, 0.15915494, v11")
    for dst, e in ((16, None), (18, "0x41000000"), (20, "0x43800000")):
        if e is None: k(f"  v_exp_f32 v22, v10\n  v_fract_f32 v23, v11")
        else: k(f"  v_mul_f32 v22, {e}, v10\n  v_mul_f32 v23, {e}, v11\n  v_exp_f32 v22, v22\n  v_fract_f32 v23, v23")
        k(f"  v_cos_f32 v{dst}, v23\n  v_sin_f32 v{dst+1}, v23")
        k(f"  v_mul_f32 v{dst}, v22, v{dst}\n  v_mul_f32 v{dst+1}, v22, v{dst+1}")
    cmul(k, 24, 14, 12)
    def put(reg, row, neg):
        k(f"  v_cvt_pk_bf16_f32 v9, v{reg}, {'-' if neg else ''}v{reg+1}\n  ds_write_b32 v6, v9 offset:{row*272}")
    put(24, 0, True)
    for r in range(1, 8):
        cmul(k, 24 + 2*r, 24 + 2*(r-1), 16); put(24 + 2*r, r, True)
    for i, r in enumerate((0, 2, 4, 6)):
        cmul(k, 40 + 2*i, 24 + 2*r, 20); put(40 + 2*i, 8 + i, True)
    cmul(k, 48, 40, 20); put(48, 12, True)
    cmul(k, 50, 44, 20); put(50, 13, True)
    cmul(k, 52, 48, 20); put(52, 14, True)
    cmul(k, 54, 50, 20); put(54, 15, True)
    prev = 52
    for i in range(5):
        dst = 24 + 2*i
        cmul(k, dst, prev, 20); put(dst, 16 + i, True); prev = dst
    k("  s_waitcnt lgkmcnt(0)")
    for s in range(8): k(f"  ds_read_b128 v[{136+4*s}:{139+4*s}], v7 offset:{32*s}")
    k("  v_mov_b32 v9, 0x3f80\n  ds_write_b32 v6, v9 offset:0")
    put(18, 1, False)
    prev = 18
    for j in range(2, 32):
        dst = 24 + 2*(j & 1)
        cmul(k, dst, prev, 18); put(dst, j, False); prev = dst
    k("  s_waitcnt lgkmcnt(0)")
    for s in range(8): k(f"  ds_read_b128 v[{56+4*s}:{59+4*s}], v7 offset:{32*s}")
    for s in range(8):
        k(f"  s_waitcnt lgkmcnt({7-s})")
        k(f"  v_mfma_f32_32x32x16_bf16 v[96:111], v[{136+4*s}:{139+4*s}], v[{56+4*s}:{59+4*s}], v[96:111]")
    k("  s_add_u32 s15, s15, 1\n  s_cmp_lt_u32 s15, 2\n  s_cbranch_scc1 F_unit")
    k("  s_cmp_lg_u32 s59, 0\n  s_cbranch_scc1 F_help")
    k("  s_mov_b32 s78, 0")
    k(f"F_pw:\n  ds_read_b32 v9, v134 offset:{32*TCS+4}\n  s_add_u32 s78, s78, 1\n  s_waitcnt lgkmcnt(0)\n  v_readfirstlane_b32 s79, v9\n  s_cmp_lg_u32 s79, 0\n  s_cbranch_scc1 F_po\n  s_cmp_lt_u32 s78, {1<<23}\n  s_cbranch_scc1 F_pw\nF_po:")
    for g in range(3): k(f"  ds_read_b128 v[{16+4*g}:{19+4*g}], v131 offset:{1024*g}")
    k("  s_waitcnt lgkmcnt(0)")
    for g in range(6): k(f"  v_pk_add_f32 v[{96+2*g}:{97+2*g}], v[{96+2*g}:{97+2*g}], v[{16+2*g}:{17+2*g}]")
    for g in range(3):
        k(f"  v_cvt_pk_bf16_f32 v{10+2*g}, v{96+4*g}, v{97+4*g}\n  v_cvt_pk_bf16_f32 v{11+2*g}, v{98+4*g}, v{99+4*g}\n  ds_write_b64 v130, v[{10+2*g}:{11+2*g}] offset:{16*g}")
    k("  v_add_u32 v52, s6, v3")
    k(f"  v_bfe_u32 v16, v2, 1, 2\n  v_mul_u32_u24 v16, {CST}, v16\n  v_and_b32 v17, 1, v2\n  v_lshl_add_u32 v16, v17, 4, v16\n  v_add_u32 v16, s6, v16")
    k("  v_mov_b32 v20, 0\n  v_mov_b32 v21, 0\n  v_mov_b32 v22, 0\n  v_mov_b32 v23, 0\n  ds_write_b128 v16, v[20:23] offset:4096")
    k.stamp(3)
    k("  s_waitcnt lgkmcnt(0)")
    def ex_reads(it):
        for i in range(11): k(f"  ds_read_u16 v{56+12*(it&1)+i}, v{200+11*it+i}")
    ex_reads(0)
    for it in range(4):
        if it < 3: ex_reads(it + 1)
        k(f"  s_waitcnt lgkmcnt({11 if it < 3 else 0})")
        V = 56 + 12*(it & 1)
        for sg, st in ((3, 0), (2, 1), (1, 2), (0, 3)):
            O = 80 + 4*sg
            for j in range(4): k(f"  v_lshl_or_b32 v{O+j}, v{V+st+2*j+1}, 16, v{V+st+2*j}")
            k(f"  ds_write_b128 v52, v[{O}:{O+3}] offset:{1024*it + sg*CST}")
    k.stamp(4)
    k("  v_and_b32 v6, 15, v2\n  v_lshrrev_b32 v7, 4, v2")
    k(f"  v_and_b32 v8, 3, v6\n  v_mul_u32_u24 v8, {CST}, v8\n  v_lshrrev_b32 v9, 2, v6\n  v_lshlrev_b32 v9, 3, v9\n  v_sub_u32 v8, v8, v9\n  v_lshl_add_u32 v8, v7, 4, v8\n  v_add_u32 v8, {24+384}, v8\n  v_add_u32 v12, s6, v8")
    k(f"  v_lshlrev_b32 v8, 5, v6\n  v_lshl_add_u32 v8, v7, 4, v8\n  v_add_u32 v8, {UOFF+32+384}, v8\n  v_add_u32 v13, s6, v8")
    k(f"  s_lshl_b32 s10, s58, 12\n  s_add_u32 s10, s10, {RB}\n  v_lshlrev_b32 v8, 5, v6\n  v_lshl_add_u32 v8, v7, 3, v8\n  v_add_u32 v14, s10, v8")
    for i in range(32): k(f"  v_mov_b32 v{16+i}, 0")
    k("  s_waitcnt lgkmcnt(0)\n  s_barrier")
    k.stamp(5)
    SETS = ((48, 80), (112, 144))
    def reads(st, extra):
        A, B = SETS[st]; out = []
        for n in range(8):
            off = 512 * (7 - n) + 64 - extra
            out.append(f"  ds_read_b64 v[{A+4*n}:{A+4*n+1}], v12 offset:{off}")
            out.append(f"  ds_read_b64 v[{A+4*n+2}:{A+4*n+3}], v12 offset:{off+8}")
            out.append(f"  ds_read_b128 v[{B+4*n}:{B+4*n+3}], v13 offset:{512*n + 64 - extra}")
        return out
    def mfmas(st):
        A, B = SETS[st]; out = []
        for J in range(8):
            for n in range(J + 1):
                m = J - n
                out.append(f"  v_mfma_f32_16x16x32_bf16 v[{16+4*J}:{19+4*J}], v[{A+4*n}:{A+4*n+3}], v[{B+4*m}:{B+4*m+3}], v[{16+4*J}:{19+4*J}]")
        return out
    def inter(mf, rd):
        out = []
        for i, m in enumerate(mf):
            out.append(m)
            if i < len(rd): out.append(rd[i])
        return out
    k("  s_setprio 3")
    for l in reads(0, 0): k(l)
    k("  s_mov_b32 s15, 0")
    k("F_loop:")
    k("  s_waitcnt lgkmcnt(0)")
    for l in inter(mfmas(0), reads(1, 64)): k(l)
    k("  v_subrev_u32 v12, 128, v12\n  v_subrev_u32 v13, 128, v13")
    k("  s_waitcnt lgkmcnt(0)")
    k("  s_cmp_eq_u32 s15, 3\n  s_cbranch_scc1 F_last")
    for l in inter(mfmas(1), reads(0, 0)): k(l)
    k("  s_add_u32 s15, s15, 1\n  s_branch F_loop")
    k("F_last:")
    A, B = SETS[1]; pend = []; cnt = 0
    for J in range(7, -1, -1):
        for n in range(J + 1):
            k(f"  v_mfma_f32_16x16x32_bf16 v[{16+4*J}:{19+4*J}], v[{A+4*n}:{A+4*n+3}], v[{B+4*(J-n)}:{B+4*(J-n)+3}], v[{16+4*J}:{19+4*J}]")
            cnt += 1
            if pend and pend[0][0] <= cnt: k(pend.pop(0)[1])
        pend += [(cnt + 6, f"  v_cvt_pk_bf16_f32 v{48+2*J}, v{16+4*J}, v{17+4*J}\n  v_cvt_pk_bf16_f32 v{49+2*J}, v{18+4*J}, v{19+4*J}"),
                 (cnt + 7, f"  ds_write_b64 v14, v[{48+2*J}:{49+2*J}] offset:{512*J}")]
    for _, t in pend: k(t)
    k.stamp(6)
    k("  s_waitcnt lgkmcnt(0)\n  s_barrier\n  s_setprio 0")
    k("  s_cmp_lg_u32 s3, 0\n  s_cbranch_scc1 F_b5")
    gow_wait("F_pl5", 2, 1)
    k("F_b5:")
    k("  s_barrier")
    k("  s_cmp_lg_u32 s3, 0\n  s_cbranch_scc1 F_fin")
    k(f"  s_lshl_b32 s10, s60, 7\n  s_add_u32 s10, s10, {WS_SHARD}")
    arrive(32, "s10", 20, lambda: set_goh("s60"))
    k("  s_branch F_fin")
    k("F_help:")
    k("  v_mov_b32 v252, 0\n  s_mov_b64 exec, 1\n  global_load_dword v253, v252, s[34:35] sc1\n  s_mov_b64 exec, -1")
    k(f"  v_and_b32 v9, 0x1f0, v3\n  v_add_u32 v9, s6, v9")
    k(f"  v_mov_b32 v12, 0\n  v_mov_b32 v13, 0\n  v_mov_b32 v14, 0\n  v_mov_b32 v15, 0\n  ds_write_b128 v9, v[12:15] offset:{UOFF}\n  s_nop 7")
    for g in range(3): k(f"  ds_write_b128 v131, v[{96+4*g}:{99+4*g}] offset:{1024*g}")
    k(f"  v_mov_b32 v9, 1\n  s_waitcnt lgkmcnt(0)\n  ds_write_b32 v134, v9 offset:{32*TCS+4}")
    k(f"  s_waitcnt vmcnt(0)\n  v_readfirstlane_b32 s79, v253\n  s_cmp_ge_u32 s79, {N_LN}\n  s_cbranch_scc1 F_st")
    poll_dbg("F_pl1", 0, N_LN)
    k("F_st:")
    k.stamp(1)
    k(f"  s_mov_b32 s10, {WS_ST0}")
    for i in range(4): k(f"  buffer_load_dwordx4 v[{192+4*i}:{195+4*i}], v4, s[36:39], s10 offen sc1\n  s_add_u32 s10, s10, 4096")
    for i in range(16): k(f"  v_lshlrev_b32 v{64+2*i}, 16, v{176+i}\n  v_and_b32 v{65+2*i}, s40, v{176+i}")
    k(f"  v_lshrrev_b32 v5, 2, v4\n  v_add_u32 v6, {UOFF+512}, v5\n  v_add_u32 v7, {2*DREG}, v6\n  v_add_u32 v5, {RB}, v5\n  v_lshlrev_b32 v8, 1, v4")
    k("  s_lshl_b32 s66, s62, 16\n  s_and_b32 s67, s62, s40\n  s_lshl_b32 s68, s63, 16\n  s_and_b32 s69, s63, s40\n  s_mov_b32 s41, 0x07060302")
    k("  s_waitcnt vmcnt(0)")
    k.stamp(2)
    for i in range(4):
        for r in range(2):
            o = 96 + 8*i + 4*r; x = 64 + 8*i + 4*r; st = 192 + 4*i + 2*r
            for h in range(2):
                a = o + 2*h
                k(f"  v_pk_add_f32 v[{a}:{a+1}], v[{x+2*h}:{x+2*h+1}], v[{st}:{st+1}] op_sel_hi:[1,0] neg_lo:[0,1] neg_hi:[0,1]\n  v_cvt_pk_bf16_f32 v9, v{a}, v{a+1}\n  v_lshlrev_b32 v{a}, 16, v9\n  v_and_b32 v{a+1}, s40, v9")
                k(f"  v_pk_mul_f32 v[{a}:{a+1}], v[{a}:{a+1}], v[{st}:{st+1}] op_sel:[0,1] op_sel_hi:[1,1]")
        for w in range(4):
            k(f"  v_cvt_pk_bf16_f32 v{48+4*i+w}, v{96+8*i+w}, v{100+8*i+w}\n  ds_write_b32 v{6 + (w >> 1)}, v{48+4*i+w} offset:{(w & 1)*DREG + 1024*i}")
    k.stamp(3)
    UDL = int(os.environ.get("UDL", 1))
    if UDL: k("  s_waitcnt lgkmcnt(0)\n  s_barrier"); k.stamp(5)
    for i in range(4):
        for r in range(2):
            o = 96 + 8*i + 4*r
            for w in range(4): k(f"  v_and_b32 v{o+w}, s40, v{48+4*i+w}" if r else f"  v_lshlrev_b32 v{o+w}, 16, v{48+4*i+w}")
            for h in range(2):
                k(f"  v_mul_f32 v{o+2*h}, s{66+2*h}, v{o+2*h}\n  v_mul_f32 v{o+2*h+1}, s{67+2*h}, v{o+2*h+1}\n  v_cvt_pk_bf16_f32 v9, v{o+2*h}, v{o+2*h+1}\n  v_lshlrev_b32 v{o+2*h}, 16, v9\n  v_and_b32 v{o+2*h+1}, s40, v9")
    if not UDL: k("  s_waitcnt lgkmcnt(0)\n  s_barrier"); k.stamp(5)
    k(f"  s_lshr_b32 s64, s4, 2\n  s_mul_i32 s64, s64, {QS}\n  s_add_u32 s64, s64, {WS_HQ}")
    if not PKA:
        k(f"  s_cmp_ge_u32 s2, {60 if W3A else 120}\n  s_cbranch_scc1 F_np")
        k(f"  s_lshl_b32 s75, s2, 2\n  s_add_u32 s75, s75, s58\n  s_add_u32 s75, s75, {240 if W3A else 0}\n  s_mov_b32 s46, {640*1536*2}\n  s_mov_b32 s47, 0x00020000\n  s_cmp_lt_u32 s75, 240\n  s_cbranch_scc0 F_c4")
        k(f"  s_mov_b32 s44, s52\n  s_mov_b32 s45, s53\n  s_mov_b32 s8, {WS_W3P}\n  s_movk_i32 s6, 3072\n  s_mov_b32 s12, 0\n  s_movk_i32 s13, 2731\n  s_mov_b32 s15, 24\n  s_mov_b32 s9, 122880\n  s_movk_i32 s10, 1024\n  s_movk_i32 s7, 24576\n  s_movk_i32 s41, 6144\n  s_mov_b32 s42, 6\n  s_movk_i32 s43, 171\n  s_branch F_cgo")
        k("F_c4:")
        k(f"  s_mov_b32 s44, s54\n  s_mov_b32 s45, s55\n  s_sub_u32 s75, s75, 240\n  s_mov_b32 s8, {WS_W4P}\n  s_movk_i32 s6, 1280\n  s_mov_b32 s12, 1\n  s_movk_i32 s13, 6554\n  s_mov_b32 s15, 10\n  s_mov_b32 s9, 245760\n  s_movk_i32 s10, 4096\n  s_movk_i32 s7, 20480\n  s_movk_i32 s41, 1024\n  s_mov_b32 s42, 5\n  s_movk_i32 s43, 205")
        k("F_cgo:")
        k(f"  s_mul_i32 s11, s75, s13\n  s_lshr_b32 s11, s11, 16\n  s_mul_i32 s13, s11, s15\n  s_sub_u32 s5, s75, s13\n  s_lshl_b32 s72, s58, 13\n  s_add_u32 s72, s72, {RB + 16384}")
        pack_load(k, 72, va=244, vb=245, vc=246, vd=247, so=66)
        k("  s_waitcnt vmcnt(0)")
        pack_store(k, PKF, vb=245, vc=246, vd=247, so=66, R=144)
    k("F_np:")
    k("  s_barrier")
    k.stamp(6)
    for i in range(4):
        for w in range(4): k(f"  ds_read_b32 v{48+4*i+w}, v5 offset:{4096*w + 1024*i}")
    for i in range(4):
        k(f"  s_waitcnt lgkmcnt({12-4*i})")
        for r in range(2):
            o = 128 + 4*r; u = 96 + 8*i + 4*r; x = 64 + 8*i + 4*r; d = 136 + 4*i + 2*r
            for w in range(4): k(f"  v_and_b32 v{o+w}, s40, v{48+4*i+w}" if r else f"  v_lshlrev_b32 v{o+w}, 16, v{48+4*i+w}")
            for h in range(2):
                a = o + 2*h
                k(f"  v_pk_add_f32 v[{a}:{a+1}], v[{a}:{a+1}], v[{u+2*h}:{u+2*h+1}]\n  v_cvt_pk_bf16_f32 v9, v{a}, v{a+1}\n  v_lshlrev_b32 v{a}, 16, v9\n  v_and_b32 v{a+1}, s40, v9")
                k(f"  v_pk_add_f32 v[{a}:{a+1}], v[{a}:{a+1}], v[{x+2*h}:{x+2*h+1}]\n  v_cvt_pk_bf16_f32 v{d+h}, v{a}, v{a+1}")
        k(f"  buffer_store_dwordx4 v[{136+4*i}:{139+4*i}], v4, s[36:39], s64 offen sc1\n  s_add_u32 s64, s64, 4096")
    k.stamp(4)
    k(f"  v_mov_b32 v248, {GG_FLG}\n  v_mov_b32 v244, 0\n  v_mov_b32 v245, 0\n  v_mov_b32 v246, 0\n  v_mov_b32 v247, 0\n  ds_write_b128 v248, v[244:247]\n  ds_write_b128 v248, v[244:247] offset:16")
    k("  s_waitcnt vmcnt(0) lgkmcnt(0)\n  s_barrier")
    k("  s_branch F_fin")
    k("F_aux:")
    k("  s_mov_b32 s71, 0")
    if int(os.environ.get("CW", 1)):
        k("  s_cmp_lt_u32 s2, 248\n  s_cbranch_scc1 F_ncw")
        k("  s_getpc_b64 s[8:9]\nF_pc2:\n  s_sub_u32 s8, s8, F_pc2-mk_kernel\n  s_subb_u32 s9, s9, 0")
        k("  v_lshlrev_b32 v10, 7, v0\n  s_mov_b32 s10, F_tab-mk_kernel\n  v_min_u32 v10, s10, v10\n  global_load_dword v11, v10, s[8:9]")
        k("F_ncw:")
    k("  s_sub_u32 s72, s2, 160")
    k(f"  s_cmp_ge_u32 s72, {N_LN}\n  s_cbranch_scc1 F_pk0")
    US = 1344
    k("  s_and_b32 s5, s72, 7\n  s_lshl_b32 s5, s5, 3\n  s_lshr_b32 s4, s72, 3\n  s_add_u32 s4, s4, s5")
    k("  v_lshrrev_b32 v4, 4, v0\n  v_and_b32 v5, 15, v0")
    k("  v_mul_u32_u24 v6, 1280, v4\n  v_lshl_add_u32 v6, v5, 4, v6\n  s_mul_i32 s5, s4, 40960\n  v_add_u32 v6, s5, v6")
    after_kernarg()
    k.stamp(1)
    for i in range(5): k(f"  global_load_dwordx4 v[{12+4*i}:{15+4*i}], v6, s[16:17] offset:{256*i}")
    gow_entry()
    k(f"  s_lshl_b32 s5, s4, 8\n  s_add_u32 s5, s5, {WS_ST0}\n  v_lshlrev_b32 v7, 3, v4\n  v_lshlrev_b32 v8, 3, v2")
    for i in range(5):
        k(f"  s_waitcnt vmcnt({5-i})")
        for h in range(4):
            r = 12 + 4*i + h; o = 32 + 8*i + 2*h
            k(f"  v_lshlrev_b32 v{o}, 16, v{r}\n  v_and_b32 v{o+1}, s40, v{r}")
    k.stamp(2)
    def reduce16(r):
        for sh in (8, 4, 2, 1): k(f"  v_add_f32_dpp v{r}, v{r}, v{r} row_ror:{sh} row_mask:0xf bank_mask:0xf")
    k("  v_pk_add_f32 v[72:73], v[32:33], v[34:35]")
    for i in range(2, 20): k(f"  v_pk_add_f32 v[72:73], v[72:73], v[{32+2*i}:{33+2*i}]")
    k("  v_add_f32 v72, v72, v73")
    reduce16(72)
    k("  v_mul_f32 v72, 0x3acccccd, v72\n  v_mov_b32 v73, v72\n  v_mov_b32 v74, 0\n  v_mov_b32 v75, 0")
    for i in range(20):
        k(f"  v_pk_add_f32 v[76:77], v[{32+2*i}:{33+2*i}], v[72:73] neg_lo:[0,1] neg_hi:[0,1]\n  v_pk_fma_f32 v[74:75], v[76:77], v[76:77], v[74:75]")
    k("  v_add_f32 v74, v74, v75")
    reduce16(74)
    k("  v_mul_f32 v74, 0x3acccccd, v74")
    k("  v_cvt_pk_bf16_f32 v76, v72, v74\n  v_lshlrev_b32 v72, 16, v76\n  v_and_b32 v74, s40, v76\n  v_mov_b32 v73, v72")
    k("  v_add_f32 v74, 0x3727c5ac, v74\n  v_cvt_pk_bf16_f32 v74, v74, v74\n  v_lshlrev_b32 v74, 16, v74")
    k("  v_sqrt_f32 v74, v74\n  v_cvt_pk_bf16_f32 v74, v74, v74\n  v_lshlrev_b32 v74, 16, v74\n  v_rcp_f32 v73, v74")
    k("  ds_write_b64 v7, v[72:73]")
    k.stamp(3)
    k("  s_waitcnt lgkmcnt(0)\n  s_barrier")
    k("  s_cmp_lg_u32 s3, 0\n  s_cbranch_scc1 F_ln2")
    k("  s_mov_b32 exec_hi, 0\n  ds_read_b64 v[72:73], v8\n  s_waitcnt lgkmcnt(0)\n  buffer_store_dwordx2 v[72:73], v8, s[36:39], s5 offen sc1\n  s_mov_b64 exec, -1")
    k("F_ln2:")
    k("  s_waitcnt vmcnt(0)\n  s_barrier\n  s_cmp_lg_u32 s3, 0\n  s_cbranch_scc1 F_ln3")
    add_dbg(0, 1)
    k.stamp(4)
    k("F_ln3:")
    k("  s_add_u32 s75, s72, 7\n  s_branch F_cs")
    k("F_pk0:")
    after_kernarg()
    gow_entry()
    k(f"  s_sub_u32 s73, s72, {N_LN}\n  s_sub_u32 s75, s73, 25\n  s_cmp_ge_u32 s73, 25\n  s_cbranch_scc1 F_cs")
    k("  s_lshl_b32 s4, s73, 3\n  s_add_u32 s4, s4, s3")
    k(f"  s_mov_b32 s44, s48\n  s_mov_b32 s45, s49\n  s_mov_b32 s46, {640*640*2}\n  s_mov_b32 s47, 0x00020000\n  s_mov_b32 s8, {WS_W1P}")
    k("  s_movk_i32 s6, 1280\n  s_mov_b32 s12, 1\n  s_mov_b32 s9, 102400\n  s_movk_i32 s10, 1024\n  s_movk_i32 s7, 20480\n  s_movk_i32 s41, 5120\n  s_mov_b32 s42, 5\n  s_movk_i32 s43, 205")
    k("  s_cmp_lt_u32 s4, 100\n  s_cbranch_scc1 F_go")
    k(f"  s_mov_b32 s44, s50\n  s_mov_b32 s45, s51\n  s_sub_u32 s4, s4, 100\n  s_mov_b32 s8, {WS_W2P}")
    k("F_go:")
    k("  s_mul_i32 s11, s4, 6554\n  s_lshr_b32 s11, s11, 16\n  s_mul_i32 s13, s11, 10\n  s_sub_u32 s5, s4, s13")
    k("F_go2:")
    k("  s_lshl_b32 s74, s3, 13")
    pack_load(k, 74)
    k("  s_waitcnt vmcnt(0)")
    pack_store(k, PKF)
    k("F_aw:")
    k("  s_waitcnt vmcnt(0)\n  s_barrier\n  s_cmp_lg_u32 s3, 0\n  s_cbranch_scc1 F_ax")
    arrive(34, 192, 25 + 6 + 30 * W3A, gow_set)
    k("  s_branch F_ax")
    k("F_cs:")
    k("  s_cmp_lt_u32 s75, 34\n  s_cbranch_scc0 F_fl")
    k("  s_mov_b32 s4, s75")
    k(f"  s_mov_b32 s44, s48\n  s_mov_b32 s45, s49\n  s_mov_b32 s46, {640*640*2}\n  s_mov_b32 s47, 0x00020000")
    k(f"  s_mov_b32 s5, s4\n  s_movk_i32 s6, 1280\n  s_mov_b32 s11, {WS_CS1}")
    k("  s_cmp_lt_u32 s4, 10\n  s_cbranch_scc1 F_cg")
    k(f"  s_mov_b32 s44, s52\n  s_mov_b32 s45, s53\n  s_mov_b32 s46, {640*1536*2}\n  s_sub_u32 s5, s4, 10\n  s_movk_i32 s6, 3072\n  s_mov_b32 s11, {WS_CS3}")
    k("F_cg:")
    k("  v_lshrrev_b32 v4, 3, v0\n  v_and_b32 v5, 7, v2")
    k("  v_mul_lo_u32 v6, s6, v4\n  s_lshl_b32 s14, s5, 7\n  v_lshl_add_u32 v6, v5, 4, v6\n  v_add_u32 v6, s14, v6")
    k("  s_lshl_b32 s15, s6, 6\n  s_mov_b32 s29, 0")
    for i in range(10): k(f"  buffer_load_dwordx4 v[{32+4*i}:{35+4*i}], v6, s[44:47], s29 offen\n  s_add_u32 s29, s29, s15")
    k("  s_mov_b32 s41, 0x00003f80\n  s_mov_b32 s42, 0x3f800000")
    for n in range(8): k(f"  v_mov_b32 v{16+n}, 0")
    for i in range(10):
        k(f"  s_waitcnt vmcnt({9-i})")
        for n in range(8): k(f"  v_dot2_f32_bf16 v{16+n}, v{32+4*i+(n>>1)}, s{42 if n & 1 else 41}, v{16+n}")
    for n in range(8):
        r = 16 + n
        k(f"  v_add_f32_dpp v{r}, v{r}, v{r} row_ror:8 row_mask:0xf bank_mask:0xf")
        k(f"  v_mov_b32 v24, v{r}\n  v_permlane16_swap_b32 v{r}, v24\n  v_add_f32 v{r}, v{r}, v24")
        k(f"  v_mov_b32 v24, v{r}\n  v_permlane32_swap_b32 v{r}, v24\n  v_add_f32 v{r}, v{r}, v24")
    k("  s_lshl_b32 s12, s3, 8\n  v_lshlrev_b32 v9, 5, v5\n  v_add_u32 v9, s12, v9")
    k("  ds_write_b128 v9, v[16:19]\n  ds_write_b128 v9, v[20:23] offset:16")
    k("  s_waitcnt lgkmcnt(0)\n  s_barrier")
    k("  s_cmp_lg_u32 s3, 3\n  s_cbranch_scc1 F_ax")
    k("  v_lshlrev_b32 v9, 2, v2")
    for w in range(8): k(f"  ds_read_b32 v{16+w}, v9 offset:{256*w}")
    k("  s_lshl_b32 s12, s5, 8\n  s_add_u32 s12, s12, s11")
    k("  s_waitcnt lgkmcnt(0)")
    for w in range(1, 8): k(f"  v_add_f32 v16, v16, v{16+w}")
    k("  buffer_store_dword v16, v9, s[36:39], s12 offen sc1\n  s_mov_b32 s71, 1")
    k("  s_branch F_ax")
    k("F_fl:")
    if W3A:
        k("  s_cmp_ge_u32 s72, 57\n  s_cbranch_scc1 F_fl2\n  s_sub_u32 s4, s72, 27\n  s_lshl_b32 s4, s4, 3\n  s_add_u32 s4, s4, s3")
        k(f"  s_mov_b32 s44, s52\n  s_mov_b32 s45, s53\n  s_mov_b32 s46, {640*1536*2}\n  s_mov_b32 s47, 0x00020000\n  s_mov_b32 s8, {WS_W3P}\n  s_movk_i32 s6, 3072\n  s_mov_b32 s12, 0\n  s_mov_b32 s9, 122880\n  s_movk_i32 s10, 1024\n  s_movk_i32 s7, 24576\n  s_movk_i32 s41, 6144\n  s_mov_b32 s42, 6\n  s_movk_i32 s43, 171")
        k("  s_mul_i32 s11, s4, 2731\n  s_lshr_b32 s11, s11, 16\n  s_mul_i32 s13, s11, 24\n  s_sub_u32 s5, s4, s13\n  s_branch F_go2")
        k("F_fl2:")
    k("  s_cmp_lt_u32 s72, 58\n  s_cbranch_scc1 F_ax\n  s_sub_u32 s5, s72, 58\n  s_lshl_b32 s5, s5, 14")
    k(f"  v_mov_b32 v16, 0\n  v_mov_b32 v17, 0\n  v_mov_b32 v18, 0\n  v_mov_b32 v19, 0\n  s_lshl_b32 s4, s3, 11\n  s_add_u32 s4, s4, s5\n  s_add_u32 s4, s4, {WS_FL1}")
    k("  buffer_store_dwordx4 v[16:19], v3, s[36:39], s4 offen sc1\n  buffer_store_dwordx4 v[16:19], v3, s[36:39], s4 offen offset:1024 sc1\n  s_branch F_aw")
    k("F_ax:")
    k.stamp(5)
    k("  s_cmp_lg_u32 s3, 0\n  s_cbranch_scc1 F_a2")
    gow_wait("F_pl6", int(os.environ.get("GWS", 8)), 10)
    k("F_a2:")
    k(f"  v_mov_b32 v248, {GG_FLG}\n  v_mov_b32 v244, 0\n  v_mov_b32 v245, 0\n  v_mov_b32 v246, 0\n  v_mov_b32 v247, 0\n  ds_write_b128 v248, v[244:247]\n  ds_write_b128 v248, v[244:247] offset:16")
    k("  s_waitcnt lgkmcnt(0)\n  s_barrier")
    k.stamp(6)
    if SLT:
        NKB = 8 if SLT == 1 else 16
        assert 96 * NKB * 1024 >= (SL_G if SLT == 1 else SL_G + 786432) and 96 * NKB * 1024 <= SLAB
        k(f"  s_lshr_b32 s12, s72, 3\n  s_lshl_b32 s12, s12, 3\n  s_add_u32 s12, s12, s3\n  s_mul_i32 s12, s12, {NKB*1024}\n  s_and_b32 s13, s2, 7\n  s_mul_i32 s13, s13, {SLAB}\n  s_add_u32 s12, s12, s13\n  s_mov_b32 s13, s12")
        k("  v_mov_b32 v16, 0\n  v_mov_b32 v17, 0\n  v_mov_b32 v18, 0\n  v_mov_b32 v19, 0\n  v_lshlrev_b32 v10, 7, v2")
        for i in range(NKB):
            k(f"  buffer_store_dwordx4 v[16:19], v3, s[36:39], s12 offen offset:{1024*(i&3)} sc1" + ("\n  s_add_u32 s12, s12, 4096" if i & 3 == 3 else ""))
        k("  s_waitcnt vmcnt(0)\n  s_barrier")
        for i in range(NKB // 8): k(f"  buffer_load_dword v11, v10, s[36:39], s13 offen\n  s_add_u32 s13, s13, 8192")
        k("  s_waitcnt vmcnt(0)")
    if PKA:
        k("  s_cmp_lt_u32 s72, 36\n  s_cbranch_scc1 F_np9")
        k(f"  s_sub_u32 s75, s72, 36\n  s_lshl_b32 s75, s75, 3\n  s_add_u32 s75, s75, s3\n  s_mov_b32 s46, {640*1536*2}\n  s_mov_b32 s47, 0x00020000\n  s_cmp_lt_u32 s75, 240\n  s_cbranch_scc0 F_c4")
        k(f"  s_mov_b32 s44, s52\n  s_mov_b32 s45, s53\n  s_mov_b32 s8, {WS_W3P}\n  s_movk_i32 s6, 3072\n  s_mov_b32 s12, 0\n  s_movk_i32 s13, 2731\n  s_mov_b32 s15, 24\n  s_mov_b32 s9, 122880\n  s_movk_i32 s10, 1024\n  s_movk_i32 s7, 24576\n  s_movk_i32 s41, 6144\n  s_mov_b32 s42, 6\n  s_movk_i32 s43, 171\n  s_branch F_cgo")
        k("F_c4:")
        k(f"  s_mov_b32 s44, s54\n  s_mov_b32 s45, s55\n  s_sub_u32 s75, s75, 240\n  s_mov_b32 s8, {WS_W4P}\n  s_movk_i32 s6, 1280\n  s_mov_b32 s12, 1\n  s_movk_i32 s13, 6554\n  s_mov_b32 s15, 10\n  s_mov_b32 s9, 245760\n  s_movk_i32 s10, 4096\n  s_movk_i32 s7, 20480\n  s_movk_i32 s41, 1024\n  s_mov_b32 s42, 5\n  s_movk_i32 s43, 205")
        k("F_cgo:")
        k(f"  s_mul_i32 s11, s75, s13\n  s_lshr_b32 s11, s11, 16\n  s_mul_i32 s13, s11, s15\n  s_sub_u32 s5, s75, s13\n  s_lshl_b32 s73, s3, 13")
        pack_load(k, 73, va=244, vb=245, vc=246, vd=247, so=66)
        k("  s_waitcnt vmcnt(0)")
        pack_store(k, PKF, vb=245, vc=246, vd=247, so=66, R=144)
        k("  s_waitcnt vmcnt(0)\n  s_barrier\n  s_cmp_eq_u32 s3, 3\n  s_cselect_b32 s71, 1, 0")
        k("F_np9:")
    if SLT: k("  s_cmp_lg_u32 s3, 3\n  s_cbranch_scc1 F_a3\n  s_waitcnt vmcnt(0)")
    else: k("  s_cmp_eq_u32 s71, 0\n  s_cbranch_scc1 F_a3\n  s_waitcnt vmcnt(0)")
    top()
    k("F_a3:")
    k("F_fin:")
    k.stamp_out(0, nw=8)
    tab = ktab_offsets()
    k.tail.append(".p2align 6\nF_tab:")
    for i in range(0, len(tab), 16):
        k.tail.append("  .short " + ", ".join(str(x) for x in tab[i:i+16]))
```

```python
from asmfw import K
from layout import *
from k_common import *
import os
LOG2E = "0x3fb8aa3b"
CST = 4160; UOFF = 4 * CST; DREG = UOFF + 4608
RB = 4 * DREG; WREG = 8704; TBL = RB + 8 * WREG; TBS = 32 * TCS + 16
PC_LDS = TBL + 4 * TBS
SPIN = 400000
PKA = int(os.environ.get('PKA', 0))
W3A = int(os.environ.get('W3A', 0))
SLT = int(os.environ.get('SLT', 0))
GG_FLG = 7 * 20480
PKF = os.environ.get('PKF', ' sc1')
PFL = os.environ.get('PFL', 'sc1')
TOUCH = {'12': ((WS_W1P, 50), (WS_W2P, 50)), '321': ((WS_W3P, 120), (WS_W2P, 50), (WS_W1P, 50)), '1': ((WS_W1P, 50),)}[os.environ.get('NTOUCH', '12')]
N_LN = 64; PK_FIRST = 440 if len(TOUCH) == 3 else 200

def cmul(k, d, x, w):
    k(f"  v_pk_mul_f32 v[{d}:{d+1}], v[{x}:{x+1}], v[{w}:{w+1}] op_sel:[0,0] op_sel_hi:[1,0]")
    k(f"  v_pk_fma_f32 v[{d}:{d+1}], v[{x}:{x+1}], v[{w}:{w+1}], v[{d}:{d+1}] op_sel:[1,1,0] op_sel_hi:[0,1,1] neg_lo:[1,0,0]")

def gen_pc(k):
    def poll_dbg(lbl, off, val, vt=250, slp=16):
        k(f"  v_mov_b32 v{vt}, {off}\n  s_mov_b32 s78, 0\n  s_mov_b64 exec, 1\n{lbl}:\n  global_load_dword v{vt+1}, v{vt}, s[34:35] {PFL}\n  s_waitcnt vmcnt(0)\n  v_readfirstlane_b32 s79, v{vt+1}\n  s_add_u32 s78, s78, 1")
        k(f"  s_cmp_ge_u32 s79, {val}\n  s_cbranch_scc1 {lbl}_ok\n  s_sleep {slp}\n  s_cmp_lt_u32 s78, {SPIN}\n  s_cbranch_scc1 {lbl}\n{lbl}_ok:\n  s_mov_b64 exec, -1")
    def add_dbg(off, val, vt=250):
        k(f"  v_mov_b32 v{vt}, {off}\n  v_mov_b32 v{vt+1}, {val}\n  s_mov_b64 exec, 1\n  global_atomic_add v{vt}, v{vt+1}, s[34:35] sc1\n  s_mov_b64 exec, -1")
    uid = [0]
    def arrive(base, off, total, last, vt=250):
        uid[0] += 1; u = uid[0]
        k(f"  v_mov_b32 v{vt}, {off}\n  v_mov_b32 v{vt+1}, 1\n  s_mov_b64 exec, 1\n  global_atomic_add v{vt+2}, v{vt}, v{vt+1}, s[{base}:{base+1}] sc0 sc1\n  s_waitcnt vmcnt(0)\n  v_readfirstlane_b32 s79, v{vt+2}\n  s_mov_b64 exec, -1")
        k(f"  s_cmp_lg_u32 s79, {total-1}\n  s_cbranch_scc1 F_ar{u}")
        last()
        k(f"F_ar{u}:")
    def set_dbg(off, vt=250):
        k(f"  v_mov_b32 v{vt}, {off}\n  v_mov_b32 v{vt+1}, 1\n  s_mov_b64 exec, 1\n  global_store_dword v{vt}, v{vt+1}, s[34:35] sc1\n  s_mov_b64 exec, -1")
    def set_goh(word):
        k(f"  v_lshlrev_b32 v250, 7, v2\n  v_mov_b32 v251, 1\n  s_lshl_b32 s79, {word}, 2\n  s_add_u32 s79, s79, {WS_GOH}\n  buffer_store_dword v251, v250, s[36:39], s79 offen sc1")
    top = lambda: arrive(32, WS_SHARD + 1024, 96 if SLT else (27 + 60 if PKA else 34), lambda: set_goh(8))
    k("  s_cmp_ge_u32 s2, 256\n  s_cbranch_scc1 GG_done")
    k.stamp(0); k.stamp(7, True)
    k("  s_load_dwordx16 s[16:31], s[0:1], 0")
    k(f"  s_load_dwordx4 s[32:35], s[0:1], {KA_DBG}")
    k(f"  s_load_dwordx8 s[48:55], s[0:1], {KA_W1}\n  s_load_dwordx2 s[56:57], s[0:1], {KA_DSK}")
    k("  v_lshrrev_b32 v1, 6, v0\n  v_and_b32 v2, 63, v0\n  v_readfirstlane_b32 s3, v1\n  v_lshlrev_b32 v3, 4, v2")
    k(f"  s_mov_b32 s40, 0xffff0000\n  s_and_b32 s79, s2, 63\n  s_lshl_b32 s79, s79, 7\n  s_add_u32 s79, s79, {WS_GOW}\n  v_mov_b32 v254, s79")
    def after_kernarg():
        k("  s_waitcnt lgkmcnt(0)")
        k("  s_mov_b64 s[36:37], s[34:35]\n  s_mov_b64 s[34:35], s[32:33]\n  s_mov_b64 s[32:33], s[36:37]")
        k(f"  s_mov_b32 s38, {WS_SPAN}\n  s_mov_b32 s39, 0x00020000")
    def gow_entry():
        k(f"  s_mov_b64 exec, 1\n  buffer_load_dword v255, v254, s[36:39], 0 offen sc1\n  s_mov_b64 exec, -1")
    def gow_set():
        k(f"  v_lshlrev_b32 v250, 7, v2\n  s_mov_b32 s79, {WS_GOW}\n  buffer_load_dword v251, v250, s[36:39], s79 offen sc1\n  s_waitcnt vmcnt(0)\n  v_add_u32 v251, 1, v251\n  buffer_store_dword v251, v250, s[36:39], s79 offen sc1")
        set_dbg(DBG_GOW)
    def gow_wait(lbl, slp, first):
        k(f"  s_waitcnt vmcnt(0)\n  v_readfirstlane_b32 s77, v255\n  v_mov_b32 v250, {DBG_GOW}\n  s_mov_b32 s78, 0\n  s_mov_b64 exec, 1\n{lbl}:\n  buffer_load_dword v251, v254, s[36:39], 0 offen sc1\n  s_waitcnt vmcnt(0)\n  v_readfirstlane_b32 s79, v251\n  s_add_u32 s78, s78, 1")
        k(f"  s_cmp_lg_u32 s79, s77\n  s_cbranch_scc1 {lbl}_ok\n  s_sleep {slp}\n  s_and_b32 s79, s78, 15\n  s_cmp_lg_u32 s79, {first}\n  s_cbranch_scc1 {lbl}")
        k(f"  global_load_dword v251, v250, s[34:35] sc1\n  s_waitcnt vmcnt(0)\n  v_readfirstlane_b32 s79, v251\n  s_cmp_lg_u32 s79, 0\n  s_cbranch_scc1 {lbl}_ok\n  s_cmp_lt_u32 s78, {SPIN}\n  s_cbranch_scc1 {lbl}\n{lbl}_ok:\n  s_mov_b64 exec, -1")
    k("  s_cmp_ge_u32 s2, 160\n  s_cbranch_scc1 F_aux")
    k("  s_and_b32 s4, s2, 7\n  s_mul_i32 s4, s4, 20\n  s_lshr_b32 s5, s2, 3\n  s_add_u32 s4, s4, s5\n  s_lshl_b32 s4, s4, 2")
    k("  s_and_b32 s58, s3, 3\n  s_lshr_b32 s59, s3, 2\n  s_add_u32 s5, s4, s58")
    k(f"  s_mul_i32 s6, s58, {DREG}\n  s_mul_i32 s11, s3, {WREG}\n  s_add_u32 s11, s11, {RB}")
    k(f"  s_and_b32 s60, s2, 7\n  s_mul_i32 s61, s60, {SLAB}")
    k(f"  s_mul_i32 s10, s58, {TBS}\n  s_add_u32 s65, s10, {TBL}\n  v_mov_b32 v134, s65\n  v_mov_b32 v96, 0\n  v_mov_b32 v97, 0\n  ds_write_b64 v134, v[96:97] offset:{32*TCS}")
    k("  s_getpc_b64 s[8:9]\nF_pc:\n  s_add_u32 s8, s8, F_tab-F_pc\n  s_addc_u32 s9, s9, 0")
    k("  s_cmp_lg_u32 s59, 0\n  s_cbranch_scc1 F_nt")
    for it in range(4):
        k(f"  global_load_dwordx4 v[{176+6*it}:{179+6*it}], v3, s[8:9] offset:{1024*it}\n  global_load_dwordx2 v[{180+6*it}:{181+6*it}], v3, s[8:9] offset:{1024*it+16}")
    k("F_nt:")
    k("  s_mul_i32 s7, s5, 384\n  s_lshl_b32 s10, s59, 8\n  s_add_u32 s7, s7, s10\n  v_lshl_add_u32 v5, v2, 1, s7")
    k("  v_add_u32 v6, s11, v3")
    k("  v_bfe_u32 v7, v2, 4, 1\n  v_lshlrev_b32 v7, 1, v7\n  v_bfe_u32 v8, v2, 1, 1\n  v_add_u32 v7, v7, v8\n  v_mul_u32_u24 v7, 1088, v7\n  v_lshrrev_b32 v8, 5, v2\n  v_lshl_add_u32 v7, v8, 7, v7")
    k("  v_bfe_u32 v9, v2, 2, 2\n  v_lshl_add_u32 v7, v9, 4, v7\n  v_and_b32 v9, 1, v2\n  v_lshl_add_u32 v7, v9, 3, v7\n  v_add_u32 v7, s11, v7")
    k(f"  v_and_b32 v130, 31, v2\n  v_mul_u32_u24 v130, {TCS}, v130\n  v_lshl_add_u32 v130, v8, 3, v130\n  v_add_u32 v130, s65, v130")
    k(f"  s_add_u32 s10, s58, 4\n  s_mul_i32 s10, s10, {WREG}\n  s_add_u32 s10, s10, {RB}\n  v_add_u32 v131, s10, v3")
    k("  s_lshr_b32 s12, s5, 1\n  s_lshl_b32 s12, s12, 2\n  s_and_b32 s13, s5, 1\n  s_lshl_b32 s13, s13, 4")
    k("  v_and_b32 v4, 255, v0\n  v_lshlrev_b32 v4, 4, v4\n  s_lshl_b32 s10, s4, 1\n  v_mul_u32_u24 v133, 160, v4\n  v_add_u32 v133, s10, v133")
    after_kernarg()
    k("  s_barrier")
    k.stamp(1)
    for i, sb in enumerate((18, 20, 22, 24, 26, 28)): k(f"  global_load_ushort v{112+i}, v5, s[{sb}:{sb+1}]")
    k("  s_load_dword s14, s[30:31], s12\n  s_load_dwordx2 s[62:63], s[56:57], s10")
    k("  s_cmp_lg_u32 s59, 0\n  s_cbranch_scc1 F_hg")
    for i, sb in enumerate((18, 20, 22, 24, 26, 28)): k(f"  global_load_ushort v{118+i}, v5, s[{sb}:{sb+1}] offset:128")
    gow_entry()
    DRY = int(os.environ.get("DRY", 0))
    if DRY:
        for i in range(10, 16): k(f"  v_mov_b32 v{i}, 0")
        k("  v_mov_b32 v132, 0\n  s_movk_i32 s15, 100\n  s_branch F_unit2\nF_dry:")
    k("  s_waitcnt vmcnt(13)")
    for it in range(4):
        for i in range(11):
            src = 176 + 6*it + (i >> 1)
            k(f"  v_lshrrev_b32 v{200+11*it+i}, 16, v{src}" if i & 1 else f"  v_and_b32 v{200+11*it+i}, 0xffff, v{src}")
            k(f"  v_add_u32 v{200+11*it+i}, s65, v{200+11*it+i}")
    k("  s_waitcnt vmcnt(0)\n  s_branch F_hj")
    k("F_hg:")
    GE = int(os.environ.get("GE", 3))
    for i in range(1, 4): k(f"  v_add_u32 v{207+i}, {512*1280*i}, v133")
    gl = [f"  global_load_dwordx2 v[{176+4*i+2*r}:{177+4*i+2*r}], v{207+i if i else 133}, s[16:17] offset:{1280*r}" for i in range(4) for r in range(2)]
    for g in gl[:GE]: k(g)
    k(f"  s_waitcnt vmcnt({GE})")
    gq = gl[GE:]; gid = [0]
    def gpoint():
        if gq:
            gid[0] += 1
            k(f"  s_cmp_eq_u32 s59, 0\n  s_cbranch_scc1 F_gp{gid[0]}\n{gq.pop(0)}\nF_gp{gid[0]}:")
    k("F_hj:")
    for i in range(16): k(f"  v_mov_b32 v{96+i}, 0")
    k("  s_waitcnt lgkmcnt(0)")
    k("  s_lshr_b32 s14, s14, s13\n  s_lshl_b32 s14, s14, 16")
    k(f"  v_mov_b32 v9, {LOG2E}\n  v_mul_f32 v9, s14, v9\n  v_exp_f32 v9, v9\n  v_cvt_pk_bf16_f32 v9, v9, v9\n  v_lshlrev_b32 v132, 16, v9")
    k("  s_mov_b32 s15, s59")
    k.stamp(2)
    k("F_unit:")
    for i in range(6): k(f"  v_lshlrev_b32 v{10+i}, 16, v{112+i}")
    for i in range(6): k(f"  v_mov_b32 v{112+i}, v{118+i}")
    k("F_unit2:")
    k("  v_mul_f32 v10, v132, v10\n  v_mul_f32 v11, v132, v11\n  v_mul_f32 v12, v132, v12\n  v_mul_f32 v13, v132, v13")
    k(f"  v_mul_f32 v10, {LOG2E}, v10\n  v_mul_f32 v11, 0.15915494, v11")
    for dst, e in ((16, None), (18, "0x41000000"), (20, "0x43800000")):
        if e is None: k(f"  v_exp_f32 v22, v10\n  v_fract_f32 v23, v11")
        else: k(f"  v_mul_f32 v22, {e}, v10\n  v_mul_f32 v23, {e}, v11\n  v_exp_f32 v22, v22\n  v_fract_f32 v23, v23")
        k(f"  v_cos_f32 v{dst}, v23\n  v_sin_f32 v{dst+1}, v23")
        k(f"  v_mul_f32 v{dst}, v22, v{dst}\n  v_mul_f32 v{dst+1}, v22, v{dst+1}")
    class Packer:
        def __init__(self, neg): self.n = 0; self.prev = None; self.neg = "-" if neg else ""
        def put(self, reg, last=False):
            e = self.n; self.n += 1
            if e & 1 or last:
                a = self.prev if e & 1 else reg
                j = (e >> 1) & 3
                k(f"  v_cvt_pk_bf16_f32 v{88+j}, v{a}, v{reg}\n  v_cvt_pk_bf16_f32 v{92+j}, {self.neg}v{a+1}, {self.neg}v{reg+1}")
                if j == 3 or last:
                    k(f"  ds_write_b128 v6, v[88:91] offset:{1088*(e>>3)}\n  ds_write_b128 v6, v[92:95] offset:{4352+1088*(e>>3)}")
            self.prev = reg
    def tr_reads(R):
        for s_ in range(8):
            for hf in range(2):
                k(f"  ds_read_b64_tr_b16 v[{R+4*s_+2*hf}:{R+4*s_+2*hf+1}], v7 offset:{4352*(s_>>2) + (16*(s_&3) + 4*hf)*16}")
    gpoint()
    pk = Packer(True)
    cmul(k, 24, 14, 12); pk.put(24)
    for r in range(1, 8):
        cmul(k, 24 + 2*r, 24 + 2*(r-1), 16); pk.put(24 + 2*r)
    for i, r in enumerate((0, 2, 4, 6)):
        cmul(k, 40 + 2*i, 24 + 2*r, 20); pk.put(40 + 2*i)
    gpoint()
    cmul(k, 48, 40, 20); pk.put(48)
    cmul(k, 50, 44, 20); pk.put(50)
    cmul(k, 52, 48, 20); pk.put(52)
    cmul(k, 54, 50, 20); pk.put(54)
    prev = 52
    for i in range(5):
        dst = 24 + 2*i
        cmul(k, dst, prev, 20); pk.put(dst, last=(i == 4)); prev = dst
    tr_reads(136)
    pk = Packer(False)
    k("  v_mov_b32 v22, 1.0\n  v_mov_b32 v23, 0")
    pk.put(22); pk.put(18)
    prev = 18
    for j in range(2, 32):
        dst = 24 + 2*(j & 1)
        cmul(k, dst, prev, 18); pk.put(dst); prev = dst
        if j in (4, 14, 22, 28): gpoint()
    tr_reads(56)
    for s_ in range(8):
        k(f"  s_waitcnt lgkmcnt({14-2*s_})")
        k(f"  v_mfma_f32_32x32x16_bf16 v[96:111], v[{136+4*s_}:{139+4*s_}], v[{56+4*s_}:{59+4*s_}], v[96:111]")
    k("  s_add_u32 s15, s15, 1\n  s_cmp_lt_u32 s15, 2\n  s_cbranch_scc1 F_unit")
    if DRY: k("  s_cmp_gt_u32 s15, 50\n  s_cbranch_scc1 F_dry")
    k("  s_cmp_lg_u32 s59, 0\n  s_cbranch_scc1 F_help")
    k("  s_mov_b32 s78, 0")
    k(f"F_pw:\n  ds_read_b32 v9, v134 offset:{32*TCS+4}\n  s_add_u32 s78, s78, 1\n  s_waitcnt lgkmcnt(0)\n  v_readfirstlane_b32 s79, v9\n  s_cmp_lg_u32 s79, 0\n  s_cbranch_scc1 F_po\n  s_cmp_lt_u32 s78, {1<<23}\n  s_cbranch_scc1 F_pw\nF_po:")
    for g in range(3): k(f"  ds_read_b128 v[{16+4*g}:{19+4*g}], v131 offset:{1024*g}")
    k("  s_waitcnt lgkmcnt(0)")
    for g in range(6): k(f"  v_pk_add_f32 v[{96+2*g}:{97+2*g}], v[{96+2*g}:{97+2*g}], v[{16+2*g}:{17+2*g}]")
    for g in range(3):
        k(f"  v_cvt_pk_bf16_f32 v{10+2*g}, v{96+4*g}, v{97+4*g}\n  v_cvt_pk_bf16_f32 v{11+2*g}, v{98+4*g}, v{99+4*g}\n  ds_write_b64 v130, v[{10+2*g}:{11+2*g}] offset:{16*g}")
    k("  v_add_u32 v52, s6, v3")
    k(f"  v_bfe_u32 v16, v2, 1, 2\n  v_mul_u32_u24 v16, {CST}, v16\n  v_and_b32 v17, 1, v2\n  v_lshl_add_u32 v16, v17, 4, v16\n  v_add_u32 v16, s6, v16")
    k("  v_mov_b32 v20, 0\n  v_mov_b32 v21, 0\n  v_mov_b32 v22, 0\n  v_mov_b32 v23, 0\n  ds_write_b128 v16, v[20:23] offset:4096")
    k.stamp(3)
    k("  s_waitcnt lgkmcnt(0)")
    def ex_reads(it):
        for i in range(11): k(f"  ds_read_u16 v{56+12*(it&1)+i}, v{200+11*it+i}")
    ex_reads(0)
    for it in range(4):
        if it < 3: ex_reads(it + 1)
        k(f"  s_waitcnt lgkmcnt({11 if it < 3 else 0})")
        V = 56 + 12*(it & 1)
        for sg, st in ((3, 0), (2, 1), (1, 2), (0, 3)):
            O = 80 + 4*sg
            for j in range(4): k(f"  v_lshl_or_b32 v{O+j}, v{V+st+2*j+1}, 16, v{V+st+2*j}")
            k(f"  ds_write_b128 v52, v[{O}:{O+3}] offset:{1024*it + sg*CST}")
    k.stamp(4)
    k("  v_and_b32 v6, 15, v2\n  v_lshrrev_b32 v7, 4, v2")
    k(f"  v_and_b32 v8, 3, v6\n  v_mul_u32_u24 v8, {CST}, v8\n  v_lshrrev_b32 v9, 2, v6\n  v_lshlrev_b32 v9, 3, v9\n  v_sub_u32 v8, v8, v9\n  v_lshl_add_u32 v8, v7, 4, v8\n  v_add_u32 v8, {24+384}, v8\n  v_add_u32 v12, s6, v8")
    k(f"  v_lshlrev_b32 v8, 5, v6\n  v_lshl_add_u32 v8, v7, 4, v8\n  v_add_u32 v8, {UOFF+32+384}, v8\n  v_add_u32 v13, s6, v8")
    k(f"  s_lshl_b32 s10, s58, 12\n  s_add_u32 s10, s10, {RB}\n  v_lshlrev_b32 v8, 5, v6\n  v_lshl_add_u32 v8, v7, 3, v8\n  v_add_u32 v14, s10, v8")
    for i in range(32): k(f"  v_mov_b32 v{16+i}, 0")
    k("  s_waitcnt lgkmcnt(0)\n  s_barrier")
    k.stamp(5)
    SETS = ((48, 80), (112, 144))
    def reads(st, extra):
        A, B = SETS[st]; out = []
        for n in range(8):
            off = 512 * (7 - n) + 64 - extra
            out.append(f"  ds_read_b64 v[{A+4*n}:{A+4*n+1}], v12 offset:{off}")
            out.append(f"  ds_read_b64 v[{A+4*n+2}:{A+4*n+3}], v12 offset:{off+8}")
            out.append(f"  ds_read_b128 v[{B+4*n}:{B+4*n+3}], v13 offset:{512*n + 64 - extra}")
        return out
    def mfmas(st):
        A, B = SETS[st]; out = []
        for J in range(8):
            for n in range(J + 1):
                m = J - n
                out.append(f"  v_mfma_f32_16x16x32_bf16 v[{16+4*J}:{19+4*J}], v[{A+4*n}:{A+4*n+3}], v[{B+4*m}:{B+4*m+3}], v[{16+4*J}:{19+4*J}]")
        return out
    def inter(mf, rd):
        out = []
        for i, m in enumerate(mf):
            out.append(m)
            if i < len(rd): out.append(rd[i])
        return out
    k("  s_setprio 3")
    for l in reads(0, 0): k(l)
    k("  s_mov_b32 s15, 0")
    k("F_loop:")
    k("  s_waitcnt lgkmcnt(0)")
    for l in inter(mfmas(0), reads(1, 64)): k(l)
    k("  v_subrev_u32 v12, 128, v12\n  v_subrev_u32 v13, 128, v13")
    k("  s_waitcnt lgkmcnt(0)")
    k("  s_cmp_eq_u32 s15, 3\n  s_cbranch_scc1 F_last")
    for l in inter(mfmas(1), reads(0, 0)): k(l)
    k("  s_add_u32 s15, s15, 1\n  s_branch F_loop")
    k("F_last:")
    A, B = SETS[1]; pend = []; cnt = 0
    for J in range(7, -1, -1):
        for n in range(J + 1):
            k(f"  v_mfma_f32_16x16x32_bf16 v[{16+4*J}:{19+4*J}], v[{A+4*n}:{A+4*n+3}], v[{B+4*(J-n)}:{B+4*(J-n)+3}], v[{16+4*J}:{19+4*J}]")
            cnt += 1
            if pend and pend[0][0] <= cnt: k(pend.pop(0)[1])
        pend += [(cnt + 6, f"  v_cvt_pk_bf16_f32 v{48+2*J}, v{16+4*J}, v{17+4*J}\n  v_cvt_pk_bf16_f32 v{49+2*J}, v{18+4*J}, v{19+4*J}"),
                 (cnt + 7, f"  ds_write_b64 v14, v[{48+2*J}:{49+2*J}] offset:{512*J}")]
    for _, t in pend: k(t)
    k.stamp(6)
    k("  s_waitcnt lgkmcnt(0)\n  s_barrier\n  s_setprio 0")
    k("  s_cmp_lg_u32 s3, 0\n  s_cbranch_scc1 F_b5")
    gow_wait("F_pl5", 2, 1)
    k("F_b5:")
    k("  s_barrier")
    k("  s_cmp_lg_u32 s3, 0\n  s_cbranch_scc1 F_fin")
    k(f"  s_lshl_b32 s10, s60, 7\n  s_add_u32 s10, s10, {WS_SHARD}")
    arrive(32, "s10", 20, lambda: set_goh("s60"))
    k("  s_branch F_fin")
    k("F_help:")
    k("  v_mov_b32 v252, 0\n  s_mov_b64 exec, 1\n  global_load_dword v253, v252, s[34:35] sc1\n  s_mov_b64 exec, -1")
    k(f"  v_and_b32 v9, 0x1f0, v3\n  v_add_u32 v9, s6, v9")
    k(f"  v_mov_b32 v12, 0\n  v_mov_b32 v13, 0\n  v_mov_b32 v14, 0\n  v_mov_b32 v15, 0\n  ds_write_b128 v9, v[12:15] offset:{UOFF}\n  s_nop 7")
    for g in range(3): k(f"  ds_write_b128 v131, v[{96+4*g}:{99+4*g}] offset:{1024*g}")
    k(f"  v_mov_b32 v9, 1\n  s_waitcnt lgkmcnt(0)\n  ds_write_b32 v134, v9 offset:{32*TCS+4}")
    k(f"  s_waitcnt vmcnt(0)\n  v_readfirstlane_b32 s79, v253\n  s_cmp_ge_u32 s79, {N_LN}\n  s_cbranch_scc1 F_st")
    poll_dbg("F_pl1", 0, N_LN)
    k("F_st:")
    k.stamp(1)
    k(f"  s_mov_b32 s10, {WS_ST0}")
    for i in range(4): k(f"  buffer_load_dwordx4 v[{192+4*i}:{195+4*i}], v4, s[36:39], s10 offen sc1\n  s_add_u32 s10, s10, 4096")
    for i in range(16): k(f"  v_lshlrev_b32 v{64+2*i}, 16, v{176+i}\n  v_and_b32 v{65+2*i}, s40, v{176+i}")
    k(f"  v_lshrrev_b32 v5, 2, v4\n  v_add_u32 v6, {UOFF+512}, v5\n  v_add_u32 v7, {2*DREG}, v6\n  v_add_u32 v5, {RB}, v5\n  v_lshlrev_b32 v8, 1, v4")
    k("  s_lshl_b32 s66, s62, 16\n  s_and_b32 s67, s62, s40\n  s_lshl_b32 s68, s63, 16\n  s_and_b32 s69, s63, s40\n  s_mov_b32 s41, 0x07060302")
    k("  s_waitcnt vmcnt(0)")
    k.stamp(2)
    for i in range(4):
        for r in range(2):
            o = 96 + 8*i + 4*r; x = 64 + 8*i + 4*r; st = 192 + 4*i + 2*r
            for h in range(2):
                a = o + 2*h
                k(f"  v_pk_add_f32 v[{a}:{a+1}], v[{x+2*h}:{x+2*h+1}], v[{st}:{st+1}] op_sel_hi:[1,0] neg_lo:[0,1] neg_hi:[0,1]\n  v_cvt_pk_bf16_f32 v9, v{a}, v{a+1}\n  v_lshlrev_b32 v{a}, 16, v9\n  v_and_b32 v{a+1}, s40, v9")
                k(f"  v_pk_mul_f32 v[{a}:{a+1}], v[{a}:{a+1}], v[{st}:{st+1}] op_sel:[0,1] op_sel_hi:[1,1]")
        for w in range(4):
            k(f"  v_cvt_pk_bf16_f32 v{48+4*i+w}, v{96+8*i+w}, v{100+8*i+w}\n  ds_write_b32 v{6 + (w >> 1)}, v{48+4*i+w} offset:{(w & 1)*DREG + 1024*i}")
    k.stamp(3)
    UDL = int(os.environ.get("UDL", 1))
    if UDL: k("  s_waitcnt lgkmcnt(0)\n  s_barrier"); k.stamp(5)
    for i in range(4):
        for r in range(2):
            o = 96 + 8*i + 4*r
            for w in range(4): k(f"  v_and_b32 v{o+w}, s40, v{48+4*i+w}" if r else f"  v_lshlrev_b32 v{o+w}, 16, v{48+4*i+w}")
            for h in range(2):
                k(f"  v_mul_f32 v{o+2*h}, s{66+2*h}, v{o+2*h}\n  v_mul_f32 v{o+2*h+1}, s{67+2*h}, v{o+2*h+1}\n  v_cvt_pk_bf16_f32 v9, v{o+2*h}, v{o+2*h+1}\n  v_lshlrev_b32 v{o+2*h}, 16, v9\n  v_and_b32 v{o+2*h+1}, s40, v9")
    if not UDL: k("  s_waitcnt lgkmcnt(0)\n  s_barrier"); k.stamp(5)
    k(f"  s_lshr_b32 s64, s4, 2\n  s_mul_i32 s64, s64, {QS}\n  s_add_u32 s64, s64, {WS_HQ}")
    if not PKA:
        k(f"  s_cmp_ge_u32 s2, {60 if W3A else 120}\n  s_cbranch_scc1 F_np")
        k(f"  s_lshl_b32 s75, s2, 2\n  s_add_u32 s75, s75, s58\n  s_add_u32 s75, s75, {240 if W3A else 0}\n  s_mov_b32 s46, {640*1536*2}\n  s_mov_b32 s47, 0x00020000\n  s_cmp_lt_u32 s75, 240\n  s_cbranch_scc0 F_c4")
        k(f"  s_mov_b32 s44, s52\n  s_mov_b32 s45, s53\n  s_mov_b32 s8, {WS_W3P}\n  s_movk_i32 s6, 3072\n  s_mov_b32 s12, 0\n  s_movk_i32 s13, 2731\n  s_mov_b32 s15, 24\n  s_mov_b32 s9, 122880\n  s_movk_i32 s10, 1024\n  s_movk_i32 s7, 24576\n  s_movk_i32 s41, 6144\n  s_mov_b32 s42, 6\n  s_movk_i32 s43, 171\n  s_branch F_cgo")
        k("F_c4:")
        k(f"  s_mov_b32 s44, s54\n  s_mov_b32 s45, s55\n  s_sub_u32 s75, s75, 240\n  s_mov_b32 s8, {WS_W4P}\n  s_movk_i32 s6, 1280\n  s_mov_b32 s12, 1\n  s_movk_i32 s13, 6554\n  s_mov_b32 s15, 10\n  s_mov_b32 s9, 245760\n  s_movk_i32 s10, 4096\n  s_movk_i32 s7, 20480\n  s_movk_i32 s41, 1024\n  s_mov_b32 s42, 5\n  s_movk_i32 s43, 205")
        k("F_cgo:")
        k(f"  s_mul_i32 s11, s75, s13\n  s_lshr_b32 s11, s11, 16\n  s_mul_i32 s13, s11, s15\n  s_sub_u32 s5, s75, s13\n  s_lshl_b32 s72, s58, 13\n  s_add_u32 s72, s72, {RB + 16384}")
        pack_load(k, 72, va=244, vb=245, vc=246, vd=247, so=66)
        k("  s_waitcnt vmcnt(0)")
        pack_store(k, PKF, vb=245, vc=246, vd=247, so=66, R=144)
    k("F_np:")
    k("  s_barrier")
    k.stamp(6)
    for i in range(4):
        for w in range(4): k(f"  ds_read_b32 v{48+4*i+w}, v5 offset:{4096*w + 1024*i}")
    for i in range(4):
        k(f"  s_waitcnt lgkmcnt({12-4*i})")
        for r in range(2):
            o = 128 + 4*r; u = 96 + 8*i + 4*r; x = 64 + 8*i + 4*r; d = 136 + 4*i + 2*r
            for w in range(4): k(f"  v_and_b32 v{o+w}, s40, v{48+4*i+w}" if r else f"  v_lshlrev_b32 v{o+w}, 16, v{48+4*i+w}")
            for h in range(2):
                a = o + 2*h
                k(f"  v_pk_add_f32 v[{a}:{a+1}], v[{a}:{a+1}], v[{u+2*h}:{u+2*h+1}]\n  v_cvt_pk_bf16_f32 v9, v{a}, v{a+1}\n  v_lshlrev_b32 v{a}, 16, v9\n  v_and_b32 v{a+1}, s40, v9")
                k(f"  v_pk_add_f32 v[{a}:{a+1}], v[{a}:{a+1}], v[{x+2*h}:{x+2*h+1}]\n  v_cvt_pk_bf16_f32 v{d+h}, v{a}, v{a+1}")
        k(f"  buffer_store_dwordx4 v[{136+4*i}:{139+4*i}], v4, s[36:39], s64 offen sc1\n  s_add_u32 s64, s64, 4096")
    k.stamp(4)
    k(f"  v_mov_b32 v248, {GG_FLG}\n  v_mov_b32 v244, 0\n  v_mov_b32 v245, 0\n  v_mov_b32 v246, 0\n  v_mov_b32 v247, 0\n  ds_write_b128 v248, v[244:247]\n  ds_write_b128 v248, v[244:247] offset:16")
    k("  s_waitcnt vmcnt(0) lgkmcnt(0)\n  s_barrier")
    k("  s_branch F_fin")
    k("F_aux:")
    k("  s_mov_b32 s71, 0")
    if int(os.environ.get("CW", 1)):
        k("  s_cmp_lt_u32 s2, 248\n  s_cbranch_scc1 F_ncw")
        k("  s_getpc_b64 s[8:9]\nF_pc2:\n  s_sub_u32 s8, s8, F_pc2-mk_kernel\n  s_subb_u32 s9, s9, 0")
        k("  v_lshlrev_b32 v10, 7, v0\n  s_mov_b32 s10, F_tab-mk_kernel\n  v_min_u32 v10, s10, v10\n  global_load_dword v11, v10, s[8:9]")
        k("F_ncw:")
    k("  s_sub_u32 s72, s2, 160")
    k(f"  s_cmp_ge_u32 s72, {N_LN}\n  s_cbranch_scc1 F_pk0")
    US = 1344
    k("  s_and_b32 s5, s72, 7\n  s_lshl_b32 s5, s5, 3\n  s_lshr_b32 s4, s72, 3\n  s_add_u32 s4, s4, s5")
    k("  v_lshrrev_b32 v4, 4, v0\n  v_and_b32 v5, 15, v0")
    k("  v_mul_u32_u24 v6, 1280, v4\n  v_lshl_add_u32 v6, v5, 4, v6\n  s_mul_i32 s5, s4, 40960\n  v_add_u32 v6, s5, v6")
    after_kernarg()
    k.stamp(1)
    for i in range(5): k(f"  global_load_dwordx4 v[{12+4*i}:{15+4*i}], v6, s[16:17] offset:{256*i}")
    gow_entry()
    k(f"  s_lshl_b32 s5, s4, 8\n  s_add_u32 s5, s5, {WS_ST0}\n  v_lshlrev_b32 v7, 3, v4\n  v_lshlrev_b32 v8, 3, v2")
    for i in range(5):
        k(f"  s_waitcnt vmcnt({5-i})")
        for h in range(4):
            r = 12 + 4*i + h; o = 32 + 8*i + 2*h
            k(f"  v_lshlrev_b32 v{o}, 16, v{r}\n  v_and_b32 v{o+1}, s40, v{r}")
    k.stamp(2)
    def reduce16(r):
        for sh in (8, 4, 2, 1): k(f"  v_add_f32_dpp v{r}, v{r}, v{r} row_ror:{sh} row_mask:0xf bank_mask:0xf")
    k("  v_pk_add_f32 v[72:73], v[32:33], v[34:35]")
    for i in range(2, 20): k(f"  v_pk_add_f32 v[72:73], v[72:73], v[{32+2*i}:{33+2*i}]")
    k("  v_add_f32 v72, v72, v73")
    reduce16(72)
    k("  v_mul_f32 v72, 0x3acccccd, v72\n  v_mov_b32 v73, v72\n  v_mov_b32 v74, 0\n  v_mov_b32 v75, 0")
    for i in range(20):
        k(f"  v_pk_add_f32 v[76:77], v[{32+2*i}:{33+2*i}], v[72:73] neg_lo:[0,1] neg_hi:[0,1]\n  v_pk_fma_f32 v[74:75], v[76:77], v[76:77], v[74:75]")
    k("  v_add_f32 v74, v74, v75")
    reduce16(74)
    k("  v_mul_f32 v74, 0x3acccccd, v74")
    k("  v_cvt_pk_bf16_f32 v76, v72, v74\n  v_lshlrev_b32 v72, 16, v76\n  v_and_b32 v74, s40, v76\n  v_mov_b32 v73, v72")
    k("  v_add_f32 v74, 0x3727c5ac, v74\n  v_cvt_pk_bf16_f32 v74, v74, v74\n  v_lshlrev_b32 v74, 16, v74")
    k("  v_sqrt_f32 v74, v74\n  v_cvt_pk_bf16_f32 v74, v74, v74\n  v_lshlrev_b32 v74, 16, v74\n  v_rcp_f32 v73, v74")
    k("  ds_write_b64 v7, v[72:73]")
    k.stamp(3)
    k("  s_waitcnt lgkmcnt(0)\n  s_barrier")
    k("  s_cmp_lg_u32 s3, 0\n  s_cbranch_scc1 F_ln2")
    k("  s_mov_b32 exec_hi, 0\n  ds_read_b64 v[72:73], v8\n  s_waitcnt lgkmcnt(0)\n  buffer_store_dwordx2 v[72:73], v8, s[36:39], s5 offen sc1\n  s_mov_b64 exec, -1")
    k("F_ln2:")
    k("  s_waitcnt vmcnt(0)\n  s_barrier\n  s_cmp_lg_u32 s3, 0\n  s_cbranch_scc1 F_ln3")
    add_dbg(0, 1)
    k.stamp(4)
    k("F_ln3:")
    k("  s_add_u32 s75, s72, 7\n  s_branch F_cs")
    k("F_pk0:")
    after_kernarg()
    gow_entry()
    k(f"  s_sub_u32 s73, s72, {N_LN}\n  s_sub_u32 s75, s73, 25\n  s_cmp_ge_u32 s73, 25\n  s_cbranch_scc1 F_cs")
    k("  s_lshl_b32 s4, s73, 3\n  s_add_u32 s4, s4, s3")
    k(f"  s_mov_b32 s44, s48\n  s_mov_b32 s45, s49\n  s_mov_b32 s46, {640*640*2}\n  s_mov_b32 s47, 0x00020000\n  s_mov_b32 s8, {WS_W1P}")
    k("  s_movk_i32 s6, 1280\n  s_mov_b32 s12, 1\n  s_mov_b32 s9, 102400\n  s_movk_i32 s10, 1024\n  s_movk_i32 s7, 20480\n  s_movk_i32 s41, 5120\n  s_mov_b32 s42, 5\n  s_movk_i32 s43, 205")
    k("  s_cmp_lt_u32 s4, 100\n  s_cbranch_scc1 F_go")
    k(f"  s_mov_b32 s44, s50\n  s_mov_b32 s45, s51\n  s_sub_u32 s4, s4, 100\n  s_mov_b32 s8, {WS_W2P}")
    k("F_go:")
    k("  s_mul_i32 s11, s4, 6554\n  s_lshr_b32 s11, s11, 16\n  s_mul_i32 s13, s11, 10\n  s_sub_u32 s5, s4, s13")
    k("F_go2:")
    k("  s_lshl_b32 s74, s3, 13")
    pack_load(k, 74)
    k("  s_waitcnt vmcnt(0)")
    pack_store(k, PKF)
    k("F_aw:")
    k("  s_waitcnt vmcnt(0)\n  s_barrier\n  s_cmp_lg_u32 s3, 0\n  s_cbranch_scc1 F_ax")
    arrive(34, 192, 25 + 6 + 30 * W3A, gow_set)
    k("  s_branch F_ax")
    k("F_cs:")
    k("  s_cmp_lt_u32 s75, 34\n  s_cbranch_scc0 F_fl")
    k("  s_mov_b32 s4, s75")
    k(f"  s_mov_b32 s44, s48\n  s_mov_b32 s45, s49\n  s_mov_b32 s46, {640*640*2}\n  s_mov_b32 s47, 0x00020000")
    k(f"  s_mov_b32 s5, s4\n  s_movk_i32 s6, 1280\n  s_mov_b32 s11, {WS_CS1}")
    k("  s_cmp_lt_u32 s4, 10\n  s_cbranch_scc1 F_cg")
    k(f"  s_mov_b32 s44, s52\n  s_mov_b32 s45, s53\n  s_mov_b32 s46, {640*1536*2}\n  s_sub_u32 s5, s4, 10\n  s_movk_i32 s6, 3072\n  s_mov_b32 s11, {WS_CS3}")
    k("F_cg:")
    k("  v_lshrrev_b32 v4, 3, v0\n  v_and_b32 v5, 7, v2")
    k("  v_mul_lo_u32 v6, s6, v4\n  s_lshl_b32 s14, s5, 7\n  v_lshl_add_u32 v6, v5, 4, v6\n  v_add_u32 v6, s14, v6")
    k("  s_lshl_b32 s15, s6, 6\n  s_mov_b32 s29, 0")
    for i in range(10): k(f"  buffer_load_dwordx4 v[{32+4*i}:{35+4*i}], v6, s[44:47], s29 offen\n  s_add_u32 s29, s29, s15")
    k("  s_mov_b32 s41, 0x00003f80\n  s_mov_b32 s42, 0x3f800000")
    for n in range(8): k(f"  v_mov_b32 v{16+n}, 0")
    for i in range(10):
        k(f"  s_waitcnt vmcnt({9-i})")
        for n in range(8): k(f"  v_dot2_f32_bf16 v{16+n}, v{32+4*i+(n>>1)}, s{42 if n & 1 else 41}, v{16+n}")
    for n in range(8):
        r = 16 + n
        k(f"  v_add_f32_dpp v{r}, v{r}, v{r} row_ror:8 row_mask:0xf bank_mask:0xf")
        k(f"  v_mov_b32 v24, v{r}\n  v_permlane16_swap_b32 v{r}, v24\n  v_add_f32 v{r}, v{r}, v24")
        k(f"  v_mov_b32 v24, v{r}\n  v_permlane32_swap_b32 v{r}, v24\n  v_add_f32 v{r}, v{r}, v24")
    k("  s_lshl_b32 s12, s3, 8\n  v_lshlrev_b32 v9, 5, v5\n  v_add_u32 v9, s12, v9")
    k("  ds_write_b128 v9, v[16:19]\n  ds_write_b128 v9, v[20:23] offset:16")
    k("  s_waitcnt lgkmcnt(0)\n  s_barrier")
    k("  s_cmp_lg_u32 s3, 3\n  s_cbranch_scc1 F_ax")
    k("  v_lshlrev_b32 v9, 2, v2")
    for w in range(8): k(f"  ds_read_b32 v{16+w}, v9 offset:{256*w}")
    k("  s_lshl_b32 s12, s5, 8\n  s_add_u32 s12, s12, s11")
    k("  s_waitcnt lgkmcnt(0)")
    for w in range(1, 8): k(f"  v_add_f32 v16, v16, v{16+w}")
    k("  buffer_store_dword v16, v9, s[36:39], s12 offen sc1\n  s_mov_b32 s71, 1")
    k("  s_branch F_ax")
    k("F_fl:")
    if W3A:
        k("  s_cmp_ge_u32 s72, 57\n  s_cbranch_scc1 F_fl2\n  s_sub_u32 s4, s72, 27\n  s_lshl_b32 s4, s4, 3\n  s_add_u32 s4, s4, s3")
        k(f"  s_mov_b32 s44, s52\n  s_mov_b32 s45, s53\n  s_mov_b32 s46, {640*1536*2}\n  s_mov_b32 s47, 0x00020000\n  s_mov_b32 s8, {WS_W3P}\n  s_movk_i32 s6, 3072\n  s_mov_b32 s12, 0\n  s_mov_b32 s9, 122880\n  s_movk_i32 s10, 1024\n  s_movk_i32 s7, 24576\n  s_movk_i32 s41, 6144\n  s_mov_b32 s42, 6\n  s_movk_i32 s43, 171")
        k("  s_mul_i32 s11, s4, 2731\n  s_lshr_b32 s11, s11, 16\n  s_mul_i32 s13, s11, 24\n  s_sub_u32 s5, s4, s13\n  s_branch F_go2")
        k("F_fl2:")
    k("  s_cmp_lt_u32 s72, 58\n  s_cbranch_scc1 F_ax\n  s_sub_u32 s5, s72, 58\n  s_lshl_b32 s5, s5, 14")
    k(f"  v_mov_b32 v16, 0\n  v_mov_b32 v17, 0\n  v_mov_b32 v18, 0\n  v_mov_b32 v19, 0\n  s_lshl_b32 s4, s3, 11\n  s_add_u32 s4, s4, s5\n  s_add_u32 s4, s4, {WS_FL1}")
    k("  buffer_store_dwordx4 v[16:19], v3, s[36:39], s4 offen sc1\n  buffer_store_dwordx4 v[16:19], v3, s[36:39], s4 offen offset:1024 sc1\n  s_branch F_aw")
    k("F_ax:")
    k.stamp(5)
    k("  s_cmp_lg_u32 s3, 0\n  s_cbranch_scc1 F_a2")
    gow_wait("F_pl6", int(os.environ.get("GWS", 8)), 10)
    k("F_a2:")
    k(f"  v_mov_b32 v248, {GG_FLG}\n  v_mov_b32 v244, 0\n  v_mov_b32 v245, 0\n  v_mov_b32 v246, 0\n  v_mov_b32 v247, 0\n  ds_write_b128 v248, v[244:247]\n  ds_write_b128 v248, v[244:247] offset:16")
    k("  s_waitcnt lgkmcnt(0)\n  s_barrier")
    k.stamp(6)
    if SLT:
        NKB = 8 if SLT == 1 else 16
        assert 96 * NKB * 1024 >= (SL_G if SLT == 1 else SL_G + 786432) and 96 * NKB * 1024 <= SLAB
        k(f"  s_lshr_b32 s12, s72, 3\n  s_lshl_b32 s12, s12, 3\n  s_add_u32 s12, s12, s3\n  s_mul_i32 s12, s12, {NKB*1024}\n  s_and_b32 s13, s2, 7\n  s_mul_i32 s13, s13, {SLAB}\n  s_add_u32 s12, s12, s13\n  s_mov_b32 s13, s12")
        k("  v_mov_b32 v16, 0\n  v_mov_b32 v17, 0\n  v_mov_b32 v18, 0\n  v_mov_b32 v19, 0\n  v_lshlrev_b32 v10, 7, v2")
        for i in range(NKB):
            k(f"  buffer_store_dwordx4 v[16:19], v3, s[36:39], s12 offen offset:{1024*(i&3)} sc1" + ("\n  s_add_u32 s12, s12, 4096" if i & 3 == 3 else ""))
        k("  s_waitcnt vmcnt(0)\n  s_barrier")
        for i in range(NKB // 8): k(f"  buffer_load_dword v11, v10, s[36:39], s13 offen\n  s_add_u32 s13, s13, 8192")
        k("  s_waitcnt vmcnt(0)")
    if PKA:
        k("  s_cmp_lt_u32 s72, 36\n  s_cbranch_scc1 F_np9")
        k(f"  s_sub_u32 s75, s72, 36\n  s_lshl_b32 s75, s75, 3\n  s_add_u32 s75, s75, s3\n  s_mov_b32 s46, {640*1536*2}\n  s_mov_b32 s47, 0x00020000\n  s_cmp_lt_u32 s75, 240\n  s_cbranch_scc0 F_c4")
        k(f"  s_mov_b32 s44, s52\n  s_mov_b32 s45, s53\n  s_mov_b32 s8, {WS_W3P}\n  s_movk_i32 s6, 3072\n  s_mov_b32 s12, 0\n  s_movk_i32 s13, 2731\n  s_mov_b32 s15, 24\n  s_mov_b32 s9, 122880\n  s_movk_i32 s10, 1024\n  s_movk_i32 s7, 24576\n  s_movk_i32 s41, 6144\n  s_mov_b32 s42, 6\n  s_movk_i32 s43, 171\n  s_branch F_cgo")
        k("F_c4:")
        k(f"  s_mov_b32 s44, s54\n  s_mov_b32 s45, s55\n  s_sub_u32 s75, s75, 240\n  s_mov_b32 s8, {WS_W4P}\n  s_movk_i32 s6, 1280\n  s_mov_b32 s12, 1\n  s_movk_i32 s13, 6554\n  s_mov_b32 s15, 10\n  s_mov_b32 s9, 245760\n  s_movk_i32 s10, 4096\n  s_movk_i32 s7, 20480\n  s_movk_i32 s41, 1024\n  s_mov_b32 s42, 5\n  s_movk_i32 s43, 205")
        k("F_cgo:")
        k(f"  s_mul_i32 s11, s75, s13\n  s_lshr_b32 s11, s11, 16\n  s_mul_i32 s13, s11, s15\n  s_sub_u32 s5, s75, s13\n  s_lshl_b32 s73, s3, 13")
        pack_load(k, 73, va=244, vb=245, vc=246, vd=247, so=66)
        k("  s_waitcnt vmcnt(0)")
        pack_store(k, PKF, vb=245, vc=246, vd=247, so=66, R=144)
        k("  s_waitcnt vmcnt(0)\n  s_barrier\n  s_cmp_eq_u32 s3, 3\n  s_cselect_b32 s71, 1, 0")
        k("F_np9:")
    if SLT: k("  s_cmp_lg_u32 s3, 3\n  s_cbranch_scc1 F_a3\n  s_waitcnt vmcnt(0)")
    else: k("  s_cmp_eq_u32 s71, 0\n  s_cbranch_scc1 F_a3\n  s_waitcnt vmcnt(0)")
    top()
    k("F_a3:")
    k("F_fin:")
    k.stamp_out(0, nw=8)
    tab = ktab_offsets()
    k.tail.append(".p2align 6\nF_tab:")
    for i in range(0, len(tab), 16):
        k.tail.append("  .short " + ", ".join(str(x) for x in tab[i:i+16]))
```
